```python
import torch

def _softmax(x, axis=-1):
    return torch.softmax(x, dim=axis)
def _gelu(x):
    return torch.nn.functional.gelu(x, approximate="tanh")
def _silu(x):
    return torch.nn.functional.silu(x)
def _sigmoid(x):
    return torch.sigmoid(x)
def _layernorm(x, axis=-1, eps=1e-5):
    m = x.mean(dim=axis, keepdim=True)
    v = x.var(dim=axis, keepdim=True, unbiased=False)
    return (x - m) / torch.sqrt(v + eps)
def _scatter_add(tgt, idx, src, axis=0):
    return tgt.clone().index_add_(axis, idx, src)
def _segment_sum(src, seg, n):
    out = torch.zeros((n,) + src.shape[1:], dtype=src.dtype)
    return out.index_add_(0, seg, src)
def _pad(x, pw):
    flat = tuple(v for pair in reversed(pw) for v in pair)
    return torch.nn.functional.pad(x, flat)

kernel_name = 'concat_heads__linear_kernel_hedgehog__ssm_conv_s5__prompt'

def setup_inputs():

    _w = (lambda a: (lambda t: t.to(torch.bfloat16) if t.is_floating_point() else t)(torch.as_tensor(a)))
    def _A_setup():
        B, S, D, H = 1, 2048, 1024, 32
        Dh = D // H
        return {
            "x": _w((lambda *s: torch.randn(*s, dtype=torch.bfloat16) * 0.4)(B, S, D)),
            "wqkv": _w((lambda *s: torch.randn(*s, dtype=torch.bfloat16) * 0.4)(D, 3 * D)),
            "w_phi": _w((lambda *s: torch.randn(*s, dtype=torch.bfloat16) * 0.4)(H, Dh, Dh) * (Dh ** -0.5)),
            "wo": _w((lambda *s: torch.randn(*s, dtype=torch.bfloat16) * 0.05)(D, D)),
        }
    _A_in = _A_setup()

    def _B_setup():
        B, S, D = 1, 2048, 1024
        P = D
        Lambda_re = -0.5 * (lambda _x: torch.exp(torch.as_tensor(_x)))((lambda *s: torch.randn(*s, dtype=torch.bfloat16) * 0.8)(P))
        Lambda_im = (lambda *s: torch.randn(*s, dtype=torch.bfloat16) * 0.8)(P) * 1.0
        B_re = (lambda *s: torch.randn(*s, dtype=torch.bfloat16) * 0.8)(P, D) * (D ** -0.5)
        B_im = (lambda *s: torch.randn(*s, dtype=torch.bfloat16) * 0.8)(P, D) * (D ** -0.5)
        C_re = (lambda *s: torch.randn(*s, dtype=torch.bfloat16) * 0.8)(D, P) * (P ** -0.5)
        C_im = (lambda *s: torch.randn(*s, dtype=torch.bfloat16) * 0.8)(D, P) * (P ** -0.5)
        log_dt = (lambda *s: torch.randn(*s, dtype=torch.bfloat16) * 0.8)(P) * 0.3 - 2.0
        Dskip = (lambda *s: torch.randn(*s, dtype=torch.bfloat16) * 0.8)(D)
        return {
            "x": _w((lambda *s: torch.randn(*s, dtype=torch.bfloat16) * 0.05)(B, S, D)),
            "Lambda_re": _w(Lambda_re),
            "Lambda_im": _w(Lambda_im),
            "B_re": _w(B_re),
            "B_im": _w(B_im),
            "C_re": _w(C_re),
            "C_im": _w(C_im),
            "log_dt": _w(log_dt),
            "Dskip": _w(Dskip),
        }
    _B_in = _B_setup()

    return {
        "A_x": _A_in["x"],
        "A_wqkv": _A_in["wqkv"],
        "A_w_phi": _A_in["w_phi"],
        "A_wo": _A_in["wo"],
        "B_x": _B_in["x"],
        "B_Lambda_re": _B_in["Lambda_re"],
        "B_Lambda_im": _B_in["Lambda_im"],
        "B_B_re": _B_in["B_re"],
        "B_B_im": _B_in["B_im"],
        "B_C_re": _B_in["C_re"],
        "B_C_im": _B_in["C_im"],
        "B_log_dt": _B_in["log_dt"],
        "B_Dskip": _B_in["Dskip"],
    }

def reference(A_x, A_wqkv, A_w_phi, A_wo, B_x, B_Lambda_re, B_Lambda_im, B_B_re, B_B_im, B_C_re, B_C_im, B_log_dt, B_Dskip):
    def _A_ref(x, wqkv, w_phi, wo):
        B, S, D = x.shape
        H = 32; Dh = D // H
        qkv = (lambda x, *d: x.permute(*d))((x @ wqkv).reshape(B, S, 3, H, Dh), 2, 0, 3, 1, 4)
        q, k, v = qkv[0], qkv[1], qkv[2]
        pq = torch.einsum("bhsd,hdf->bhsf", q, w_phi)
        pk = torch.einsum("bhsd,hdf->bhsf", k, w_phi)
        phi_q = torch.concatenate([_softmax(pq, axis=-1), _softmax(-pq, axis=-1)], axis=-1)
        phi_k = torch.concatenate([_softmax(pk, axis=-1), _softmax(-pk, axis=-1)], axis=-1)
        kv = torch.einsum("bhsf,bhsd->bhfd", phi_k, v)
        z  = torch.einsum("bhsf->bhf", phi_k)
        num = torch.einsum("bhqf,bhfd->bhqd", phi_q, kv)
        den = torch.einsum("bhqf,bhf->bhq", phi_q, z)[..., None] + 1e-6
        o = num / den
        return (lambda x, *d: x.permute(*d))(o, 0, 2, 1, 3).reshape(B, S, D) @ wo

    def _B_ref(x, Lambda_re, Lambda_im, B_re, B_im, C_re, C_im, log_dt, Dskip):
        Bsz, L, H = x.shape
        Lam = Lambda_re + 1j * Lambda_im
        Bmat = B_re + 1j * B_im
        Cmat = C_re + 1j * C_im
        dt = torch.exp(log_dt)
        Lam_bar = torch.exp(dt * Lam)
        B_bar = ((Lam_bar - 1.0) / Lam)[:, None] * Bmat
        Bu = torch.einsum("bld,pd->blp", x + 0j, B_bar)
        h = torch.zeros_like(Bu[:, 0, :])
        hs = []
        for t in range(L):
            h = Lam_bar[None, :] * h + Bu[:, t, :]
            hs.append(h)
        hseq = torch.stack(hs, 1)
        y = 2.0 * torch.einsum("blp,dp->bld", hseq, Cmat).real + x * Dskip[None, None, :]
        return y

    a = _A_ref(A_x, A_wqkv, A_w_phi, A_wo)
    b = _B_ref(B_x, B_Lambda_re, B_Lambda_im, B_B_re, B_B_im, B_C_re, B_C_im, B_log_dt, B_Dskip)
    return torch.concatenate([a, b], axis=-1)
```

```python
import re

REG_RE = re.compile(r'^(-|abs\()?\s*([vas])(?:\[(\d+):(\d+)\]|(\d+))\)?$')
TRANS = ('v_exp_f32', 'v_log_f32', 'v_rcp_f32', 'v_rsq_f32', 'v_sqrt_f32', 'v_sin_f32', 'v_cos_f32',
         'v_rcp_iflag_f32')


def split_ops(s):
    out, depth, cur = [], 0, ''
    for ch in s:
        if ch in '[(':
            depth += 1
        elif ch in '])':
            depth -= 1
        if ch == ',' and depth == 0:
            out.append(cur.strip())
            cur = ''
        else:
            cur += ch
    if cur.strip():
        out.append(cur.strip())
    return out


def regs_of(tok):
    tok = tok.strip()
    if tok.startswith('-|') or tok.startswith('|'):
        tok = tok.strip('-').strip('|')
    if tok in ('vcc', 'vcc_lo', 'vcc_hi'):
        return {('s', 106), ('s', 107)}
    if tok in ('exec', 'exec_lo', 'exec_hi'):
        return {('s', 126), ('s', 127)}
    if tok == 'm0':
        return {('s', 124)}
    m = REG_RE.match(tok)
    if not m:
        return set()
    k = m.group(2)
    if m.group(3) is not None:
        return {(k, i) for i in range(int(m.group(3)), int(m.group(4)) + 1)}
    return {(k, int(m.group(5)))}


class Ins:
    __slots__ = ('text', 'mn', 'kind', 'w', 'r', 'ra', 'rb', 'rc', 'passes', 'states', 'dpp', 'lds_dma',
                 'wide_store_data', 'label', 'target', 'sread_vmem', 'lanesel')

    def __init__(self, text):
        self.text = text
        self.w = set(); self.r = set()
        self.ra = set(); self.rb = set(); self.rc = set()
        self.passes = 0
        self.states = 1
        self.dpp = False
        self.lds_dma = False
        self.wide_store_data = set()
        self.label = None
        self.target = None
        self.lanesel = set()
        t = text.split(';')[0].strip()
        if t.endswith(':') and ' ' not in t:
            self.kind = 'label'; self.mn = ''; self.label = t[:-1]; self.states = 0
            return
        if not t or t.startswith('.'):
            self.kind = 'dir'; self.mn = ''; self.states = 0
            return
        parts = t.split(None, 1)
        mn = parts[0]
        self.mn = mn
        rest = parts[1] if len(parts) > 1 else ''
        ops = split_ops(rest)
        mods = ''
        if ops:
            lp = ops[-1].split()
            ops[-1] = lp[0] if lp else ''
            mods = ' '.join(lp[1:])
        base = re.sub(r'_(e32|e64|dpp|sdwa)$', '', mn)
        if mn.startswith('v_mfma'):
            self.kind = 'mfma'
            self.w = regs_of(ops[0]); self.ra = regs_of(ops[1]); self.rb = regs_of(ops[2]); self.rc = regs_of(ops[3])
            self.r = self.ra | self.rb | self.rc
            self.passes = 8 if '32x32x16' in mn else (4 if '16x16x32' in mn else 16)
        elif mn.startswith('v_'):
            self.kind = 'trans' if base in TRANS else 'valu'
            if 'quad_perm' in text or 'row_' in text or mn.endswith('_dpp') or 'wave_' in text:
                self.dpp = True
            if base.startswith('v_permlane') and 'swap' in base:
                self.w = regs_of(ops[0]) | regs_of(ops[1]); self.r = set(self.w)
                self.kind = 'permlane'
            elif base in ('v_add_co_u32', 'v_sub_co_u32', 'v_subrev_co_u32', 'v_addc_co_u32', 'v_subb_co_u32'):
                self.w = regs_of(ops[0]) | regs_of(ops[1])
                for o in ops[2:]:
                    self.r |= regs_of(o)
            else:
                self.w = regs_of(ops[0])
                for o in ops[1:]:
                    self.r |= regs_of(o)
                if base in ('v_fmac_f32', 'v_dot2c_f32_bf16', 'v_pk_fmac_f16', 'v_writelane_b32') or (self.dpp):
                    self.r |= regs_of(ops[0])
                if base in ('v_readlane_b32', 'v_writelane_b32') and len(ops) > 2:
                    self.lanesel = regs_of(ops[2])
        elif mn.startswith('ds_'):
            self.kind = 'ds'
            if mn.startswith('ds_read') or mn.startswith('ds_bpermute') or mn.startswith('ds_permute') or mn.startswith('ds_swizzle'):
                self.w = regs_of(ops[0])
                for o in ops[1:]:
                    self.r |= regs_of(o)
            else:
                for o in ops:
                    self.r |= regs_of(o)
        elif mn.startswith('buffer_') or mn.startswith('global_'):
            self.kind = 'vmem'
            is_lds = bool(re.search(r'\blds\b', mods)) or 'load_lds' in mn
            if mn in ('buffer_wbl2', 'buffer_inv'):
                pass
            elif is_lds:
                self.lds_dma = True
                for o in ops:
                    self.r |= regs_of(o)
                self.r |= {('s', 124)}
            elif 'load' in mn:
                self.w = regs_of(ops[0])
                for o in ops[1:]:
                    self.r |= regs_of(o)
                if 'd16' in mn:
                    self.r |= regs_of(ops[0])
            else:
                for o in ops:
                    self.r |= regs_of(o)
                if 'atomic' in mn and re.search(r'\bsc0\b', mods):
                    self.w = regs_of(ops[0])
                if 'store' in mn and ('x4' in mn or 'x3' in mn):
                    data = ops[0] if mn.startswith('buffer_') else ops[1]
                    self.wide_store_data = regs_of(data)
        elif mn.startswith('s_'):
            if mn == 's_nop':
                self.kind = 'nop'; self.states = int(ops[0], 0) + 1
            elif mn.startswith('s_load') or mn.startswith('s_buffer_load') or mn.startswith('s_mem'):
                self.kind = 'smem'
                self.w = regs_of(ops[0])
                for o in ops[1:]:
                    self.r |= regs_of(o)
            elif mn.startswith('s_cbranch') or mn == 's_branch':
                self.kind = 'branch'; self.target = ops[0]
            elif mn in ('s_waitcnt', 's_barrier', 's_endpgm', 's_sleep', 's_setprio'):
                self.kind = 'other'
            elif mn.startswith('s_cmp') or mn.startswith('s_bitcmp'):
                self.kind = 'salu'
                for o in ops:
                    self.r |= regs_of(o)
            else:
                self.kind = 'salu'
                self.w = regs_of(ops[0]) if ops else set()
                for o in ops[1:]:
                    self.r |= regs_of(o)
                if 'saveexec' in mn:
                    self.w |= {('s', 126), ('s', 127)}
        else:
            self.kind = 'other'


def vec(s):
    return {x for x in s if x[0] in 'va'}


def sca(s):
    return {x for x in s if x[0] == 's'}


def need(p, c):
    n = 0
    isvalu_p = p.kind in ('valu', 'trans', 'permlane')
    isvalu_c = c.kind in ('valu', 'trans', 'permlane')
    if isvalu_p:
        pv = vec(p.w); ps = sca(p.w)
        if c.kind == 'mfma' and pv & c.r:
            n = max(n, 2)
        if p.kind == 'trans' and isvalu_c and c.kind != 'trans' and pv & c.r:
            n = max(n, 1)
        if isvalu_c and (c.dpp or c.kind == 'permlane') and pv & c.r:
            n = max(n, 2)
        if c.mn.startswith('v_readlane') or c.mn.startswith('v_readfirstlane'):
            if pv & c.r:
                n = max(n, 1)
        if ps:
            if isvalu_c and ps & c.r:
                n = max(n, 2)
            if c.lanesel & ps:
                n = max(n, 4)
            if c.kind == 'vmem' and ps & c.r:
                n = max(n, 5)
            if c.kind == 'mfma' and ('s', 126) in ps:
                n = max(n, 4)
            if c.dpp and ('s', 126) in ps:
                n = max(n, 5)
    if p.mn.startswith('v_dot'):
        if c.mn == p.mn:
            if p.w & (c.r - c.w):
                n = max(n, 3)
        elif p.w & (c.r | c.w):
            n = max(n, 3)
    if p.kind == 'mfma':
        big = {16: 20, 8: 12, 4: 8}[p.passes]
        ovl = {16: 18, 8: 10, 4: 6}[p.passes]
        war = {16: 15, 8: 7, 4: 3}[p.passes]
        if c.kind == 'mfma':
            if p.w & (c.ra | c.rb):
                n = max(n, big)
            if p.w & c.rc and not (p.w == c.rc and p.passes == c.passes):
                n = max(n, ovl)
            if p.w & c.w and not (p.w == c.rc and p.w == c.w):
                n = max(n, ovl)
        elif c.kind in ('valu', 'trans', 'permlane', 'vmem', 'ds'):
            if p.w & (c.r | c.w):
                n = max(n, big)
            if isvalu_c and p.rc & c.w:
                n = max(n, war)
    if p.kind == 'salu' and ('s', 124) in p.w and c.lds_dma:
        n = max(n, 1)
    if p.wide_store_data and p.wide_store_data & c.w:
        n = max(n, 2)
    return n


class Asm:
    def __init__(self):
        self.lines = []

    def __call__(self, s):
        for l in s.strip('\n').split('\n'):
            l = l.strip()
            if l:
                self.lines.append(l)

    def label(self, name):
        self.lines.append(name + ':')

    def comment(self, s):
        self.lines.append('; ' + s)

    def finish(self):
        out = []
        hist = []
        pos = 0
        parsed = []
        for l in self.lines:
            if l.startswith(';'):
                out.append('    ' + l)
                continue
            ins = Ins(l)
            if ins.kind == 'label':
                out.append(l)
                parsed.append(ins)
                continue
            if ins.kind == 'dir':
                out.append(l)
                continue
            req = 0
            for (p, endpos) in hist:
                n = need(p, ins)
                if n:
                    have = pos - endpos
                    if n - have > req:
                        req = n - have
            while req > 0:
                k = min(req, 16)
                nop = Ins('s_nop %d' % (k - 1))
                out.append('    s_nop %d' % (k - 1))
                parsed.append(nop)
                pos += k
                req -= k
            out.append('    ' + l)
            parsed.append(ins)
            pos += ins.states
            hist.append((ins, pos))
            hist = [(p, e) for (p, e) in hist if pos - e < 24]
        labels = {ins.label: i for i, ins in enumerate(parsed) if ins.kind == 'label'}
        for i, ins in enumerate(parsed):
            if ins.kind == 'branch' and ins.target in labels:
                j = labels[ins.target]
                pre = []
                p2 = 0
                k = i
                while k >= 0 and p2 < 24:
                    if parsed[k].kind != 'label':
                        pre.append((parsed[k], p2))
                        p2 += parsed[k].states
                    k -= 1
                d = 0
                k = j + 1
                while k < len(parsed) and d < 24:
                    c = parsed[k]
                    if c.kind != 'label':
                        for (p, dist) in pre:
                            n = need(p, c)
                            if n > dist + d:
                                raise RuntimeError('hazard across branch to %s: "%s" -> "%s" need %d have %d' %
                                                   (ins.target, p.text, c.text, n, dist + d))
                        d += c.states
                        if c.kind == 'branch' and c.mn == 's_branch':
                            break
                    k += 1
        return '\n'.join(out) + '\n'


def interleave(mfmas, fillers, lead=0):
    out = []
    n = len(mfmas)
    nf = len(fillers)
    per = [0] * n
    for i in range(nf):
        per[(i * n) // nf if nf else 0] += 1
    idx = 0
    for i, m in enumerate(mfmas):
        out.append(m)
        for _ in range(per[i]):
            f = fillers[idx]; idx += 1
            if isinstance(f, (list, tuple)):
                out.extend(f)
            else:
                out.append(f)
    return out
```

```python
from asmlib import interleave
import os
NO_DMA = os.environ.get('NO_DMA'); NO_MFMA = os.environ.get('NO_MFMA'); NO_READS = os.environ.get('NO_READS')


class Gemm:
    def __init__(self, a, **cfg):
        self.a = a
        self.mid = None
        self.__dict__.update(cfg)
        self.SETSZ = 4 * (self.TM + self.TN)
        self.R = self.TM + (self.TN if self.bmode == 'kc' else 2 * self.TN)
        self.D = sum(len(g[1]) for g in self.dma)
        self.first_mfma_zero = True
        self.nloop = 0

    def fragA(self, st, tm):
        b = self.FR + st * self.SETSZ + 4 * tm
        return b

    def fragB(self, st, tn):
        b = self.FR + st * self.SETSZ + 4 * self.TM + 4 * tn
        return b

    def reads(self, j, st):
        out = []
        ra = []
        for tm in range(self.TM):
            b = self.fragA(st, tm)
            ra.append('ds_read_b128 v[%d:%d], v%d offset:%d' % (b, b + 3, self.vA[j], self.offA[tm]))
        rb = []
        for tn in range(self.TN):
            b = self.fragB(st, tn)
            if self.bmode == 'kc':
                rb.append('ds_read_b128 v[%d:%d], v%d offset:%d' % (b, b + 3, self.vB[j], self.offB[tn]))
            else:
                ri, off = self.offB[tn]
                for u in range(2):
                    rb.append('ds_read_b64_tr_b16 v[%d:%d], v%d offset:%d' %
                              (b + 2 * u, b + 2 * u + 1, self.vB[ri], off + j * 2048 + u * 512))
        out.append(ra[0])
        nb0 = 1 if self.bmode == 'kc' else 2
        out.extend(rb[:nb0])
        out.extend(rb[nb0:])
        out.extend(ra[1:])
        if NO_READS:
            return ['s_nop 0'] * len(out)
        return out

    def mfmas(self, st, zero=False):
        out = []
        for tm in range(self.TM):
            for tn in range(self.TN):
                fa = self.fragA(st, tm); fb = self.fragB(st, tn)
                A = 'v[%d:%d]' % (fa, fa + 3); B = 'v[%d:%d]' % (fb, fb + 3)
                if self.swap(tm, tn):
                    A, B = B, A
                acc = self.acc(tm, tn)
                if NO_MFMA and not zero:
                    out.append('s_nop 0')
                else:
                    out.append('v_mfma_f32_32x32x16_bf16 %s, %s, %s, %s' % (acc, A, B, '0' if zero else acc))
        return out

    def dma_issue(self, wroff):
        out = []
        for (sm0, lst) in self.dma:
            first = True
            for (vo, srd, so, io) in lst:
                ins = 'buffer_load_dwordx4 v%d, %s, %s offen offset:%d lds' % (vo, srd, so, io)
                if NO_DMA:
                    ins = 's_nop 0'
                if first:
                    out.append(['s_add_u32 m0, %s, %s' % (wroff, sm0), 's_nop 0', ins])
                    first = False
                else:
                    out.append(ins)
        for s in self.adv:
            out.append(s)
        return out

    def prologue(self):
        a = self.a
        ST, NB = self.ST, self.NB
        for s in range(NB):
            a('s_mov_b32 %s, %d' % (self.s_tmp, s * ST))
            for f in self.dma_issue(self.s_tmp):
                if isinstance(f, list):
                    for x in f:
                        a(x)
                else:
                    a(f)
        a('s_mov_b32 %s, 0' % self.s_wroff)
        a('s_mov_b32 %s, %d' % (self.s_st, ST))
        a('s_mov_b32 %s, %d' % (self.s_d0, ST if NB > 1 else 0))
        a('s_mov_b32 %s, %d' % (self.s_d1, (ST if NB > 2 else -(NB - 1) * ST) & 0xffffffff))
        if self.mid:
            self.mid()
        a('s_waitcnt vmcnt(%d)' % ((NB - 1) * self.D))
        a('s_barrier')
        for j in range(self.PD):
            for r in self.reads(j, j % self.NS):
                a(r)
            a('v_add_u32 v%d, %s, v%d' % (self.vA[j], self.s_d0, self.vA[j]))
            if self.bmode == 'kc':
                a('v_add_u32 v%d, %s, v%d' % (self.vB[j], self.s_d0, self.vB[j]))

    def stage(self, dma, last, vm, first=False, extra=None, tail_code=None):
        a = self.a
        PD, NS = self.PD, self.NS
        dma_f = self.dma_issue(self.s_wroff) if dma else []
        ndsub = PD
        for s in range(4):
            if s == 4 - PD and not last:
                a('s_waitcnt vmcnt(%d) lgkmcnt(0)' % vm)
                a('s_barrier')
            else:
                ahead = PD - 1
                if last:
                    ahead = min(ahead, 3 - s)
                a('s_waitcnt lgkmcnt(%d)' % (ahead * self.R))
            fill = []
            j = s + PD
            if j < 4 or not last:
                jj = j % 4
                fill += self.reads(jj, j % NS)
                d = self.s_d0 if j < 4 else self.s_d1
                fill.append('v_add_u32 v%d, %s, v%d' % (self.vA[jj], d, self.vA[jj]))
                if self.bmode == 'kc':
                    fill.append('v_add_u32 v%d, %s, v%d' % (self.vB[jj], d, self.vB[jj]))
                elif j == 3:
                    for r in self.vB:
                        fill.append('v_add_u32 v%d, %s, v%d' % (r, self.s_d0, r))
            if s >= 4 - PD and dma_f:
                k = s - (4 - PD)
                n = (len(dma_f) + ndsub - 1) // ndsub
                fill += dma_f[k * n:(k + 1) * n]
            if extra and s in extra:
                fill += extra[s]
            if s == 3 and not last:
                fill += ['s_add_u32 %s, %s, %s' % (self.s_wroff, self.s_wroff, self.s_d0),
                         's_mov_b32 %s, %s' % (self.s_d0, self.s_d1),
                         's_add_u32 %s, %s, %s' % (self.s_tmp, self.s_wroff, self.s_d0),
                         ['s_cmp_eq_u32 %s, %d' % (self.s_tmp, (self.NB - 1) * self.ST),
                          's_cselect_b32 %s, %d, %s' % (self.s_d1, (-(self.NB - 1) * self.ST) & 0xffffffff, self.s_st)]]
            for l in interleave(self.mfmas(s % NS, zero=(first and s == 0)), fill):
                a(l)

    def run(self, KS, segments=None, tail_extra=None):
        a = self.a
        NB, D = self.NB, self.D
        if segments is None:
            segments = [(KS - NB, [])]
        assert sum(s[0] for s in segments) == KS - NB
        self.prologue()
        done = 0
        for (n, code) in segments:
            for c in code:
                a(c)
            if done == 0 and n > 0:
                self.stage(True, False, (NB - 2) * D, first=True)
                n -= 1
                done += 1
            if n > 0:
                lab = '%s_L%d' % (self.pfx, self.nloop); self.nloop += 1
                a('s_mov_b32 %s, %d' % (self.s_cnt, n))
                a.label(lab)
                self.stage(True, False, (NB - 2) * D)
                a('s_sub_u32 %s, %s, 1' % (self.s_cnt, self.s_cnt))
                a('s_cmp_lg_u32 %s, 0' % self.s_cnt)
                a('s_cbranch_scc1 %s' % lab)
                done += n
        for t in range(NB):
            sig = KS - NB + t
            last = (sig == KS - 1)
            vm = max(0, (KS - 1) - (sig + 1)) * D
            ex = tail_extra.get(t) if tail_extra else None
            self.stage(False, last, vm, first=(sig == 0), extra=ex)
```

```python
import os
from gemm import Gemm
import gen as G
from gen import srd, kernel_head, lane_consts, kc_read_addrs, kn_read_addr, stamp, stamp_flush
from gen import WS_O, WS_H, WS_KVP, WS_ZP, WS_AGG

LDS_BYTES = 147456
LOG2E = 0x3fb8aa3b

V_LANE, V_L31, V_HH, T0, T1, T2, T3 = 1, 2, 3, 4, 5, 6, 7
S_WAVE, S_CNT, S_WROFF, S_D0, S_D1, S_TMP, S_ST = 's64', 's65', 's66', 's67', 's68', 's69', 's79'
S_OA, S_OB, S_MA, S_MB, S_MT, S_NT, S_WM, S_WN, S_T2 = 's70', 's71', 's72', 's73', 's74', 's75', 's76', 's77', 's78'
S_MB2, S_L2E, S_HD = 's8', 's9', 's10'
SPIN_MAX = 1 << 21


def vr(b, n):
    return 'v[%d:%d]' % (b, b + n - 1)


def poll(a, tag, v_off, v_tmp, s_mask_or_count, mode):
    a('s_cmp_lg_u32 %s, 0' % S_WAVE)
    a('s_cbranch_scc1 %s_done' % tag)
    a('s_mov_b32 s5, 0')
    a.label('%s_loop' % tag)
    a('global_load_dword v%d, v%d, s[44:45] sc1' % (v_tmp, v_off))
    a('s_waitcnt vmcnt(0)')
    a('v_readfirstlane_b32 s6, v%d' % v_tmp)
    a('s_nop 3')
    if mode == 'ge':
        a('s_cmp_ge_u32 s6, %s' % s_mask_or_count)
    else:
        a('s_and_b32 s6, s6, %s' % s_mask_or_count)
        a('s_cmp_eq_u32 s6, %s' % s_mask_or_count)
    a('s_cbranch_scc1 %s_done' % tag)
    a('s_sleep 1')
    a('s_add_u32 s5, s5, 1')
    a('s_cmp_lt_u32 s5, %d' % SPIN_MAX)
    a('s_cbranch_scc1 %s_loop' % tag)
    a.label('%s_done' % tag)
    a('s_barrier')


def softmax_pm(a, PP, EP, EN, OUTP, OUTN, tA, tB, tC, tD):
    mx, mn, t1, t2 = tA, tB, tC, tD
    a('v_max3_f32 v%d, v%d, v%d, v%d' % (mx, PP, PP + 1, PP + 2))
    a('v_min3_f32 v%d, v%d, v%d, v%d' % (mn, PP, PP + 1, PP + 2))
    for i in range(3, 15, 2):
        a('v_max3_f32 v%d, v%d, v%d, v%d' % (mx, mx, PP + i, PP + i + 1))
        a('v_min3_f32 v%d, v%d, v%d, v%d' % (mn, mn, PP + i, PP + i + 1))
    a('v_max_f32 v%d, v%d, v%d' % (mx, mx, PP + 15))
    a('v_min_f32 v%d, v%d, v%d' % (mn, mn, PP + 15))
    a('v_mov_b32 v%d, v%d' % (t1, mx))
    a('v_mov_b32 v%d, v%d' % (t2, mn))
    a('v_permlane32_swap_b32 v%d, v%d' % (mx, t1))
    a('v_permlane32_swap_b32 v%d, v%d' % (mn, t2))
    a('v_max_f32 v%d, v%d, v%d' % (mx, mx, t1))
    a('v_min_f32 v%d, v%d, v%d' % (mn, mn, t2))
    a('v_mul_f32 v%d, %s, v%d' % (mx, S_L2E, mx))
    a('v_mul_f32 v%d, %s, v%d' % (mn, S_L2E, mn))
    for i in range(16):
        a('v_fma_f32 v%d, v%d, %s, -v%d' % (EP + i, PP + i, S_L2E, mx))
        a('v_fma_f32 v%d, -v%d, %s, v%d' % (EN + i, PP + i, S_L2E, mn))
    for i in range(16):
        a('v_exp_f32 v%d, v%d' % (EP + i, EP + i))
        a('v_exp_f32 v%d, v%d' % (EN + i, EN + i))
    a('v_add_f32 v%d, v%d, v%d' % (mx, EP, EP + 1))
    a('v_add_f32 v%d, v%d, v%d' % (mn, EN, EN + 1))
    a('v_add_f32 v%d, v%d, v%d' % (t1, EP + 2, EP + 3))
    a('v_add_f32 v%d, v%d, v%d' % (t2, EN + 2, EN + 3))
    for i in range(4, 16, 2):
        a('v_add_f32 v%d, v%d, v%d' % (mx, mx, EP + i))
        a('v_add_f32 v%d, v%d, v%d' % (mn, mn, EN + i))
        a('v_add_f32 v%d, v%d, v%d' % (t1, t1, EP + i + 1))
        a('v_add_f32 v%d, v%d, v%d' % (t2, t2, EN + i + 1))
    a('v_add_f32 v%d, v%d, v%d' % (mx, mx, t1))
    a('v_add_f32 v%d, v%d, v%d' % (mn, mn, t2))
    a('v_mov_b32 v%d, v%d' % (t1, mx))
    a('v_mov_b32 v%d, v%d' % (t2, mn))
    a('v_permlane32_swap_b32 v%d, v%d' % (mx, t1))
    a('v_permlane32_swap_b32 v%d, v%d' % (mn, t2))
    a('v_add_f32 v%d, v%d, v%d' % (mx, mx, t1))
    a('v_add_f32 v%d, v%d, v%d' % (mn, mn, t2))
    a('v_rcp_f32 v%d, v%d' % (mx, mx))
    a('v_rcp_f32 v%d, v%d' % (mn, mn))
    for i in range(16):
        a('v_mul_f32 v%d, v%d, v%d' % (EP + i, EP + i, mx))
        a('v_mul_f32 v%d, v%d, v%d' % (EN + i, EN + i, mn))
    for k in range(8):
        a('v_cvt_pk_bf16_f32 v%d, v%d, v%d' % (OUTP + k, EP + 2 * k, EP + 2 * k + 1))
        a('v_cvt_pk_bf16_f32 v%d, v%d, v%d' % (OUTN + k, EN + 2 * k, EN + 2 * k + 1))


def x_dma_voffs(a, vd, s_row0, permute):
    if not permute:
        a('s_lshl_b32 %s, %s, 5' % (S_T2, S_WAVE))
        a('s_add_u32 %s, %s, %s' % (S_T2, S_T2, s_row0))
        a('v_lshrrev_b32 v%d, 3, v%d' % (T0, V_LANE))
        jstep = 8
    else:
        a('s_lshl_b32 %s, %s, 6' % (S_T2, S_WM))
        a('s_lshl_b32 s5, %s, 4' % S_WN)
        a('s_add_u32 %s, %s, s5' % (S_T2, S_T2))
        a('s_add_u32 %s, %s, %s' % (S_T2, S_T2, s_row0))
        a('v_bfe_u32 v%d, v%d, 3, 2' % (T0, V_LANE))
        a('v_lshl_add_u32 v%d, v%d, 5, v%d' % (T0, V_HH, T0))
        jstep = 4
    a('v_add_u32 v%d, %s, v%d' % (T0, S_T2, T0))
    a('v_lshlrev_b32 v%d, 11, v%d' % (T0, T0))
    a('v_lshrrev_b32 v%d, 4, v%d' % (T1, V_LANE))
    a('v_and_b32 v%d, 7, v%d' % (T2, V_LANE))
    a('v_xor_b32 v%d, v%d, v%d' % (T1, T1, T2))
    for j in range(4):
        a('v_xor_b32 v%d, %d, v%d' % (T2, (j & 1) * 4, T1))
        a('v_lshl_add_u32 v%d, v%d, 4, v%d' % (vd[j], T2, T0))
        c = jstep * j * 2048 - j * 1024
        if c:
            a('v_add_u32 v%d, 0x%x, v%d' % (vd[j], c, vd[j]))


def gen_k1(a):
    name = 'k1_kernel'
    kernel_head(a, name, 256)
    lane_consts(a, V_LANE, V_L31, V_HH, S_WAVE, T0)
    a('s_and_b32 s3, s2, 7')
    a('s_lshr_b32 s4, s2, 3')
    a('s_and_b32 s5, s4, 3')
    a('s_and_b32 s6, s3, 1')
    a('s_lshl_b32 s6, s6, 2')
    a('s_add_u32 %s, s6, s5' % S_MT)
    a('s_bfe_u32 s5, s4, 0x20002')
    a('s_lshr_b32 s6, s3, 1')
    a('s_lshl_b32 s6, s6, 2')
    a('s_add_u32 %s, s6, s5' % S_NT)
    a('s_lshr_b32 %s, %s, 1' % (S_WM, S_WAVE))
    a('s_and_b32 %s, %s, 1' % (S_WN, S_WAVE))
    a('s_lshl_b32 %s, %s, 12' % (S_MA, S_WAVE))
    a('s_mov_b32 %s, 0' % S_OA)
    a('s_mov_b32 %s, 0' % S_OB)
    a('s_mov_b32 %s, 0x%x' % (S_L2E, LOG2E))
    VA = [8, 9, 10, 11]
    a('s_lshl_b32 %s, %s, 13' % (S_TMP, S_WM))
    kc_read_addrs(a, VA, V_L31, V_HH, S_TMP, 0, T0, T1)
    a('s_waitcnt lgkmcnt(0)')
    a('s_bitcmp1_b32 s4, 4')
    a('s_cbranch_scc1 k1_B')
    gen_A(a, VA)
    a.label('k1_B')
    gen_B(a, VA)
    a.label(name + '_exit')
    a('s_endpgm')


def gen_A(a, VA):
    a.comment('==== A: qkv gemm')
    VB0 = 12
    VDA = [13, 14, 15, 16]
    VDB = [17, 18, 19]
    WPH = 20
    VWR = 28
    VTR = 36
    V_OFF, V_ONE, V_O = 40, 41, 42
    ACC = 48
    FR = 144
    AQ, AK, AV = ACC, ACC + 32, ACC + 64
    NB, ST = 2, 57344
    srd(a, 48, 'Ax', 4 << 20)
    srd(a, 52, 'wqkv', 6 << 20)
    srd(a, 56, 'wphi', 65536)
    a('s_lshl_b32 %s, %s, 1' % (S_HD, S_NT))
    a('s_add_u32 %s, %s, %s' % (S_HD, S_HD, S_WN))
    a('v_lshlrev_b32 v%d, 8, v%d' % (T0, V_HH))
    a('v_lshl_add_u32 v%d, v%d, 1, v%d' % (T0, V_L31, T0))
    a('s_lshl_b32 s5, %s, 11' % S_HD)
    for s in range(2):
        for i in range(8):
            d = 16 * s + 8 * (i >> 2) + (i & 3)
            a('buffer_load_ushort v%d, v%d, s[56:59], s5 offen offset:%d' % (ACC + 8 * s + i, T0, d * 64))
    a('s_lshl_b32 s5, %s, 8' % S_MT)
    x_dma_voffs(a, VDA, 's5', False)
    a('v_lshrrev_b32 v%d, 3, v%d' % (T0, V_LANE))
    a('v_mul_u32_u24 v%d, 6144, v%d' % (T0, T0))
    a('v_bfe_u32 v%d, v%d, 4, 1' % (T1, V_LANE))
    a('v_lshlrev_b32 v%d, 2, v%d' % (T1, T1))
    a('v_and_b32 v%d, 7, v%d' % (T2, V_LANE))
    a('v_xor_b32 v%d, v%d, v%d' % (T1, T1, T2))
    a('v_lshl_add_u32 v%d, v%d, 4, v%d' % (T0, T1, T0))
    a('s_mul_i32 s5, %s, 3' % S_WAVE)
    a('s_lshl_b32 %s, s5, 10' % S_MB)
    a('s_add_u32 %s, %s, 32768' % (S_MB, S_MB))
    for j in range(3):
        a('s_add_u32 s6, s5, %d' % j)
        a('s_lshr_b32 s7, s6, 3')
        a('s_and_b32 s6, s6, 7')
        a('s_mul_i32 s6, s6, 49152')
        a('s_lshl_b32 s7, s7, 11')
        a('s_add_u32 s6, s6, s7')
        a('s_lshl_b32 s7, %s, 7' % S_NT)
        a('s_add_u32 s6, s6, s7')
        if j:
            a('s_sub_u32 s6, s6, %d' % (j * 1024))
        a('v_add_u32 v%d, s6, v%d' % (VDB[j], T0))
    a('s_mov_b32 %s, 0' % S_TMP)
    kn_read_addr(a, VB0, None, V_LANE, S_TMP, 32768, T0, T1)
    a('s_lshl_b32 s5, %s, 6' % S_WN)
    a('v_xor_b32 v%d, s5, v%d' % (VB0, VB0))

    def mid():
        a('s_lshl_b32 s5, %s, 13' % S_WAVE)
        a('v_and_b32 v%d, 5, v%d' % (T0, V_L31))
        a('v_bfe_u32 v%d, v%d, 1, 1' % (T1, V_L31))
        a('v_lshl_or_b32 v%d, v%d, 3, v%d' % (T0, T1, T0))
        a('v_bfe_u32 v%d, v%d, 3, 1' % (T1, V_L31))
        a('v_lshl_or_b32 v%d, v%d, 1, v%d' % (T0, T1, T0))
        a('v_xor_b32 v%d, v%d, v%d' % (T0, T0, V_HH))
        a('v_lshlrev_b32 v%d, 3, v%d' % (T0, T0))
        a('v_lshl_add_u32 v%d, v%d, 7, v%d' % (T0, V_L31, T0))
        a('v_add_u32 v%d, s5, v%d' % (T0, T0))
        for k in range(8):
            a('v_xor_b32 v%d, %d, v%d' % (VWR + k, ((k & 3) * 2 + (k >> 2) * 8) * 8, T0))
        a('v_bfe_u32 v%d, v%d, 2, 2' % (T0, V_LANE))
        a('v_lshl_add_u32 v%d, v%d, 2, v%d' % (T0, V_HH, T0))
        a('v_and_b32 v%d, 5, v%d' % (T1, T0))
        a('v_bfe_u32 v%d, v%d, 1, 1' % (T2, T0))
        a('v_lshl_or_b32 v%d, v%d, 3, v%d' % (T1, T2, T1))
        a('v_and_b32 v%d, 3, v%d' % (T2, V_LANE))
        a('v_bfe_u32 v%d, v%d, 4, 1' % (T3, V_LANE))
        a('v_lshl_or_b32 v%d, v%d, 2, v%d' % (T2, T3, T2))
        a('v_xor_b32 v%d, v%d, v%d' % (T1, T1, T2))
        a('v_lshlrev_b32 v%d, 3, v%d' % (T1, T1))
        a('v_lshl_add_u32 v%d, v%d, 7, v%d' % (T1, T0, T1))
        a('v_add_u32 v%d, s5, v%d' % (T1, T1))
        for ft in range(2):
            for u in range(2):
                a('v_xor_b32 v%d, %d, v%d' % (VTR + 2 * ft + u, ft * 64 + u * 16, T1))
        a('s_lshl_b32 s5, %s, 2' % S_NT)
        a('v_mov_b32 v%d, s5' % V_OFF)
        a('v_mov_b32 v%d, 1' % V_ONE)
        a('s_waitcnt vmcnt(%d)' % (NB * 7))
        for r in range(8):
            a('v_lshl_or_b32 v%d, v%d, 16, v%d' % (WPH + r, ACC + 2 * r + 1, ACC + 2 * r))

    def acc(tm, tn):
        b = ACC + 32 * tn + 16 * tm
        return vr(b, 16)

    g = Gemm(a, pfx='k1a', TM=2, TN=3, ST=ST, NB=NB, PD=1, NS=2, FR=FR, vA=VA, offA=[0, 4096],
             bmode='kn', vB=[VB0], offB=[(0, 0), (0, 8192), (0, 16384)], acc=acc,
             swap=lambda tm, tn: tn < 2,
             dma=[(S_MA, [(VDA[j], 's[48:51]', S_OA, j * 1024) for j in range(4)]),
                  (S_MB, [(VDB[j], 's[52:55]', S_OB, j * 1024) for j in range(3)])],
             adv=['s_add_u32 %s, %s, 128' % (S_OA, S_OA), 's_add_u32 %s, %s, 0x60000' % (S_OB, S_OB)],
             s_cnt=S_CNT, s_wroff=S_WROFF, s_d0=S_D0, s_d1=S_D1, s_tmp=S_TMP, s_st=S_ST, mid=mid)
    stamp(a, 1)
    g.run(16)
    stamp(a, 2)
    a('s_barrier')
    if os.environ.get('DUMP'):
        srd(a, 96, 'ws', 64 << 20, 32 << 20)
        a('s_lshl_b32 s5, s2, 3')
        a('s_add_u32 s5, s5, %s' % S_WAVE)
        a('s_mul_i32 s5, s5, %d' % (104 * 256))
        a('v_lshlrev_b32 v%d, 2, v%d' % (T0, V_LANE))
        for r in range(96):
            a('buffer_store_dword v%d, v%d, s[96:99], s5 offen' % (ACC + r, T0))
            a('s_add_u32 s5, s5, 256')
        for r in range(8):
            a('buffer_store_dword v%d, v%d, s[96:99], s5 offen' % (WPH + r, T0))
            a('s_add_u32 s5, s5, 256')
        a('s_waitcnt vmcnt(0)')
    PK = 144
    PP = 152
    EP = 168
    EN = 184
    OP = 200
    ON = 208
    KV = 216
    ZA = 248
    tA, tB, tC, tD = 250, 251, 252, 253
    V_ONES = 254
    AF = 168
    a('v_mov_b32 v%d, 0x3f803f80' % V_ONES)
    a('v_mov_b32 v%d, 0' % ZA)
    a('v_mov_b32 v%d, 0' % (ZA + 1))

    def featmap(src, outp, outn):
        for k in range(8):
            a('v_cvt_pk_bf16_f32 v%d, v%d, v%d' % (PK + k, src + 2 * k, src + 2 * k + 1))
        a('v_mfma_f32_32x32x16_bf16 %s, %s, %s, 0' % (vr(PP, 16), vr(WPH, 4), vr(PK, 4)))
        a('v_mfma_f32_32x32x16_bf16 %s, %s, %s, %s' % (vr(PP, 16), vr(WPH + 4, 4), vr(PK + 4, 4), vr(PP, 16)))
        softmax_pm(a, PP, EP, EN, outp, outn, tA, tB, tC, tD)

    for tm in range(2):
        featmap(AK + 16 * tm, OP, ON)
        for g4 in range(4):
            a('ds_write_b64 v%d, %s offset:%d' % (VWR + g4, vr(OP + 2 * g4, 2), tm * 4096))
            a('ds_write_b64 v%d, %s offset:%d' % (VWR + 4 + g4, vr(ON + 2 * g4, 2), tm * 4096))
        for k in range(8):
            a('v_cvt_pk_bf16_f32 v%d, v%d, v%d' % (PK + k, AV + 16 * tm + 2 * k, AV + 16 * tm + 2 * k + 1))
        a('s_waitcnt lgkmcnt(0)')
        for ft in range(2):
            for s in range(2):
                f = AF + 4 * (2 * ft + s)
                for u in range(2):
                    a('ds_read_b64_tr_b16 %s, v%d offset:%d' % (vr(f + 2 * u, 2), VTR + 2 * ft + u,
                                                                 tm * 4096 + s * 2048 + u * 1024))
        a('s_waitcnt lgkmcnt(0)')
        for ft in range(2):
            for s in range(2):
                f = AF + 4 * (2 * ft + s)
                c = '0' if (tm == 0 and s == 0) else vr(KV + 16 * ft, 16)
                a('v_mfma_f32_32x32x16_bf16 %s, %s, %s, %s' % (vr(KV + 16 * ft, 16), vr(f, 4), vr(PK + 4 * s, 4), c))
                for k in range(4):
                    a('v_dot2c_f32_bf16 v%d, v%d, v%d' % (ZA + ft, f + k, V_ONES))
    a('v_mov_b32 v%d, v%d' % (tA, ZA))
    a('v_mov_b32 v%d, v%d' % (tB, ZA + 1))
    a('v_permlane32_swap_b32 v%d, v%d' % (ZA, tA))
    a('v_permlane32_swap_b32 v%d, v%d' % (ZA + 1, tB))
    a('v_add_f32 v%d, v%d, v%d' % (ZA, ZA, tA))
    a('v_add_f32 v%d, v%d, v%d' % (ZA + 1, ZA + 1, tB))
    a('v_cmp_eq_u32 vcc, 1, v%d' % V_HH)
    a('v_cndmask_b32 v%d, v%d, v%d, vcc' % (ZA, ZA, ZA + 1))
    a('s_lshl_b32 s5, %s, 13' % S_WAVE)
    a('v_lshl_add_u32 v%d, v%d, 4, s5' % (T0, V_LANE))
    for q in range(8):
        a('ds_write_b128 v%d, %s offset:%d' % (T0, vr(KV + 4 * q, 4), q * 1024))
    a('s_lshl_b32 s5, %s, 8' % S_WAVE)
    a('s_add_u32 s5, s5, 65536')
    a('v_lshl_add_u32 v%d, v%d, 2, s5' % (T1, V_LANE))
    a('ds_write_b32 v%d, v%d' % (T1, ZA))
    a('s_waitcnt lgkmcnt(0)')
    a('s_barrier')
    a('s_lshl_b32 s5, %s, 13' % S_WN)
    a('s_lshl_b32 s6, %s, 11' % S_WM)
    a('s_add_u32 s5, s5, s6')
    a('v_lshl_add_u32 v%d, v%d, 4, s5' % (T0, V_LANE))
    R = 168
    for w in range(4):
        for q in range(2):
            a('ds_read_b128 %s, v%d offset:%d' % (vr(R + 8 * w + 4 * q, 4), T0, w * 16384 + q * 1024))
    a('s_lshl_b32 s5, %s, 8' % S_WN)
    a('s_add_u32 s5, s5, 65536')
    a('v_lshl_add_u32 v%d, v%d, 2, s5' % (T1, V_LANE))
    for w in range(4):
        a('ds_read_b32 v%d, v%d offset:%d' % (OP + w, T1, w * 512))
    srd(a, 56, 'ws', 4 << 20, WS_KVP)
    a('s_lshl_b32 s5, %s, 5' % S_MT)
    a('s_add_u32 s5, s5, %s' % S_HD)
    a('s_lshl_b32 s6, s5, 13')
    a('s_lshl_b32 s7, %s, 11' % S_WM)
    a('s_add_u32 s6, s6, s7')
    a('v_lshlrev_b32 v%d, 4, v%d' % (T2, V_LANE))
    a('s_lshl_b32 s7, s5, 8')
    a('s_add_u32 s7, s7, 0x%x' % (WS_ZP - WS_KVP))
    a('v_lshlrev_b32 v%d, 2, v%d' % (T3, V_LANE))
    a('s_waitcnt lgkmcnt(0)')
    for k in range(8):
        a('v_add_f32 v%d, v%d, v%d' % (R + k, R + k, R + 8 + k))
        a('v_add_f32 v%d, v%d, v%d' % (R + 16 + k, R + 16 + k, R + 24 + k))
    for k in range(8):
        a('v_add_f32 v%d, v%d, v%d' % (R + k, R + k, R + 16 + k))
    a('buffer_store_dwordx4 %s, v%d, s[56:59], s6 offen sc1' % (vr(R, 4), T2))
    a('buffer_store_dwordx4 %s, v%d, s[56:59], s6 offen offset:1024 sc1' % (vr(R + 4, 4), T2))
    a('v_add_f32 v%d, v%d, v%d' % (OP, OP, OP + 1))
    a('v_add_f32 v%d, v%d, v%d' % (OP + 2, OP + 2, OP + 3))
    a('v_add_f32 v%d, v%d, v%d' % (OP, OP, OP + 2))
    a('s_cmp_lg_u32 %s, 0' % S_WM)
    a('s_cbranch_scc1 k1a_noz')
    a('buffer_store_dword v%d, v%d, s[56:59], s7 offen sc1' % (OP, T3))
    a.label('k1a_noz')
    a('s_waitcnt vmcnt(0)')
    a('s_barrier')
    a('s_cmp_lg_u32 %s, 0' % S_WAVE)
    a('s_cbranch_scc1 k1a_nosig')
    a('s_mov_b64 exec, 1')
    a('global_atomic_add v%d, v%d, s[44:45] sc1' % (V_OFF, V_ONE))
    a('s_mov_b64 exec, -1')
    a.label('k1a_nosig')
    stamp(a, 3)
    PQ = AK
    for tm in range(2):
        featmap(AQ + 16 * tm, PQ + 16 * tm, PQ + 16 * tm + 8)
    stamp(a, 4)
    poll(a, 'k1a_poll', V_OFF, T0, '8', 'ge')
    stamp(a, 5)
    a('s_lshl_b32 s6, %s, 13' % S_HD)
    a('s_lshl_b32 s7, %s, 11' % S_WM)
    a('s_add_u32 s6, s6, s7')
    L = 144
    for m in range(8):
        a('buffer_load_dwordx4 %s, v%d, s[56:59], s6 offen sc1' % (vr(L + 8 * m, 4), T2))
        a('buffer_load_dwordx4 %s, v%d, s[56:59], s6 offen offset:1024 sc1' % (vr(L + 8 * m + 4, 4), T2))
        if m < 7:
            a('s_add_u32 s6, s6, 0x40000')
    ZL = 208
    a('s_lshl_b32 s7, %s, 8' % S_HD)
    a('s_add_u32 s7, s7, 0x%x' % (WS_ZP - WS_KVP))
    for m in range(8):
        a('buffer_load_dword v%d, v%d, s[56:59], s7 offen sc1' % (ZL + m, T3))
        if m < 7:
            a('s_add_u32 s7, s7, 0x2000')
    a('s_lshl_b32 s5, %s, 12' % S_WN)
    a('v_lshl_add_u32 v%d, v%d, 4, s5' % (T0, V_LANE))
    a('s_lshl_b32 s6, %s, 10' % S_WM)
    a('v_add_u32 v%d, s6, v%d' % (T1, T0))
    a('s_waitcnt vmcnt(8)')
    for k in range(8):
        for m in range(0, 8, 2):
            a('v_add_f32 v%d, v%d, v%d' % (L + 8 * m + k, L + 8 * m + k, L + 8 * (m + 1) + k))
    for k in range(8):
        a('v_add_f32 v%d, v%d, v%d' % (L + k, L + k, L + 16 + k))
        a('v_add_f32 v%d, v%d, v%d' % (L + 32 + k, L + 32 + k, L + 48 + k))
    for k in range(8):
        a('v_add_f32 v%d, v%d, v%d' % (L + k, L + k, L + 32 + k))
    for k in range(4):
        a('v_cvt_pk_bf16_f32 v%d, v%d, v%d' % (L + 8 + k, L + 2 * k, L + 2 * k + 1))
    a('ds_write_b128 v%d, %s' % (T1, vr(L + 8, 4)))
    a('s_waitcnt vmcnt(0)')
    for m in range(0, 8, 2):
        a('v_add_f32 v%d, v%d, v%d' % (ZL + m, ZL + m, ZL + m + 1))
    a('v_add_f32 v%d, v%d, v%d' % (ZL, ZL, ZL + 2))
    a('v_add_f32 v%d, v%d, v%d' % (ZL + 4, ZL + 4, ZL + 6))
    a('v_add_f32 v%d, v%d, v%d' % (ZL, ZL, ZL + 4))
    a('v_cvt_pk_bf16_f32 v%d, v%d, v%d' % (ZL, ZL, ZL))
    a('s_lshl_b32 s5, %s, 7' % S_WN)
    a('s_add_u32 s5, s5, 8192')
    a('v_lshl_add_u32 v%d, v%d, 1, s5' % (T1, V_LANE))
    a('ds_write_b16 v%d, v%d' % (T1, ZL))
    a('v_lshl_add_u32 v%d, v%d, 3, s5' % (T1, V_HH))
    a('s_waitcnt lgkmcnt(0)')
    a('s_barrier')
    KF = 144
    ZF = 160
    for f in range(4):
        a('ds_read_b128 %s, v%d offset:%d' % (vr(KF + 4 * f, 4), T0, f * 1024))
    for f in range(4):
        a('ds_read_b64 %s, v%d offset:%d' % (vr(ZF + 4 * f, 2), T1, f * 32))
        a('ds_read_b64 %s, v%d offset:%d' % (vr(ZF + 4 * f + 2, 2), T1, f * 32 + 16))
    srd(a, 60, 'ws', 4 << 20, WS_O)
    a('s_lshl_b32 s5, %s, 8' % S_MT)
    a('s_lshl_b32 s6, %s, 6' % S_WM)
    a('s_add_u32 s5, s5, s6')
    a('v_add_u32 v%d, s5, v%d' % (V_O, V_L31))
    a('v_lshlrev_b32 v%d, 11, v%d' % (V_O, V_O))
    a('v_lshl_add_u32 v%d, v%d, 4, v%d' % (V_O, V_HH, V_O))
    a('s_lshl_b32 s5, %s, 6' % S_HD)
    a('s_add_u32 s6, s5, 0x10000')
    a('s_waitcnt lgkmcnt(0)')
    NUM = 176
    DEN = 208
    for tm in range(2):
        for f in range(4):
            b = PQ + 16 * tm + 4 * f
            a('v_mfma_f32_32x32x16_bf16 %s, %s, %s, %s' % (vr(NUM + 16 * tm, 16), vr(KF + 4 * f, 4), vr(b, 4),
                                                           '0' if f == 0 else vr(NUM + 16 * tm, 16)))
            a('v_mfma_f32_32x32x16_bf16 %s, %s, %s, %s' % (vr(DEN + 16 * tm, 16), vr(ZF + 4 * f, 4), vr(b, 4),
                                                           '0' if f == 0 else vr(DEN + 16 * tm, 16)))
    for tm in range(2):
        d = DEN + 16 * tm
        n = NUM + 16 * tm
        a('v_add_f32 v%d, 0x358637bd, v%d' % (d, d))
        a('v_rcp_f32 v%d, v%d' % (d, d))
        for k in range(16):
            a('v_mul_f32 v%d, v%d, v%d' % (n + k, n + k, d))
        o = d + 4
        for k in range(8):
            a('v_cvt_pk_bf16_f32 v%d, v%d, v%d' % (o + k, n + 2 * k, n + 2 * k + 1))
        for p in range(2):
            a('v_permlane32_swap_b32 v%d, v%d' % (o + 4 * p, o + 4 * p + 2))
            a('v_permlane32_swap_b32 v%d, v%d' % (o + 4 * p + 1, o + 4 * p + 3))
            a('buffer_store_dwordx4 %s, v%d, s[60:63], %s offen offset:%d' %
              (vr(o + 4 * p, 4), V_O, 's5' if tm == 0 else 's6', p * 32))
    stamp(a, 6)
    stamp_flush(a, 7, 0)
    a('s_endpgm')


def cmul(a, dr, di, ar, ai, br, bi, t):
    a('v_mul_f32 v%d, v%d, v%d' % (t, ai, bi))
    a('v_mul_f32 v%d, v%d, v%d' % (t + 1, ar, bi))
    a('v_fma_f32 v%d, v%d, v%d, -v%d' % (t, ar, br, t))
    a('v_fma_f32 v%d, v%d, v%d, v%d' % (di, ai, br, t + 1))
    a('v_mov_b32 v%d, v%d' % (dr, t))


def cfma(a, hr, hi, lr, li, ur, ui, t):
    a('v_fma_f32 v%d, -v%d, v%d, v%d' % (t, li, hi, ur))
    a('v_fma_f32 v%d, v%d, v%d, v%d' % (t + 1, li, hr, ui))
    a('v_fma_f32 v%d, v%d, v%d, v%d' % (hr, lr, hr, t))
    a('v_fma_f32 v%d, v%d, v%d, v%d' % (hi, lr, hi, t + 1))


def gen_B(a, VA):
    a.comment('==== B: input projection gemm')
    VB = [12, 13, 14, 15]
    VDA = [16, 17, 18, 19]
    VDB = 20
    LR, LI, CR, CI, L32R, L32I, L256R, L256I = 21, 22, 23, 24, 25, 26, 27, 28
    V_P2, V_OFF, V_BIT, V_SEL, V_H, V_Q = 29, 30, 31, 32, 33, 34
    TT = 36
    ACC = 48
    FR = 112
    NB, ST = 3, 49152
    srd(a, 48, 'Bx', 4 << 20)
    srd(a, 52, 'Bre', 2 << 20)
    srd(a, 56, 'Bim', 2 << 20)
    a('s_lshl_b32 s5, %s, 6' % S_NT)
    a('s_lshl_b32 s6, %s, 5' % S_WN)
    a('s_add_u32 s5, s5, s6')
    a('v_add_u32 v%d, s5, v%d' % (V_P2, V_L31))
    a('v_lshlrev_b32 v%d, 1, v%d' % (T0, V_P2))
    a('global_load_ushort v%d, v%d, s[26:27]' % (TT, T0))
    a('global_load_ushort v%d, v%d, s[28:29]' % (TT + 1, T0))
    a('global_load_ushort v%d, v%d, s[38:39]' % (TT + 2, T0))
    a('s_lshl_b32 s5, %s, 8' % S_MT)
    a('s_mov_b32 s7, s5')
    x_dma_voffs(a, VDA, 's7', True)
    a('s_lshl_b32 s5, %s, 6' % S_NT)
    a('s_lshl_b32 s6, %s, 3' % S_WAVE)
    a('s_add_u32 s5, s5, s6')
    a('v_lshrrev_b32 v%d, 3, v%d' % (T0, V_LANE))
    a('v_add_u32 v%d, s5, v%d' % (T0, T0))
    a('v_lshlrev_b32 v%d, 11, v%d' % (T0, T0))
    a('s_lshl_b32 s5, %s, 2' % S_WN)
    a('v_xor_b32 v%d, s5, v%d' % (T1, T1))
    a('v_lshl_add_u32 v%d, v%d, 4, v%d' % (VDB, T1, T0))
    a('s_lshl_b32 %s, %s, 10' % (S_MB, S_WAVE))
    a('s_add_u32 %s, %s, 32768' % (S_MB, S_MB))
    a('s_add_u32 %s, %s, 8192' % (S_MB2, S_MB))
    a('s_lshl_b32 %s, %s, 12' % (S_TMP, S_WN))
    kc_read_addrs(a, VB, V_L31, V_HH, S_TMP, 32768, T0, T1)

    def mid():
        a('s_waitcnt vmcnt(%d)' % (NB * 6))
        lre, lim, dt = TT, TT + 1, TT + 2
        a('v_lshlrev_b32 v%d, 16, v%d' % (lre, lre))
        a('v_lshlrev_b32 v%d, 16, v%d' % (lim, lim))
        a('v_lshlrev_b32 v%d, 16, v%d' % (dt, dt))
        a('v_mul_f32 v%d, %s, v%d' % (dt, S_L2E, dt))
        a('v_exp_f32 v%d, v%d' % (dt, dt))
        a('v_cvt_pk_bf16_f32 v%d, v%d, v%d' % (dt, dt, dt))
        a('v_lshlrev_b32 v%d, 16, v%d' % (dt, dt))
        a('v_mul_f32 v%d, v%d, v%d' % (TT + 3, dt, lre))
        a('v_mul_f32 v%d, v%d, v%d' % (TT + 4, dt, lim))
        a('v_mul_f32 v%d, %s, v%d' % (TT + 3, S_L2E, TT + 3))
        a('v_exp_f32 v%d, v%d' % (TT + 3, TT + 3))
        a('v_mul_f32 v%d, 0.15915494, v%d' % (TT + 4, TT + 4))
        a('v_rndne_f32 v%d, v%d' % (TT + 5, TT + 4))
        a('v_sub_f32 v%d, v%d, v%d' % (TT + 4, TT + 4, TT + 5))
        a('v_cos_f32 v%d, v%d' % (LR, TT + 4))
        a('v_sin_f32 v%d, v%d' % (LI, TT + 4))
        a('v_mul_f32 v%d, v%d, v%d' % (LR, LR, TT + 3))
        a('v_mul_f32 v%d, v%d, v%d' % (LI, LI, TT + 3))
        a('v_add_f32 v%d, -1.0, v%d' % (TT + 5, LR))
        a('v_mul_f32 v%d, v%d, v%d' % (TT + 6, lre, lre))
        a('v_fma_f32 v%d, v%d, v%d, v%d' % (TT + 6, lim, lim, TT + 6))
        a('v_rcp_f32 v%d, v%d' % (TT + 6, TT + 6))
        a('v_mul_f32 v%d, v%d, v%d' % (CR, TT + 5, lre))
        a('v_fma_f32 v%d, v%d, v%d, v%d' % (CR, LI, lim, CR))
        a('v_mul_f32 v%d, v%d, v%d' % (CI, TT + 5, lim))
        a('v_fma_f32 v%d, v%d, v%d, -v%d' % (CI, LI, lre, CI))
        a('v_add_f32 v%d, v%d, v%d' % (TT + 6, TT + 6, TT + 6))
        a('v_mul_f32 v%d, v%d, v%d' % (CR, CR, TT + 6))
        a('v_mul_f32 v%d, v%d, v%d' % (CI, CI, TT + 6))
        a('v_mov_b32 v%d, v%d' % (L32R, LR))
        a('v_mov_b32 v%d, v%d' % (L32I, LI))
        for _ in range(5):
            cmul(a, L32R, L32I, L32R, L32I, L32R, L32I, TT + 7)
        a('v_mov_b32 v%d, v%d' % (L256R, L32R))
        a('v_mov_b32 v%d, v%d' % (L256I, L32I))
        for _ in range(3):
            cmul(a, L256R, L256I, L256R, L256I, L256R, L256I, TT + 7)
        a('s_lshl_b32 s5, %s, 2' % S_NT)
        a('s_add_u32 s5, s5, 64')
        a('v_mov_b32 v%d, s5' % V_OFF)
        a('s_lshl_b32 s5, 1, %s' % S_MT)
        a('v_mov_b32 v%d, s5' % V_BIT)
        a('v_and_b32 v%d, 1, v%d' % (T0, V_LANE))
        a('v_mov_b32 v%d, 0x05040100' % V_SEL)
        a('v_mov_b32 v%d, 0x03020706' % T1)
        a('v_cmp_eq_u32 vcc, 1, v%d' % T0)
        a('v_cndmask_b32 v%d, v%d, v%d, vcc' % (V_SEL, V_SEL, T1))
        a('s_lshl_b32 s5, %s, 8' % S_MT)
        a('s_lshl_b32 s6, %s, 6' % S_WM)
        a('s_add_u32 s5, s5, s6')
        a('v_lshl_add_u32 v%d, v%d, 5, s5' % (V_H, V_HH))
        a('v_lshlrev_b32 v%d, 12, v%d' % (V_H, V_H))
        a('v_and_b32 v%d, -2, v%d' % (T1, V_P2))
        a('v_lshl_add_u32 v%d, v%d, 1, v%d' % (V_H, T1, V_H))
        a('v_lshl_add_u32 v%d, v%d, 11, v%d' % (V_H, T0, V_H))
        a('s_lshl_b32 s5, %s, 1' % S_WM)
        a('v_add_u32 v%d, s5, v%d' % (V_Q, V_HH))

    def acc(tm, tn):
        return vr(ACC + 32 * tm + 16 * tn, 16)

    g = Gemm(a, pfx='k1b', TM=2, TN=2, ST=ST, NB=NB, PD=1, NS=2, FR=FR, vA=VA, offA=[0, 4096],
             bmode='kc', vB=VB, offB=[0, 8192], acc=acc, swap=lambda tm, tn: False,
             dma=[(S_MA, [(VDA[j], 's[48:51]', S_OA, j * 1024) for j in range(4)]),
                  (S_MB, [(VDB, 's[52:55]', S_OB, 0)]),
                  (S_MB2, [(VDB, 's[56:59]', S_OB, 0)])],
             adv=['s_add_u32 %s, %s, 128' % (S_OA, S_OA), 's_add_u32 %s, %s, 128' % (S_OB, S_OB)],
             s_cnt=S_CNT, s_wroff=S_WROFF, s_d0=S_D0, s_d1=S_D1, s_tmp=S_TMP, s_st=S_ST, mid=mid)
    stamp(a, 1)
    g.run(16)
    stamp(a, 2)

    def ure(i):
        return ACC + 32 * (i >> 4) + (i & 15)

    def uim(i):
        return ure(i) + 16

    ER, EI = 112, 113
    t = 114
    for i in range(32):
        r, m = ure(i), uim(i)
        a('v_mul_f32 v%d, v%d, v%d' % (t, CI, m))
        a('v_mul_f32 v%d, v%d, v%d' % (t + 1, CI, r))
        a('v_fma_f32 v%d, v%d, v%d, -v%d' % (r, CR, r, t))
        a('v_fma_f32 v%d, v%d, v%d, v%d' % (m, CR, m, t + 1))
        if i == 0:
            a('v_mov_b32 v%d, v%d' % (ER, r))
            a('v_mov_b32 v%d, v%d' % (EI, m))
        else:
            cfma(a, ER, EI, LR, LI, r, m, t + 2)
    a('s_barrier')
    a('s_lshl_b32 s5, %s, 8' % S_WN)
    a('v_lshl_add_u32 v%d, v%d, 3, s5' % (T0, V_L31))
    a('v_lshl_add_u32 v%d, v%d, 9, v%d' % (T1, V_Q, T0))
    a('ds_write_b64 v%d, %s' % (T1, vr(ER, 2)))
    a('s_waitcnt lgkmcnt(0)')
    a('s_barrier')
    E = 120
    for q in range(8):
        a('ds_read_b64 %s, v%d offset:%d' % (vr(E + 2 * q, 2), T0, q * 512))
    PR, PI, WR, WI, SPR, SPI, SWR, SWI = 136, 137, 138, 139, 140, 141, 142, 143
    a('v_mov_b32 v%d, 0' % PR)
    a('v_mov_b32 v%d, 0' % PI)
    a('v_mov_b32 v%d, 1.0' % WR)
    a('v_mov_b32 v%d, 0' % WI)
    a('v_mov_b32 v%d, 0' % SPR)
    a('v_mov_b32 v%d, 0' % SPI)
    a('v_mov_b32 v%d, 1.0' % SWR)
    a('v_mov_b32 v%d, 0' % SWI)
    a('s_waitcnt lgkmcnt(0)')
    for q in range(8):
        cfma(a, PR, PI, L32R, L32I, E + 2 * q, E + 2 * q + 1, t)
        if q < 7:
            cmul(a, WR, WI, WR, WI, L32R, L32I, t + 2)
            a('v_cmp_eq_u32 vcc, %d, v%d' % (q + 1, V_Q))
            a('v_cndmask_b32 v%d, v%d, v%d, vcc' % (SPR, SPR, PR))
            a('v_cndmask_b32 v%d, v%d, v%d, vcc' % (SPI, SPI, PI))
            a('v_cndmask_b32 v%d, v%d, v%d, vcc' % (SWR, SWR, WR))
            a('v_cndmask_b32 v%d, v%d, v%d, vcc' % (SWI, SWI, WI))
    srd(a, 60, 'ws', 65536, WS_AGG)
    a('v_lshlrev_b32 v%d, 3, v%d' % (T2, V_P2))
    a('s_lshl_b32 s5, %s, 13' % S_MT)
    a('s_cmp_lg_u32 %s, 0' % S_WM)
    a('s_cbranch_scc1 k1b_nopub')
    a('buffer_store_dwordx2 %s, v%d, s[60:63], s5 offen sc1' % (vr(PR, 2), T2))
    a('s_waitcnt vmcnt(0)')
    a.label('k1b_nopub')
    a('s_barrier')
    a('s_cmp_lg_u32 %s, 0' % S_WAVE)
    a('s_cbranch_scc1 k1b_nosig')
    a('s_mov_b64 exec, 1')
    a('global_atomic_or v%d, v%d, s[44:45] sc1' % (V_OFF, V_BIT))
    a('s_mov_b64 exec, -1')
    a.label('k1b_nosig')
    stamp(a, 3)
    a('s_lshl_b32 s7, 1, %s' % S_MT)
    a('s_sub_u32 s7, s7, 1')
    stamp(a, 4)
    poll(a, 'k1b_poll', V_OFF, T0, 's7', 'and')
    stamp(a, 5)
    for m in range(7):
        a('buffer_load_dwordx2 %s, v%d, s[60:63], %s offen sc1' % (vr(E + 2 * m, 2), T2, '0' if m == 0 else 's6'))
        a('s_mov_b32 s6, 0x%x' % ((m + 1) * 8192))
    HR, HI = 112, 113
    a('v_mov_b32 v%d, 0' % HR)
    a('v_mov_b32 v%d, 0' % HI)
    a('s_waitcnt vmcnt(0)')
    for m in range(7):
        a('s_cmp_le_u32 %s, %d' % (S_MT, m))
        a('s_cbranch_scc1 k1b_hdone')
        cfma(a, HR, HI, L256R, L256I, E + 2 * m, E + 2 * m + 1, t)
    a.label('k1b_hdone')
    cfma(a, HR, HI, SWR, SWI, SPR, SPI, t)
    srd(a, 60, 'ws', 8 << 20, WS_H)
    for i in range(32):
        r, m = ure(i), uim(i)
        cfma(a, HR, HI, LR, LI, r, m, t)
        w = 120 + (i & 3) * 3
        a('v_cvt_pk_bf16_f32 v%d, v%d, -v%d' % (w, HR, HI))
        a('s_mov_b32 s5, 0x%x' % (i * 4096))
        a('v_mov_b32_dpp v%d, v%d quad_perm:[1,0,3,2] row_mask:0xf bank_mask:0xf' % (w + 1, w))
        a('v_perm_b32 v%d, v%d, v%d, v%d' % (w + 2, w + 1, w, V_SEL))
        a('buffer_store_dword v%d, v%d, s[60:63], s5 offen' % (w + 2, V_H))
    stamp(a, 6)
    stamp_flush(a, 7, 128, 44)
    a('s_endpgm')
```

```python
import sys, os
sys.path.insert(0, os.path.dirname(os.path.abspath(__file__)))
from asmlib import Asm
from gemm import Gemm

NAME = 'concat_heads__linear_kernel_hedgehog__ssm_conv_s5__prompt'

WS_O = 0
WS_H = 4 << 20
WS_KVP = 12 << 20
WS_ZP = 15 << 20
WS_AGG = 16 << 20

P = dict(Ax='s[16:17]', wqkv='s[18:19]', wphi='s[20:21]', wo='s[22:23]', Bx='s[24:25]', Lre='s[26:27]',
         Lim='s[28:29]', Bre='s[30:31]', Bim='s[32:33]', Cre='s[34:35]', Cim='s[36:37]', logdt='s[38:39]',
         Dsk='s[40:41]', out='s[42:43]', dbg='s[44:45]', ws='s[46:47]')
PN = dict(Ax=16, wqkv=18, wphi=20, wo=22, Bx=24, Lre=26, Lim=28, Bre=30, Bim=32, Cre=34, Cim=36, logdt=38,
          Dsk=40, out=42, dbg=44, ws=46)


def srd(a, d, ptr, nbytes, off=0):
    p = PN[ptr]
    if off:
        a('s_add_u32 s%d, s%d, 0x%x' % (d, p, off))
        a('s_addc_u32 s%d, s%d, 0' % (d + 1, p + 1))
        a('s_and_b32 s%d, s%d, 0xffff' % (d + 1, d + 1))
    else:
        a('s_mov_b32 s%d, s%d' % (d, p))
        a('s_and_b32 s%d, s%d, 0xffff' % (d + 1, p + 1))
    a('s_mov_b32 s%d, 0x%x' % (d + 2, nbytes))
    a('s_mov_b32 s%d, 0x00020000' % (d + 3))


STAMP = os.environ.get('STAMP')
def stamp(a, i):
    if not STAMP:
        return
    a('s_memtime s[%d:%d]' % (80 + 2 * i, 81 + 2 * i))
    if i == 0:
        a('s_memrealtime s[12:13]')


def stamp_flush(a, n, wg=0, base=32):
    if not STAMP:
        return
    a('s_memrealtime s[14:15]')
    a('s_waitcnt lgkmcnt(0)')
    a('s_cmp_lg_u32 s2, %d' % wg)
    a('s_cbranch_scc1 stamp_skip_%d' % len(a.lines))
    lab = 'stamp_skip_%d' % (len(a.lines) - 1)
    srd(a, 96, 'dbg', 256)
    a('v_mov_b32 v1, 0')
    for i in range(n):
        a('v_mov_b32 v2, s%d' % (80 + 2 * i))
        a('buffer_store_dword v2, v1, s[96:99], 0 offen offset:%d' % (4 * i + 4 * base))
    a('v_mov_b32 v2, s12')
    a('buffer_store_dword v2, v1, s[96:99], 0 offen offset:%d' % (4 * base + 32))
    a('v_mov_b32 v2, s14')
    a('buffer_store_dword v2, v1, s[96:99], 0 offen offset:%d' % (4 * base + 36))
    a.label(lab)


def kernel_head(a, name, nwg):
    a.lines.append('.globl %s' % name)
    a.lines.append('.p2align 8')
    a.lines.append('.type %s,@function' % name)
    a.label(name)
    a('s_cmp_ge_u32 s2, %d' % nwg)
    a('s_cbranch_scc1 %s_exit' % name)
    a('s_load_dwordx16 s[16:31], s[0:1], 0')
    a('s_load_dwordx16 s[32:47], s[0:1], 64')
    stamp(a, 0)


def lane_consts(a, v_lane, v_l31, v_hh, s_wave, vtmp):
    a('v_and_b32 v%d, 63, v0' % v_lane)
    a('v_and_b32 v%d, 31, v0' % v_l31)
    a('v_bfe_u32 v%d, v0, 5, 1' % v_hh)
    a('v_lshrrev_b32 v%d, 6, v0' % vtmp)
    a('v_readfirstlane_b32 %s, v%d' % (s_wave, vtmp))


def kc_read_addrs(a, vdst4, v_l31, v_hh, s_rowbase128, tilebase, t0, t1):
    a('v_bfe_u32 v%d, v%d, 1, 3' % (t0, v_l31))
    a('v_lshlrev_b32 v%d, 7, v%d' % (t1, v_l31))
    a('v_add_u32 v%d, %s, v%d' % (t1, s_rowbase128, t1))
    if tilebase:
        a('v_add_u32 v%d, 0x%x, v%d' % (t1, tilebase, t1))
    for j in range(4):
        d = vdst4[j]
        a('v_or_b32 v%d, %d, v%d' % (d, 2 * j, v_hh))
        a('v_xor_b32 v%d, v%d, v%d' % (d, d, t0))
        a('v_lshl_add_u32 v%d, v%d, 4, v%d' % (d, d, t1))


def kn_read_addr(a, vd0, vd1, v_lane, s_base, tilebase, t0, t1):
    a('v_bfe_u32 v%d, v%d, 5, 1' % (t0, v_lane))
    a('v_lshlrev_b32 v%d, 10, v%d' % (vd0, t0))
    a('v_bfe_u32 v%d, v%d, 2, 2' % (t0, v_lane))
    a('v_lshl_add_u32 v%d, v%d, 7, v%d' % (vd0, t0, vd0))
    a('v_bfe_u32 v%d, v%d, 3, 1' % (t0, v_lane))
    a('v_lshl_add_u32 v%d, v%d, 6, v%d' % (vd0, t0, vd0))
    a('v_bfe_u32 v%d, v%d, 4, 1' % (t0, v_lane))
    a('v_lshl_add_u32 v%d, v%d, 5, v%d' % (vd0, t0, vd0))
    a('v_and_b32 v%d, 3, v%d' % (t0, v_lane))
    a('v_lshl_add_u32 v%d, v%d, 3, v%d' % (vd0, t0, vd0))
    if vd1 is not None:
        a('v_xor_b32 v%d, 64, v%d' % (vd1, vd0))
    a('v_add_u32 v%d, %s, v%d' % (vd0, s_base, vd0))
    if tilebase:
        a('v_add_u32 v%d, 0x%x, v%d' % (vd0, tilebase, vd0))
    if vd1 is not None:
        a('v_add_u32 v%d, %s, v%d' % (vd1, s_base, vd1))
        if tilebase:
            a('v_add_u32 v%d, 0x%x, v%d' % (vd1, tilebase, vd1))


def gen_k3(a):
    name = 'k3_kernel'
    kernel_head(a, name, 256)
    V_LANE, V_L31, V_HH, T0, T1, T2 = 1, 2, 3, 4, 5, 6
    VA = [8, 9, 10, 11]
    VB = [12, 13, 14, 15]
    VDA = [16, 17, 18, 19]
    VDB = [20, 21, 22, 23]
    V_OUT, V_X, V_D0, V_D1 = 24, 25, 26, 27
    ACC = 64
    FR = 128
    XR = 192
    S_WAVE, S_CNT, S_WROFF, S_D0, S_D1, S_TMP = 's64', 's65', 's66', 's67', 's68', 's69'
    S_OA, S_OB, S_MA, S_MB, S_MT, S_NT, S_WM, S_WN, S_T2 = 's70', 's71', 's72', 's73', 's74', 's75', 's76', 's77', 's78'
    NB, ST = 4, 32768
    lane_consts(a, V_LANE, V_L31, V_HH, S_WAVE, T0)
    a('s_and_b32 s3, s2, 7')
    a('s_lshr_b32 s4, s2, 3')
    a('s_and_b32 s5, s4, 3')
    a('s_and_b32 s6, s3, 3')
    a('s_lshl_b32 s6, s6, 2')
    a('s_add_u32 %s, s6, s5' % S_MT)
    a('s_bfe_u32 s5, s4, 0x20002')
    a('s_lshr_b32 s6, s3, 2')
    a('s_lshl_b32 s6, s6, 2')
    a('s_add_u32 %s, s6, s5' % S_NT)
    a('s_lshr_b32 %s, %s, 1' % (S_WM, S_WAVE))
    a('s_and_b32 %s, %s, 1' % (S_WN, S_WAVE))
    a('s_lshl_b32 %s, %s, 12' % (S_MA, S_WAVE))
    a('s_add_u32 %s, %s, 16384' % (S_MB, S_MA))
    a('s_mov_b32 %s, 0' % S_OA)
    a('s_mov_b32 %s, 0' % S_OB)
    if os.environ.get('EXP_STAG'):
        a('s_lshr_b32 s5, s2, 3')
        a('s_and_b32 s5, s5, 15')
        a('s_lshl_b32 %s, s5, 7' % S_OA)
        a('s_lshl_b32 %s, s5, 7' % S_OB)
    if os.environ.get('EXP_ONLYB'):
        a('s_bitcmp1_b32 s4, 4')
        a('s_cbranch_scc1 k3_kernel_exit')
    a('s_lshl_b32 %s, %s, 13' % (S_TMP, S_WM))
    kc_read_addrs(a, VA, V_L31, V_HH, S_TMP, 0, T0, T1)
    a('s_lshl_b32 s5, %s, 7' % S_MT)
    a('s_lshl_b32 s6, %s, 6' % S_WM)
    a('s_add_u32 s5, s5, s6')
    a('s_lshl_b32 s6, %s, 7' % S_NT)
    a('s_lshl_b32 s7, %s, 6' % S_WN)
    a('s_add_u32 s6, s6, s7')
    a('v_lshl_add_u32 v%d, v%d, 2, s5' % (T0, V_HH))
    a('v_add_u32 v%d, s6, v%d' % (T1, V_L31))
    a('v_lshlrev_b32 v%d, 13, v%d' % (V_OUT, T0))
    a('v_lshl_add_u32 v%d, v%d, 2, v%d' % (V_OUT, T1, V_OUT))
    a('v_lshlrev_b32 v%d, 11, v%d' % (V_X, T0))
    a('v_lshl_add_u32 v%d, v%d, 1, v%d' % (V_X, T1, V_X))
    a('v_lshlrev_b32 v%d, 1, v%d' % (T2, T1))
    a('s_waitcnt lgkmcnt(0)')
    srd(a, 56, 'out', 2048 * 2048 * 4)
    a('s_bitcmp1_b32 s4, 4')
    a('s_cbranch_scc1 k3_outa')

    def dma_kc_voffs(vd, s_row0, pitch_log2):
        a('s_lshl_b32 %s, %s, 5' % (S_T2, S_WAVE))
        a('s_add_u32 %s, %s, %s' % (S_T2, S_T2, s_row0))
        a('v_lshrrev_b32 v%d, 3, v%d' % (T0, V_LANE))
        a('v_add_u32 v%d, %s, v%d' % (T0, S_T2, T0))
        if os.environ.get('EXP_PITCH'):
            a('v_mul_u32_u24 v%d, %d, v%d' % (T0, (1 << pitch_log2) - 128 * int(os.environ['EXP_PITCH']), T0))
        else:
            a('v_lshlrev_b32 v%d, %d, v%d' % (T0, pitch_log2, T0))
        a('v_lshrrev_b32 v%d, 4, v%d' % (T1, V_LANE))
        a('v_and_b32 v%d, 7, v%d' % (T2, V_LANE))
        a('v_xor_b32 v%d, v%d, v%d' % (T1, T1, T2))
        for j in range(4):
            a('v_xor_b32 v%d, %d, v%d' % (T2, (j & 1) * 4, T1))
            a('v_lshl_add_u32 v%d, v%d, 4, v%d' % (vd[j], T2, T0))
            c = (8 * j << pitch_log2) - j * 1024
            if os.environ.get('EXP_PITCH'):
                c = 8 * j * ((1 << pitch_log2) - 128 * int(os.environ['EXP_PITCH'])) - j * 1024
            if c:
                a('v_add_u32 v%d, 0x%x, v%d' % (vd[j], c, vd[j]))

    common = dict(TM=2, TN=2, ST=ST, NB=NB, PD=2, NS=4, FR=FR, vA=VA, offA=[0, 4096],
                  acc=lambda tm, tn: 'v[%d:%d]' % (ACC + 16 * (2 * tm + tn), ACC + 16 * (2 * tm + tn) + 15),
                  swap=lambda tm, tn: False,
                  s_cnt=S_CNT, s_wroff=S_WROFF, s_d0=S_D0, s_d1=S_D1, s_tmp=S_TMP, s_st='s79')

    srd(a, 60, 'Dsk', 2048)
    a('buffer_load_ushort v%d, v%d, s[60:63], 0 offen' % (V_D0, T2))
    a('buffer_load_ushort v%d, v%d, s[60:63], 0 offen offset:64' % (V_D1, T2))
    srd(a, 48, 'ws', 8 << 20, WS_H)
    srd(a, 52, 'Cre', 2 << 20)
    a('s_waitcnt vmcnt(0)')
    srd(a, 60, 'Bx', 4 << 20)
    a('s_lshl_b32 s5, %s, 7' % S_MT)
    dma_kc_voffs(VDA, 's5', 12)
    a('s_lshl_b32 s5, %s, 7' % S_NT)
    dma_kc_voffs(VDB, 's5', 11)
    a('s_lshl_b32 %s, %s, 13' % (S_TMP, S_WN))
    kc_read_addrs(a, VB, V_L31, V_HH, S_TMP, 16384, T0, T1)
    a('v_lshlrev_b32 v%d, 16, v%d' % (V_D0, V_D0))
    a('v_lshlrev_b32 v%d, 16, v%d' % (V_D1, V_D1))
    g = Gemm(a, pfx='k3b', bmode='kc', vB=VB, offB=[0, 4096],
             dma=[(S_MA, [(VDA[j], 's[48:51]', S_OA, j * 1024) for j in range(4)]),
                  (S_MB, [(VDB[j], 's[52:55]', S_OB, j * 1024) for j in range(4)])],
             adv=['s_add_u32 %s, %s, 128' % (S_OA, S_OA), 's_add_u32 %s, %s, 128' % (S_OB, S_OB)], **common)
    sw = ['s_mov_b32 s52, s36', 's_and_b32 s53, s37, 0xffff', 's_mov_b32 %s, 0' % S_OB]
    xl = []
    for tm in range(2):
        for r in range(16):
            row = 32 * tm + 8 * (r >> 2) + (r & 3)
            grp = ['s_mov_b32 %s, 0x%x' % (S_T2, row * 2048)]
            for tn in range(2):
                grp.append('buffer_load_ushort v%d, v%d, s[60:63], %s offen offset:%d' %
                           (XR + 16 * (2 * tm + tn) + r, V_X, S_T2, tn * 64))
            xl.append(grp)
    ex = {NB - 1: {0: xl[0:8], 1: xl[8:16], 2: xl[16:24], 3: xl[24:32]}}
    stamp(a, 1)
    g.run(32, segments=[(16 - NB, []), (16, sw)], tail_extra=ex)
    stamp(a, 2)
    a('v_add_u32 v%d, 0x1000, v%d' % (V_OUT, V_OUT))
    a('s_waitcnt vmcnt(0)')
    for tm in range(2):
        for r in range(16):
            row = 32 * tm + 8 * (r >> 2) + (r & 3)
            a('s_mov_b32 %s, 0x%x' % (S_T2, row * 8192))
            for tn in range(2):
                x = XR + 16 * (2 * tm + tn) + r
                c = ACC + 16 * (2 * tm + tn) + r
                a('v_lshlrev_b32 v%d, 16, v%d' % (x, x))
                a('v_fma_f32 v%d, v%d, v%d, v%d' % (x, x, V_D0 if tn == 0 else V_D1, c))
                a('buffer_store_dword v%d, v%d, s[56:59], %s offen offset:%d' % (x, V_OUT, S_T2, tn * 128))
    stamp(a, 3)
    if STAMP:
        a('s_waitcnt vmcnt(0)')
    stamp(a, 4)
    stamp_flush(a, 5)
    a('s_endpgm')

    a.label('k3_outa')
    srd(a, 48, 'ws', 4 << 20, WS_O)
    srd(a, 52, 'wo', 2 << 20)
    a('s_lshl_b32 s5, %s, 7' % S_MT)
    dma_kc_voffs(VDA, 's5', 11)
    a('s_lshl_b32 s5, %s, 5' % S_WN)
    a('v_lshrrev_b32 v%d, 3, v%d' % (T0, V_LANE))
    a('v_add_u32 v%d, s5, v%d' % (T0, T0))
    a('v_lshlrev_b32 v%d, 11, v%d' % (T0, T0))
    a('s_lshl_b32 s5, %s, 8' % S_NT)
    a('s_lshl_b32 s6, %s, 7' % S_WM)
    a('s_add_u32 s5, s5, s6')
    a('v_add_u32 v%d, s5, v%d' % (T0, T0))
    a('v_bfe_u32 v%d, v%d, 4, 1' % (T1, V_LANE))
    a('v_lshlrev_b32 v%d, 2, v%d' % (T1, T1))
    a('v_and_b32 v%d, 7, v%d' % (T2, V_LANE))
    a('v_xor_b32 v%d, v%d, v%d' % (T1, T1, T2))
    a('v_lshl_add_u32 v%d, v%d, 4, v%d' % (T0, T1, T0))
    for j in range(4):
        c = 8 * j * 2048 - j * 1024
        a('v_add_u32 v%d, 0x%x, v%d' % (VDB[j], c, T0))
    a('s_lshl_b32 %s, %s, 13' % (S_TMP, S_WN))
    kn_read_addr(a, VB[0], VB[1], V_LANE, S_TMP, 16384, T0, T1)
    g = Gemm(a, pfx='k3a', bmode='kn', vB=VB[:2], offB=[(0, 0), (1, 0)],
             dma=[(S_MA, [(VDA[j], 's[48:51]', S_OA, j * 1024) for j in range(4)]),
                  (S_MB, [(VDB[j], 's[52:55]', S_OB, j * 1024) for j in range(4)])],
             adv=['s_add_u32 %s, %s, 128' % (S_OA, S_OA), 's_add_u32 %s, %s, 0x20000' % (S_OB, S_OB)], **common)
    g.run(16)
    for tm in range(2):
        for r in range(0, 16, 2):
            for tn in range(2):
                c = ACC + 16 * (2 * tm + tn) + r
                x = XR + 16 * (2 * tm + tn) + r
                a('v_cvt_pk_bf16_f32 v%d, v%d, v%d' % (x, c, c + 1))
                a('v_and_b32 v%d, 0xffff0000, v%d' % (x + 1, x))
                a('v_lshlrev_b32 v%d, 16, v%d' % (x, x))
        for r in range(16):
            row = 32 * tm + 8 * (r >> 2) + (r & 3)
            a('s_mov_b32 %s, 0x%x' % (S_T2, row * 8192))
            for tn in range(2):
                x = XR + 16 * (2 * tm + tn) + r
                a('buffer_store_dword v%d, v%d, s[56:59], %s offen offset:%d' % (x, V_OUT, S_T2, tn * 128))
    a.label(name + '_exit')
    a('s_endpgm')


def descriptor(name, vgpr, accum, sgpr=100):
    return f'''.amdhsa_kernel {name}
  .amdhsa_next_free_vgpr {vgpr}
  .amdhsa_next_free_sgpr {sgpr}
  .amdhsa_accum_offset {accum}
  .amdhsa_group_segment_fixed_size 0
  .amdhsa_kernarg_size 128
  .amdhsa_user_sgpr_count 2
  .amdhsa_user_sgpr_kernarg_segment_ptr 1
  .amdhsa_system_sgpr_workgroup_id_x 1
.end_amdhsa_kernel
'''


def main():
    which = sys.argv[1] if len(sys.argv) > 1 else 'all'
    outp = sys.argv[2] if len(sys.argv) > 2 else 'cdna_kernels/%s.s' % NAME
    ref = open('cdna_kernels/%s.s.ref' % NAME).read().split('\n')
    head = [l for l in ref if l.startswith(';') and '@launch' not in l and 'Override launch' not in l
            and 'grid=ceil' not in l]
    launches = []
    a = Asm()
    descs = []
    if which in ('all', 'k1'):
        import k1
        k1.gen_k1(a)
        launches.append('; @launch kernel=k1_kernel grid=(256,1,1) block=(512,1,1) lds=%d' % k1.LDS_BYTES)
        descs.append(descriptor('k1_kernel', 256, 256))
    if which in ('all', 'k3'):
        gen_k3(a)
        launches.append('; @launch kernel=k3_kernel grid=(256,1,1) block=(256,1,1) lds=131072')
        descs.append(descriptor('k3_kernel', 256, 256))
    txt = '\n'.join(head) + '\n' + '\n'.join(launches) + '\n'
    txt += '.amdgcn_target "amdgcn-amd-amdhsa--gfx950"\n.text\n'
    if os.environ.get('NO_STORE'):
        a.lines = [l for l in a.lines if not (l.startswith('buffer_store') and 's[96:99]' not in l)]
    if os.environ.get('NO_XLOAD'):
        a.lines = [l for l in a.lines if not l.startswith('buffer_load_ushort')]
    txt += a.finish()
    txt += '.section .rodata,"a"\n'
    for d in descs:
        txt += '.p2align 6\n' + d
    open(outp, 'w').write(txt)
    print('wrote', outp, len(txt), 'bytes')


if __name__ == '__main__':
    main()
```

```python
from asmlib import interleave
import os
NO_DMA = os.environ.get('NO_DMA'); NO_MFMA = os.environ.get('NO_MFMA'); NO_READS = os.environ.get('NO_READS')


class Ring:
    def __init__(self, ST, NB, sregs, s_tmp):
        self.ST, self.NB, self.d, self.s_tmp = ST, NB, sregs, s_tmp
        assert len(sregs) >= NB

    def init(self):
        out = []
        for i in range(self.NB):
            v = self.ST if i < self.NB - 1 else -(self.NB - 1) * self.ST
            out.append('s_mov_b32 %s, 0x%x' % (self.d[i], v & 0xffffffff))
        return out

    def rotate(self):
        if self.NB == 2:
            return ['s_sub_u32 %s, 0, %s' % (self.d[0], self.d[0]), 's_sub_u32 %s, 0, %s' % (self.d[1], self.d[1])]
        out = ['s_mov_b32 %s, %s' % (self.s_tmp, self.d[0])]
        for i in range(self.NB - 1):
            out.append('s_mov_b32 %s, %s' % (self.d[i], self.d[i + 1]))
        out.append('s_mov_b32 %s, %s' % (self.d[self.NB - 1], self.s_tmp))
        return out


class Stream:
    def __init__(self, ring, groups, adv):
        self.ring, self.groups, self.adv = ring, groups, adv
        self.n = sum(len(g[1]) for g in groups)

    def batch(self, delta):
        out = []
        for (sm0, lst) in self.groups:
            for i, (vo, srd, so, io) in enumerate(lst):
                ins = 'buffer_load_dwordx4 v%d, %s, %s offen offset:%d lds' % (vo, srd, so, io)
                if NO_DMA:
                    ins = 's_nop 0'
                if i == 0:
                    out.append(['s_mov_b32 m0, %s' % sm0, 's_add_u32 %s, %s, %s' % (sm0, sm0, delta), ins])
                else:
                    out.append([ins])
        for x in self.adv:
            out[-1].extend(x if isinstance(x, (list, tuple)) else [x])
        return out


class Gemm:
    def __init__(self, a, **cfg):
        self.a = a
        self.mid = None
        self.streams = []
        self.__dict__.update(cfg)
        self.SETSZ = 4 * (self.TM + self.TN)
        self.R = self.TM + (self.TN if self.bmode == 'kc' else 2 * self.TN)
        self.nloop = 0
        self.rings = [self.ringA] + ([self.ringB] if self.ringB is not self.ringA else [])
        self.NP = int(os.environ.get('NP' + self.pfx[:2], cfg.get('NP', 4)))

    def fragA(self, st, tm):
        return self.FR + st * self.SETSZ + 4 * tm

    def fragB(self, st, tn):
        return self.FR + st * self.SETSZ + 4 * self.TM + 4 * tn

    def reads(self, j, st):
        ra = []
        for tm in range(self.TM):
            b = self.fragA(st, tm)
            ra.append('ds_read_b128 v[%d:%d], v%d offset:%d' % (b, b + 3, self.vA[j], self.offA[tm]))
        rb = []
        for tn in range(self.TN):
            b = self.fragB(st, tn)
            if self.bmode == 'kc':
                rb.append('ds_read_b128 v[%d:%d], v%d offset:%d' % (b, b + 3, self.vB[j], self.offB[tn]))
            else:
                ri, off = self.offB[tn]
                for u in range(2):
                    rb.append('ds_read_b64_tr_b16 v[%d:%d], v%d offset:%d' %
                              (b + 2 * u, b + 2 * u + 1, self.vB[ri], off + j * 2048 + u * 512))
        out = [ra[0]] + rb + ra[1:]
        if NO_READS:
            return ['s_nop 0'] * len(out)
        return out

    def mfmas(self, st, zero=False):
        out = []
        for tm in range(self.TM):
            for tn in range(self.TN):
                fa = self.fragA(st, tm); fb = self.fragB(st, tn)
                A = 'v[%d:%d]' % (fa, fa + 3); B = 'v[%d:%d]' % (fb, fb + 3)
                if self.swap(tm, tn):
                    A, B = B, A
                acc = self.acc(tm, tn)
                if NO_MFMA and not zero:
                    out.append('s_nop 0')
                else:
                    out.append('v_mfma_f32_32x32x16_bf16 %s, %s, %s, %s' % (acc, A, B, '0' if zero else acc))
        return out

    def emit(self, lst):
        for f in lst:
            if isinstance(f, (list, tuple)):
                for x in f:
                    self.a(x)
            else:
                self.a(f)

    def active(self, sig):
        return [i for i, s in enumerate(self.streams) if sig + s.ring.NB < self.KS]

    def parts(self, act):
        if not act:
            return []
        items = []
        for i in act:
            n = self.streams[i].n
            items += [(i, k) for k in range(n)]
        NP = self.NP
        n = len(items)
        cuts = [(p * n) // NP for p in range(NP + 1)]
        out = []
        for p in range(NP):
            late = p >= self.PD
            lst = []
            for (i, k) in items[cuts[p]:cuts[p + 1]]:
                st = self.streams[i]
                d = st.ring.d[st.ring.NB - 1] if late else st.ring.d[0]
                lst.append(st.batch(d)[k])
            out.append(lst)
        return out

    def simulate(self):
        order = []
        maxnb = max([s.ring.NB for s in self.streams] + [0])
        for st in range(maxnb):
            for i, s in enumerate(self.streams):
                if st < s.ring.NB:
                    order += [(i, st)] * s.n
        self.npro = len(order)
        order += [(-1, 1 << 30)] * getattr(self, 'n_extra_vm', 0)

        def allowed(stage, upto):
            last = -1
            for idx in range(upto):
                if order[idx][1] <= stage:
                    last = idx
            return upto - 1 - last
        self.vm_first = allowed(0, len(order))
        vm = []
        for sig in range(self.KS - 1):
            vm.append(allowed(sig + 1, len(order)))
            for i in self.active(sig):
                order += [(i, sig + self.streams[i].ring.NB)] * self.streams[i].n
        return vm

    def prologue(self):
        a = self.a
        maxnb = max([s.ring.NB for s in self.streams] + [0])
        for st in range(maxnb):
            for s in self.streams:
                if st < s.ring.NB:
                    d = s.ring.ST if st < s.ring.NB - 1 else -(s.ring.NB - 1) * s.ring.ST
                    self.emit(s.batch('0x%x' % (d & 0xffffffff)))
        for r in self.rings:
            self.emit(r.init())
        if self.mid:
            self.mid(self.npro)
        if self.streams:
            a('s_waitcnt vmcnt(%d)' % self.vm_first)
        a('s_barrier')
        for j in range(self.PD):
            self.emit(self.reads(j, j % self.NS))
            a('v_add_u32 v%d, %s, v%d' % (self.vA[j], self.ringA.d[0], self.vA[j]))
            if self.bmode == 'kc':
                a('v_add_u32 v%d, %s, v%d' % (self.vB[j], self.ringB.d[0], self.vB[j]))

    def stage(self, act, pend, last, vm, first=False, extra=None, pre_dma=None):
        a = self.a
        PD, NS = self.PD, self.NS
        pnew = self.parts(act)
        pold = self.parts(pend)
        for s in range(4):
            if s == 4 - PD and not last:
                if self.streams:
                    a('s_waitcnt vmcnt(%d) lgkmcnt(0)' % vm)
                else:
                    a('s_waitcnt lgkmcnt(0)')
                a('s_barrier')
            else:
                ahead = PD - 1
                if last:
                    ahead = min(ahead, 3 - s)
                a('s_waitcnt lgkmcnt(%d)' % (ahead * self.R))
            fill = []
            dpart = []
            if s >= 4 - PD:
                k = s - (4 - PD)
                if k < len(pnew):
                    dpart = pnew[k]
            else:
                k = s + PD
                if k < len(pold):
                    dpart = pold[k]
            j = s + PD
            if j < 4 or not last:
                jj = j % 4
                fill += self.reads(jj, j % NS)
                di = 0 if j < 4 else 1
                fill.append('v_add_u32 v%d, %s, v%d' % (self.vA[jj], self.ringA.d[di], self.vA[jj]))
                if self.bmode == 'kc':
                    fill.append('v_add_u32 v%d, %s, v%d' % (self.vB[jj], self.ringB.d[di], self.vB[jj]))
                elif j == 3:
                    for r in self.vB:
                        fill.append('v_add_u32 v%d, %s, v%d' % (r, self.ringB.d[0], r))
            if pre_dma and s == 4 - PD:
                fill.append(list(pre_dma))
            fill += dpart
            if extra and s in extra:
                fill += extra[s]
            if s == 3 and not last:
                for r in self.rings:
                    fill += r.rotate()
            for l in interleave(self.mfmas(s % NS, zero=(first and s == 0)), fill):
                a(l)

    def run(self, KS, switch=None, tail_extra=None):
        a = self.a
        self.KS = KS
        vm = self.simulate()
        self.prologue()
        allst = list(range(len(self.streams)))
        desc = []
        for sig in range(KS):
            act = self.active(sig) if sig < KS - 1 else []
            pend = self.active(sig - 1) if sig > 0 else []
            special = (sig == 0) or (sig == KS - 1) or (switch and switch[0] == sig) or \
                      (tail_extra and sig in tail_extra)
            desc.append((tuple(act), tuple(pend), bool(special), vm[sig] if (sig < KS - 1 and sig >= 3) else -1))
        sig = 0
        while sig < KS:
            act, pend, special = desc[sig][:3]
            n = 1
            if not special:
                while sig + n < KS and desc[sig + n][:3] == desc[sig][:3] and \
                        (desc[sig + n][3] == desc[sig + n - 1][3] or desc[sig + n - 1][3] == -1):
                    n += 1
            if n >= 2:
                lab = '%s_L%d' % (self.pfx, self.nloop); self.nloop += 1
                a('s_mov_b32 %s, %d' % (self.s_cnt, n))
                a.label(lab)
                self.stage(act, pend, False, min(vm[sig:sig + n]))
                a('s_sub_u32 %s, %s, 1' % (self.s_cnt, self.s_cnt))
                a('s_cmp_lg_u32 %s, 0' % self.s_cnt)
                a('s_cbranch_scc1 %s' % lab)
            else:
                last = sig == KS - 1
                self.stage(act, pend, last, None if last else vm[sig], first=(sig == 0),
                           extra=(tail_extra.get(sig) if tail_extra else None),
                           pre_dma=(switch[1] if switch and switch[0] == sig else None))
            sig += n
```

```python
import os
from gemm import Gemm, Ring, Stream
from gen import srd, kernel_head, lane_consts, kc_read_addrs, kn_read_addr, stamp, stamp_flush, wgt, wgt_flush
from gen import WS_O, WS_H, WS_KVP, WS_ZP, WS_AGG

LDS_BYTES = 147456
LOG2E = 0x3fb8aa3b

V_LANE, V_L31, V_HH, T0, T1, T2, T3 = 1, 2, 3, 4, 5, 6, 7
S_WAVE, S_CNT, S_WROFF, S_D0, S_D1, S_TMP, S_ST = 's64', 's65', 's66', 's67', 's68', 's69', 's79'
S_OA, S_MA, S_MT, S_NT, S_WM, S_WN, S_T2 = 's70', 's72', 's74', 's75', 's76', 's77', 's78'
S_L2E, S_HD = 's8', 's10'
SPIN_MAX = 1 << 21
PDA = int(os.environ.get('PDA', '1')); PDB = int(os.environ.get('PDB', '1'))
ROT = not os.environ.get('NO_ROT')
PFD = int(os.environ.get('PFD', '4'))
EARLYPOLL = bool(os.environ.get('EARLYPOLL'))
S_MA2 = 's73'
S_O2, S_ADV2, S_END2 = 's71', 's11', 's15'
VD = [13, 14, 15, 16, 17, 18, 19, 20]
V_PFD = 47


def vr(b, n):
    return 'v[%d:%d]' % (b, b + n - 1)


def wrap_adv(so, adv, end):
    return ['s_add_u32 %s, %s, %s' % (so, so, adv),
            ['s_cmp_eq_u32 %s, %s' % (so, end), 's_cselect_b32 %s, 0, %s' % (so, so)]]


def set_stream(a, so, adv, end, step, nsteps, lead):
    a('s_add_u32 s5, s7, %d' % lead)
    a('s_and_b32 s5, s5, %d' % (nsteps - 1))
    a('s_mul_i32 %s, s5, 0x%x' % (so, step))
    a('s_mov_b32 %s, 0x%x' % (adv, step))
    a('s_mov_b32 %s, 0x%x' % (end, step * nsteps))


def kc_dma_voffs(a, s_row0, permute):
    if not permute:
        a('v_lshrrev_b32 v%d, 3, v%d' % (T0, V_LANE))
    else:
        a('v_bfe_u32 v%d, v%d, 3, 2' % (T0, V_LANE))
        a('v_lshl_add_u32 v%d, v%d, 5, v%d' % (T0, V_HH, T0))
    a('v_add_u32 v%d, %s, v%d' % (T0, s_row0, T0))
    a('v_lshlrev_b32 v%d, 11, v%d' % (T0, T0))
    a('v_lshrrev_b32 v%d, 4, v%d' % (T1, V_LANE))
    a('v_and_b32 v%d, 7, v%d' % (T2, V_LANE))
    a('v_xor_b32 v%d, v%d, v%d' % (T1, T1, T2))
    for j in range(8):
        a('v_xor_b32 v%d, %d, v%d' % (T2, (j & 1) * 4, T1))
        a('v_lshl_add_u32 v%d, v%d, 4, v%d' % (VD[j], T2, T0))
        rows = (8 * j) if not permute else (16 * (j >> 2) + 4 * (j & 3))
        c = rows * 2048 - (j & 3) * 1024
        if c:
            a('v_add_u32 v%d, 0x%x, v%d' % (VD[j], c, VD[j]))


def poll(a, tag, v_off, v_tmp, s_mask_or_count, mode):
    a('s_cmp_lg_u32 %s, 0' % S_WAVE)
    a('s_cbranch_scc1 %s_done' % tag)
    a('s_mov_b32 s5, 0')
    a.label('%s_loop' % tag)
    a('global_load_dword v%d, v%d, s[44:45] sc1' % (v_tmp, v_off))
    a('s_waitcnt vmcnt(0)')
    a('v_readfirstlane_b32 s6, v%d' % v_tmp)
    a('s_nop 3')
    if mode == 'ge':
        a('s_cmp_ge_u32 s6, %s' % s_mask_or_count)
    else:
        a('s_and_b32 s6, s6, %s' % s_mask_or_count)
        a('s_cmp_eq_u32 s6, %s' % s_mask_or_count)
    a('s_cbranch_scc1 %s_done' % tag)
    a('s_sleep 1')
    a('s_add_u32 s5, s5, 1')
    a('s_cmp_lt_u32 s5, %d' % SPIN_MAX)
    a('s_cbranch_scc1 %s_loop' % tag)
    a.label('%s_done' % tag)
    a('s_barrier')


def softmax_pm(a, PP, EP, EN, OUTP, OUTN, t):
    mx, mn, t1, t2 = t, t + 2, t + 4, t + 6
    a('v_max3_f32 v%d, v%d, v%d, v%d' % (mx, PP, PP + 1, PP + 2))
    a('v_min3_f32 v%d, v%d, v%d, v%d' % (mn, PP, PP + 1, PP + 2))
    for i in range(3, 15, 2):
        a('v_max3_f32 v%d, v%d, v%d, v%d' % (mx, mx, PP + i, PP + i + 1))
        a('v_min3_f32 v%d, v%d, v%d, v%d' % (mn, mn, PP + i, PP + i + 1))
    a('v_max_f32 v%d, v%d, v%d' % (mx, mx, PP + 15))
    a('v_min_f32 v%d, v%d, v%d' % (mn, mn, PP + 15))
    a('v_mov_b32 v%d, v%d' % (t1, mx))
    a('v_mov_b32 v%d, v%d' % (t2, mn))
    a('v_permlane32_swap_b32 v%d, v%d' % (mx, t1))
    a('v_permlane32_swap_b32 v%d, v%d' % (mn, t2))
    a('v_max_f32 v%d, v%d, v%d' % (mx, mx, t1))
    a('v_min_f32 v%d, v%d, v%d' % (mn, mn, t2))
    a('v_mul_f32 v%d, %s, v%d' % (mx, S_L2E, mx))
    a('v_mul_f32 v%d, %s, v%d' % (mn, S_L2E, mn))
    for i in range(0, 16, 2):
        a('v_pk_fma_f32 %s, %s, s[8:9], %s op_sel_hi:[1,1,0] neg_lo:[0,0,1] neg_hi:[0,0,1]' %
          (vr(EP + i, 2), vr(PP + i, 2), vr(mx, 2)))
        a('v_pk_fma_f32 %s, %s, s[8:9], %s op_sel_hi:[1,1,0] neg_lo:[1,0,0] neg_hi:[1,0,0]' %
          (vr(EN + i, 2), vr(PP + i, 2), vr(mn, 2)))
    for i in range(16):
        a('v_exp_f32 v%d, v%d' % (EP + i, EP + i))
        a('v_exp_f32 v%d, v%d' % (EN + i, EN + i))
    a('v_pk_add_f32 %s, %s, %s' % (vr(mx, 2), vr(EP, 2), vr(EP + 2, 2)))
    a('v_pk_add_f32 %s, %s, %s' % (vr(mn, 2), vr(EN, 2), vr(EN + 2, 2)))
    a('v_pk_add_f32 %s, %s, %s' % (vr(t1, 2), vr(EP + 4, 2), vr(EP + 6, 2)))
    a('v_pk_add_f32 %s, %s, %s' % (vr(t2, 2), vr(EN + 4, 2), vr(EN + 6, 2)))
    for i in (8, 12):
        a('v_pk_add_f32 %s, %s, %s' % (vr(mx, 2), vr(mx, 2), vr(EP + i, 2)))
        a('v_pk_add_f32 %s, %s, %s' % (vr(mn, 2), vr(mn, 2), vr(EN + i, 2)))
        a('v_pk_add_f32 %s, %s, %s' % (vr(t1, 2), vr(t1, 2), vr(EP + i + 2, 2)))
        a('v_pk_add_f32 %s, %s, %s' % (vr(t2, 2), vr(t2, 2), vr(EN + i + 2, 2)))
    a('v_pk_add_f32 %s, %s, %s' % (vr(mx, 2), vr(mx, 2), vr(t1, 2)))
    a('v_pk_add_f32 %s, %s, %s' % (vr(mn, 2), vr(mn, 2), vr(t2, 2)))
    a('v_add_f32 v%d, v%d, v%d' % (mx, mx, mx + 1))
    a('v_add_f32 v%d, v%d, v%d' % (mn, mn, mn + 1))
    a('v_mov_b32 v%d, v%d' % (t1, mx))
    a('v_mov_b32 v%d, v%d' % (t2, mn))
    a('v_permlane32_swap_b32 v%d, v%d' % (mx, t1))
    a('v_permlane32_swap_b32 v%d, v%d' % (mn, t2))
    a('v_add_f32 v%d, v%d, v%d' % (mx, mx, t1))
    a('v_add_f32 v%d, v%d, v%d' % (mn, mn, t2))
    a('v_rcp_f32 v%d, v%d' % (mx, mx))
    a('v_rcp_f32 v%d, v%d' % (mn, mn))
    for i in range(0, 16, 2):
        a('v_pk_mul_f32 %s, %s, %s op_sel_hi:[1,0]' % (vr(EP + i, 2), vr(EP + i, 2), vr(mx, 2)))
        a('v_pk_mul_f32 %s, %s, %s op_sel_hi:[1,0]' % (vr(EN + i, 2), vr(EN + i, 2), vr(mn, 2)))
    for k in range(8):
        a('v_cvt_pk_bf16_f32 v%d, v%d, v%d' % (OUTP + k, EP + 2 * k, EP + 2 * k + 1))
        a('v_cvt_pk_bf16_f32 v%d, v%d, v%d' % (OUTN + k, EN + 2 * k, EN + 2 * k + 1))


def prefetch_tail(a, items, vdst, vt):
    a('s_and_b32 s5, s2, 127')
    a('s_lshl_b32 s5, s5, 3')
    a('s_add_u32 s5, s5, %s' % S_WAVE)
    for (ptr, nbytes) in items:
        per = nbytes // 1024
        srd(a, 96, ptr, nbytes)
        a('s_mul_i32 s6, s5, %d' % per)
        a('v_min_u32 v%d, %d, v%d' % (vt, per // 128 - 1, V_LANE))
        a('v_lshlrev_b32 v%d, 7, v%d' % (vt, vt))
        a('buffer_load_dword v%d, v%d, s[96:99], s6 offen' % (vdst, vt))


def gen_k1(a):
    name = 'k1_kernel'
    kernel_head(a, name, 256)
    lane_consts(a, V_LANE, V_L31, V_HH, S_WAVE, T0)
    a('s_and_b32 s3, s2, 7')
    a('s_lshr_b32 s4, s2, 3')
    a('s_and_b32 s5, s4, 3')
    a('s_and_b32 s6, s3, 1')
    a('s_lshl_b32 s6, s6, 2')
    a('s_add_u32 %s, s6, s5' % S_MT)
    a('s_bfe_u32 s5, s4, 0x20002')
    a('s_lshr_b32 s6, s3, 1')
    a('s_lshl_b32 s6, s6, 2')
    a('s_add_u32 %s, s6, s5' % S_NT)
    a('s_lshr_b32 %s, %s, 1' % (S_WM, S_WAVE))
    a('s_and_b32 %s, %s, 1' % (S_WN, S_WAVE))
    a('s_lshl_b32 %s, %s, 13' % (S_MA, S_WAVE))
    a('s_add_u32 %s, %s, 4096' % (S_MA2, S_MA))
    if ROT:
        a('s_lshl_b32 s5, s3, 1')
        a('s_bfe_u32 s6, s4, 0x10004')
        a('s_add_u32 s7, s5, s6')
    else:
        a('s_mov_b32 s7, 0')
    a('s_mov_b32 s8, 0x%x' % LOG2E)
    a('s_mov_b32 s9, 0x%x' % LOG2E)
    VA = [8, 9, 10, 11]
    a('s_lshl_b32 %s, %s, 13' % (S_TMP, S_WM))
    kc_read_addrs(a, VA, V_L31, V_HH, S_TMP, 0, T0, T1)
    a('s_waitcnt lgkmcnt(0)')
    a('s_bitcmp1_b32 s4, 4')
    a('s_cbranch_scc1 k1_B')
    gen_A(a, VA)
    a.label('k1_B')
    gen_B(a, VA)
    a.label(name + '_exit')
    a('s_endpgm')


S_MB, S_MB2 = 's66', 's78'


def run_roles(a, tag, ringA, ringB, streamB_groups, **cfg):
    a('s_cmp_ge_u32 %s, 4' % S_WAVE)
    a('s_cbranch_scc1 %s_r1' % tag)
    sa = Stream(ringA, [(S_MA, [(VD[j], 's[48:51]', S_OA, j * 1024) for j in range(4)]),
                        (S_MA2, [(VD[4 + j], 's[48:51]', S_OA, j * 1024) for j in range(4)])],
                ['s_add_u32 %s, %s, 128' % (S_OA, S_OA), 's_and_b32 %s, %s, 0x7ff' % (S_OA, S_OA)])
    sb = Stream(ringB, streamB_groups, wrap_adv(S_O2, S_ADV2, S_END2))
    g = Gemm(a, pfx=tag + 'd', streams=[sa, sb], ringA=ringA, ringB=ringB, **cfg)
    g.run(16)
    a('s_branch %s_join' % tag)
    a.label('%s_r1' % tag)
    g = Gemm(a, pfx=tag + 'n', streams=[], ringA=ringA, ringB=ringB, **cfg)
    g.run(16)
    a.label('%s_join' % tag)


BBASE = 98304
BBASE_A = 65536 if not os.environ.get('NO_SWAPRING') else 98304


def gen_A(a, VA):
    a.comment('==== A: qkv gemm')
    VB0 = 12
    WPH = 24
    VWR = 32
    VTR = 40
    V_OFF, V_ONE, V_O = 44, 45, 46
    ACC = 48
    FR = 144
    AQ, AK, AV = ACC, ACC + 32, ACC + 64
    NB, ST = 2, 57344
    srd(a, 56, 'wphi', 65536)
    a('s_lshl_b32 %s, %s, 1' % (S_HD, S_NT))
    a('s_add_u32 %s, %s, %s' % (S_HD, S_HD, S_WN))
    a('v_lshlrev_b32 v%d, 8, v%d' % (T0, V_HH))
    a('v_lshl_add_u32 v%d, v%d, 1, v%d' % (T0, V_L31, T0))
    a('s_lshl_b32 s5, %s, 11' % S_HD)
    for s in range(2):
        for i in range(8):
            d = 16 * s + 8 * (i >> 2) + (i & 3)
            a('buffer_load_ushort v%d, v%d, s[56:59], s5 offen offset:%d' % (ACC + 8 * s + i, T0, d * 64))
    VW = [184, 185, 186, 187, 188, 189]
    srd(a, 48, 'Ax', 4 << 20)
    srd(a, 52, 'wqkv', 6 << 20)
    a('s_and_b32 s4, %s, 3' % S_WAVE)
    a('s_lshl_b32 s5, %s, 8' % S_MT)
    a('s_lshl_b32 s6, s4, 6')
    a('s_add_u32 s6, s5, s6')
    kc_dma_voffs(a, 's6', False)
    a('s_lshl_b32 %s, s7, 7' % S_OA)
    a('v_lshrrev_b32 v%d, 3, v%d' % (T0, V_LANE))
    a('v_mul_u32_u24 v%d, 6144, v%d' % (T0, T0))
    a('v_bfe_u32 v%d, v%d, 4, 1' % (T1, V_LANE))
    a('v_lshlrev_b32 v%d, 2, v%d' % (T1, T1))
    a('v_and_b32 v%d, 7, v%d' % (T2, V_LANE))
    a('v_xor_b32 v%d, v%d, v%d' % (T1, T1, T2))
    a('v_lshl_add_u32 v%d, v%d, 4, v%d' % (T0, T1, T0))
    a('s_mul_i32 s4, s4, 6')
    a('s_lshl_b32 %s, s4, 10' % S_MB)
    a('s_add_u32 %s, %s, %d' % (S_MB, S_MB, BBASE_A))
    a('s_add_u32 %s, %s, 4096' % (S_MB2, S_MB))
    for j in range(6):
        a('s_add_u32 s5, s4, %d' % j)
        a('s_lshr_b32 s6, s5, 3')
        a('s_and_b32 s5, s5, 7')
        a('s_mul_i32 s5, s5, 49152')
        a('s_lshl_b32 s6, s6, 11')
        a('s_add_u32 s5, s5, s6')
        a('s_lshl_b32 s6, %s, 7' % S_NT)
        a('s_add_u32 s5, s5, s6')
        if j & 3:
            a('s_sub_u32 s5, s5, %d' % ((j & 3) * 1024))
        a('v_add_u32 v%d, s5, v%d' % (VW[j], T0))
    set_stream(a, S_O2, S_ADV2, S_END2, 0x60000, 16, 0)
    a('s_mov_b32 %s, 0' % S_TMP)
    kn_read_addr(a, VB0, None, V_LANE, S_TMP, BBASE_A, T0, T1)
    a('s_lshl_b32 s5, %s, 6' % S_WN)
    a('v_xor_b32 v%d, s5, v%d' % (VB0, VB0))

    def mid(nvm):
        a('s_lshl_b32 s5, %s, 13' % S_WAVE)
        a('v_and_b32 v%d, 5, v%d' % (T0, V_L31))
        a('v_bfe_u32 v%d, v%d, 1, 1' % (T1, V_L31))
        a('v_lshl_or_b32 v%d, v%d, 3, v%d' % (T0, T1, T0))
        a('v_bfe_u32 v%d, v%d, 3, 1' % (T1, V_L31))
        a('v_lshl_or_b32 v%d, v%d, 1, v%d' % (T0, T1, T0))
        a('v_xor_b32 v%d, v%d, v%d' % (T0, T0, V_HH))
        a('v_lshlrev_b32 v%d, 3, v%d' % (T0, T0))
        a('v_lshl_add_u32 v%d, v%d, 7, v%d' % (T0, V_L31, T0))
        a('v_add_u32 v%d, s5, v%d' % (T0, T0))
        for k in range(8):
            a('v_xor_b32 v%d, %d, v%d' % (VWR + k, ((k & 3) * 2 + (k >> 2) * 8) * 8, T0))
        a('v_bfe_u32 v%d, v%d, 2, 2' % (T0, V_LANE))
        a('v_lshl_add_u32 v%d, v%d, 2, v%d' % (T0, V_HH, T0))
        a('v_and_b32 v%d, 5, v%d' % (T1, T0))
        a('v_bfe_u32 v%d, v%d, 1, 1' % (T2, T0))
        a('v_lshl_or_b32 v%d, v%d, 3, v%d' % (T1, T2, T1))
        a('v_and_b32 v%d, 3, v%d' % (T2, V_LANE))
        a('v_bfe_u32 v%d, v%d, 4, 1' % (T3, V_LANE))
        a('v_lshl_or_b32 v%d, v%d, 2, v%d' % (T2, T3, T2))
        a('v_xor_b32 v%d, v%d, v%d' % (T1, T1, T2))
        a('v_lshlrev_b32 v%d, 3, v%d' % (T1, T1))
        a('v_lshl_add_u32 v%d, v%d, 7, v%d' % (T1, T0, T1))
        a('v_add_u32 v%d, s5, v%d' % (T1, T1))
        for ft in range(2):
            for u in range(2):
                a('v_xor_b32 v%d, %d, v%d' % (VTR + 2 * ft + u, ft * 64 + u * 16, T1))
        a('s_lshl_b32 s5, %s, 2' % S_NT)
        a('v_mov_b32 v%d, s5' % V_OFF)
        a('v_mov_b32 v%d, 1' % V_ONE)
        a('s_lshl_b32 s5, %s, 8' % S_MT)
        a('s_lshl_b32 s6, %s, 6' % S_WM)
        a('s_add_u32 s5, s5, s6')
        a('v_add_u32 v%d, s5, v%d' % (V_O, V_L31))
        a('v_lshlrev_b32 v%d, 11, v%d' % (V_O, V_O))
        a('v_lshl_add_u32 v%d, v%d, 4, v%d' % (V_O, V_HH, V_O))
        a('s_waitcnt vmcnt(%d)' % nvm)
        for r in range(8):
            a('v_lshl_or_b32 v%d, v%d, 16, v%d' % (WPH + r, ACC + 2 * r + 1, ACC + 2 * r))

    def acc(tm, tn):
        return vr(ACC + 32 * tn + 16 * tm, 16)

    stamp(a, 1)
    wgt(a, 1)
    if not os.environ.get('NO_SWAPRING'):
        ringA = Ring(32768, 2, ['s67', 's68', 's79'], S_TMP)
        ringB = Ring(24576, 3, ['s12', 's13', 's14'], S_TMP)
    else:
        ringA = Ring(32768, 3, ['s67', 's68', 's79'], S_TMP)
        ringB = Ring(24576, 2, ['s12', 's13'], S_TMP)
    sbg = [(S_MB, [(VW[j], 's[52:55]', S_O2, j * 1024) for j in range(4)]),
           (S_MB2, [(VW[4 + j], 's[52:55]', S_O2, j * 1024) for j in range(2)])]
    run_roles(a, 'k1a', ringA, ringB, sbg, TM=2, TN=3, PD=PDA, NS=2 * PDA, FR=FR, vA=VA, offA=[0, 4096],
              bmode='kn', vB=[VB0], offB=[(0, 0), (0, 8192), (0, 16384)], acc=acc,
              swap=lambda tm, tn: tn < 2,
              s_cnt=S_CNT, mid=mid)
    stamp(a, 2)
    wgt(a, 2)
    PK = 144
    PP = 152
    EP = 168
    EN = 184
    OP = 200
    ON = 208
    KV = 216
    TS = 248
    ZA = 22
    V_ONES = 21
    AF = 168
    a('v_mov_b32 v%d, 0x3f803f80' % V_ONES)
    a('v_mov_b32 v%d, 0' % ZA)
    a('v_mov_b32 v%d, 0' % (ZA + 1))
    srd(a, 56, 'ws', 4 << 20, WS_KVP)
    srd(a, 60, 'ws', 4 << 20, WS_O)

    def featmap(src, outp, outn):
        for k in range(8):
            a('v_cvt_pk_bf16_f32 v%d, v%d, v%d' % (PK + k, src + 2 * k, src + 2 * k + 1))
        a('v_mfma_f32_32x32x16_bf16 %s, %s, %s, 0' % (vr(PP, 16), vr(WPH, 4), vr(PK, 4)))
        a('v_mfma_f32_32x32x16_bf16 %s, %s, %s, %s' % (vr(PP, 16), vr(WPH + 4, 4), vr(PK + 4, 4), vr(PP, 16)))
        softmax_pm(a, PP, EP, EN, outp, outn, TS)

    for tm in range(2):
        featmap(AK + 16 * tm, OP, ON)
        if tm == 0:
            a('s_barrier')
        for g4 in range(4):
            a('ds_write_b64 v%d, %s offset:%d' % (VWR + g4, vr(OP + 2 * g4, 2), tm * 4096))
            a('ds_write_b64 v%d, %s offset:%d' % (VWR + 4 + g4, vr(ON + 2 * g4, 2), tm * 4096))
        for k in range(8):
            a('v_cvt_pk_bf16_f32 v%d, v%d, v%d' % (PK + k, AV + 16 * tm + 2 * k, AV + 16 * tm + 2 * k + 1))
        a('s_waitcnt lgkmcnt(0)')
        for ft in range(2):
            for s in range(2):
                f = AF + 4 * (2 * ft + s)
                for u in range(2):
                    a('ds_read_b64_tr_b16 %s, v%d offset:%d' % (vr(f + 2 * u, 2), VTR + 2 * ft + u,
                                                                 tm * 4096 + s * 2048 + u * 1024))
        for ft in range(2):
            for s in range(2):
                f = AF + 4 * (2 * ft + s)
                a('s_waitcnt lgkmcnt(%d)' % (6 - 2 * (2 * ft + s)))
                c = '0' if (tm == 0 and s == 0) else vr(KV + 16 * ft, 16)
                a('v_mfma_f32_32x32x16_bf16 %s, %s, %s, %s' % (vr(KV + 16 * ft, 16), vr(f, 4), vr(PK + 4 * s, 4), c))
                for k in range(4):
                    a('v_dot2c_f32_bf16 v%d, v%d, v%d' % (ZA + ft, f + k, V_ONES))
    a('v_mov_b32 v%d, v%d' % (TS, ZA))
    a('v_mov_b32 v%d, v%d' % (TS + 1, ZA + 1))
    a('v_permlane32_swap_b32 v%d, v%d' % (ZA, TS))
    a('v_permlane32_swap_b32 v%d, v%d' % (ZA + 1, TS + 1))
    a('v_add_f32 v%d, v%d, v%d' % (ZA, ZA, TS))
    a('v_add_f32 v%d, v%d, v%d' % (ZA + 1, ZA + 1, TS + 1))
    a('v_cmp_eq_u32 vcc, 1, v%d' % V_HH)
    a('v_cndmask_b32 v%d, v%d, v%d, vcc' % (ZA, ZA, ZA + 1))
    a('s_lshl_b32 s5, %s, 13' % S_WAVE)
    a('v_lshl_add_u32 v%d, v%d, 4, s5' % (T0, V_LANE))
    a('s_lshl_b32 s5, %s, 8' % S_WAVE)
    a('s_add_u32 s5, s5, 65536')
    a('v_lshl_add_u32 v%d, v%d, 2, s5' % (T1, V_LANE))
    a('ds_write_b32 v%d, v%d' % (T1, ZA))
    for q in range(8):
        a('ds_write_b128 v%d, %s offset:%d' % (T0, vr(KV + 4 * q, 4), q * 1024))
    a('s_lshl_b32 s5, %s, 13' % S_WN)
    a('s_lshl_b32 s6, %s, 11' % S_WM)
    a('s_add_u32 s5, s5, s6')
    a('v_lshl_add_u32 v%d, v%d, 4, s5' % (T0, V_LANE))
    a('s_lshl_b32 s5, %s, 8' % S_WN)
    a('s_add_u32 s5, s5, 65536')
    a('v_lshl_add_u32 v%d, v%d, 2, s5' % (T1, V_LANE))
    a('s_lshl_b32 s5, %s, 5' % S_MT)
    a('s_add_u32 s5, s5, %s' % S_HD)
    a('s_lshl_b32 s6, s5, 13')
    a('s_lshl_b32 s7, %s, 11' % S_WM)
    a('s_add_u32 s6, s6, s7')
    a('v_lshlrev_b32 v%d, 4, v%d' % (T2, V_LANE))
    a('s_lshl_b32 s7, s5, 8')
    a('s_add_u32 s7, s7, 0x%x' % (WS_ZP - WS_KVP))
    a('v_lshlrev_b32 v%d, 2, v%d' % (T3, V_LANE))
    a('s_waitcnt lgkmcnt(0)')
    a('s_barrier')
    R = 216
    for w in range(4):
        for q in range(2):
            a('ds_read_b128 %s, v%d offset:%d' % (vr(R + 8 * w + 4 * q, 4), T0, w * 16384 + q * 1024))
    for w in range(4):
        a('ds_read_b32 v%d, v%d offset:%d' % (OP + w, T1, w * 512))
    a('s_waitcnt lgkmcnt(4)')
    for k in range(0, 8, 2):
        a('v_pk_add_f32 %s, %s, %s' % (vr(R + k, 2), vr(R + k, 2), vr(R + 8 + k, 2)))
        a('v_pk_add_f32 %s, %s, %s' % (vr(R + 16 + k, 2), vr(R + 16 + k, 2), vr(R + 24 + k, 2)))
    for k in range(0, 8, 2):
        a('v_pk_add_f32 %s, %s, %s' % (vr(R + k, 2), vr(R + k, 2), vr(R + 16 + k, 2)))
    a('buffer_store_dwordx4 %s, v%d, s[56:59], s6 offen sc1' % (vr(R, 4), T2))
    a('buffer_store_dwordx4 %s, v%d, s[56:59], s6 offen offset:1024 sc1' % (vr(R + 4, 4), T2))
    a('s_waitcnt lgkmcnt(0)')
    a('v_add_f32 v%d, v%d, v%d' % (OP, OP, OP + 1))
    a('v_add_f32 v%d, v%d, v%d' % (OP + 2, OP + 2, OP + 3))
    a('v_add_f32 v%d, v%d, v%d' % (ZA, OP, OP + 2))
    a('s_cmp_lg_u32 %s, 0' % S_WM)
    a('s_cbranch_scc1 k1a_noz')
    a('buffer_store_dword v%d, v%d, s[56:59], s7 offen sc1' % (ZA, T3))
    a.label('k1a_noz')
    stamp(a, 3)
    wgt(a, 3)
    PQ = AK
    featmap(AQ, PQ, PQ + 8)
    a('s_waitcnt vmcnt(0)')
    a('s_barrier')
    a('s_cmp_lg_u32 %s, 0' % S_WAVE)
    a('s_cbranch_scc1 k1a_nosig')
    a('s_mov_b64 exec, 1')
    a('global_atomic_add v%d, v%d, s[44:45] sc1' % (V_OFF, V_ONE))
    a('s_mov_b64 exec, -1')
    a.label('k1a_nosig')
    if not EARLYPOLL:
        featmap(AQ + 16, PQ + 16, PQ + 24)
    stamp(a, 4)
    wgt(a, 4)
    poll(a, 'k1a_poll', V_OFF, T0, '8', 'ge')
    stamp(a, 5)
    wgt(a, 5)
    a('s_lshl_b32 s6, %s, 13' % S_HD)
    a('s_lshl_b32 s7, %s, 11' % S_WM)
    a('s_add_u32 s6, s6, s7')
    if EARLYPOLL:
        L = AV
        LM = [AV, AV + 8, AV + 16, AV + 24, 216, 224, 232, 240]
        ZL = AQ
    else:
        LM = [144 + 8 * m for m in range(8)]
        ZL = 208
    for m in range(8):
        a('buffer_load_dwordx4 %s, v%d, s[56:59], s6 offen sc1' % (vr(LM[m], 4), T2))
        a('buffer_load_dwordx4 %s, v%d, s[56:59], s6 offen offset:1024 sc1' % (vr(LM[m] + 4, 4), T2))
        if m < 7:
            a('s_add_u32 s6, s6, 0x40000')
    a('s_lshl_b32 s7, %s, 8' % S_HD)
    a('s_add_u32 s7, s7, 0x%x' % (WS_ZP - WS_KVP))
    for m in range(8):
        a('buffer_load_dword v%d, v%d, s[56:59], s7 offen sc1' % (ZL + m, T3))
        if m < 7:
            a('s_add_u32 s7, s7, 0x2000')
    if EARLYPOLL:
        featmap(AQ + 16, PQ + 16, PQ + 24)
    a('s_lshl_b32 s5, %s, 12' % S_WN)
    a('v_lshl_add_u32 v%d, v%d, 4, s5' % (T0, V_LANE))
    a('s_lshl_b32 s6, %s, 10' % S_WM)
    a('v_add_u32 v%d, s6, v%d' % (T1, T0))
    a('s_waitcnt vmcnt(8)')
    for k in range(0, 8, 2):
        for m in range(0, 8, 2):
            a('v_pk_add_f32 %s, %s, %s' % (vr(LM[m] + k, 2), vr(LM[m] + k, 2), vr(LM[m + 1] + k, 2)))
    for k in range(0, 8, 2):
        a('v_pk_add_f32 %s, %s, %s' % (vr(LM[0] + k, 2), vr(LM[0] + k, 2), vr(LM[2] + k, 2)))
        a('v_pk_add_f32 %s, %s, %s' % (vr(LM[4] + k, 2), vr(LM[4] + k, 2), vr(LM[6] + k, 2)))
    for k in range(0, 8, 2):
        a('v_pk_add_f32 %s, %s, %s' % (vr(LM[0] + k, 2), vr(LM[0] + k, 2), vr(LM[4] + k, 2)))
    for k in range(4):
        a('v_cvt_pk_bf16_f32 v%d, v%d, v%d' % (LM[1] + k, LM[0] + 2 * k, LM[0] + 2 * k + 1))
    a('ds_write_b128 v%d, %s' % (T1, vr(LM[1], 4)))
    a('s_waitcnt vmcnt(0)')
    for m in range(0, 8, 4):
        a('v_pk_add_f32 %s, %s, %s' % (vr(ZL + m, 2), vr(ZL + m, 2), vr(ZL + m + 2, 2)))
    a('v_pk_add_f32 %s, %s, %s' % (vr(ZL, 2), vr(ZL, 2), vr(ZL + 4, 2)))
    a('v_add_f32 v%d, v%d, v%d' % (ZL, ZL, ZL + 1))
    a('v_cvt_pk_bf16_f32 v%d, v%d, v%d' % (ZL, ZL, ZL))
    a('s_lshl_b32 s5, %s, 7' % S_WN)
    a('s_add_u32 s5, s5, 8192')
    a('v_lshl_add_u32 v%d, v%d, 1, s5' % (T1, V_LANE))
    a('ds_write_b16 v%d, v%d' % (T1, ZL))
    a('v_lshl_add_u32 v%d, v%d, 3, s5' % (T1, V_HH))
    a('s_lshl_b32 s5, %s, 6' % S_HD)
    a('s_add_u32 s6, s5, 0x10000')
    a('s_waitcnt lgkmcnt(0)')
    a('s_barrier')
    KF = 144
    ZF = 160
    for f in range(4):
        a('ds_read_b128 %s, v%d offset:%d' % (vr(KF + 4 * f, 4), T0, f * 1024))
        a('ds_read_b64 %s, v%d offset:%d' % (vr(ZF + 4 * f, 2), T1, f * 32))
        a('ds_read_b64 %s, v%d offset:%d' % (vr(ZF + 4 * f + 2, 2), T1, f * 32 + 16))
    NUM = 176
    DEN = 208
    for f in range(4):
        a('s_waitcnt lgkmcnt(%d)' % (9 - 3 * f))
        for tm in range(2):
            b = PQ + 16 * tm + 4 * f
            a('v_mfma_f32_32x32x16_bf16 %s, %s, %s, %s' % (vr(DEN + 16 * tm, 16), vr(ZF + 4 * f, 4), vr(b, 4),
                                                           '0' if f == 0 else vr(DEN + 16 * tm, 16)))
            a('v_mfma_f32_32x32x16_bf16 %s, %s, %s, %s' % (vr(NUM + 16 * tm, 16), vr(KF + 4 * f, 4), vr(b, 4),
                                                           '0' if f == 0 else vr(NUM + 16 * tm, 16)))
    for tm in range(2):
        d = DEN + 16 * tm
        n = NUM + 16 * tm
        a('v_add_f32 v%d, 0x358637bd, v%d' % (d, d))
        a('v_rcp_f32 v%d, v%d' % (d, d))
        for k in range(0, 16, 2):
            a('v_pk_mul_f32 %s, %s, %s op_sel_hi:[1,0]' % (vr(n + k, 2), vr(n + k, 2), vr(d, 2)))
        o = d + 4
        for k in range(8):
            a('v_cvt_pk_bf16_f32 v%d, v%d, v%d' % (o + k, n + 2 * k, n + 2 * k + 1))
        for p in range(2):
            a('v_permlane32_swap_b32 v%d, v%d' % (o + 4 * p, o + 4 * p + 2))
            a('v_permlane32_swap_b32 v%d, v%d' % (o + 4 * p + 1, o + 4 * p + 3))
            a('buffer_store_dwordx4 %s, v%d, s[60:63], %s offen offset:%d%s' %
              (vr(o + 4 * p, 4), V_O, 's5' if tm == 0 else 's6', p * 32, os.environ.get('STO', '')))
    stamp(a, 6)
    wgt(a, 6)
    stamp_flush(a, 7, 0)
    wgt_flush(a, 7, 0)
    a('s_endpgm')


def cmul(a, dr, di, ar, ai, br, bi, t):
    a('v_mul_f32 v%d, v%d, v%d' % (t, ai, bi))
    a('v_mul_f32 v%d, v%d, v%d' % (t + 1, ar, bi))
    a('v_fma_f32 v%d, v%d, v%d, -v%d' % (t, ar, br, t))
    a('v_fma_f32 v%d, v%d, v%d, v%d' % (di, ai, br, t + 1))
    a('v_mov_b32 v%d, v%d' % (dr, t))


def cfma(a, hr, hi, lr, li, ur, ui, t):
    a('v_fma_f32 v%d, -v%d, v%d, v%d' % (t, li, hi, ur))
    a('v_fma_f32 v%d, v%d, v%d, v%d' % (t + 1, li, hr, ui))
    a('v_fma_f32 v%d, v%d, v%d, v%d' % (hr, lr, hr, t))
    a('v_fma_f32 v%d, v%d, v%d, v%d' % (hi, lr, hi, t + 1))


def gen_B(a, VA):
    a.comment('==== B: input projection gemm')
    VB = [12, 21, 22, 23]
    LR, LI, CR, CI, L32R, L32I, L256R, L256I = 24, 25, 26, 27, 28, 29, 30, 31
    V_P2, V_OFF, V_BIT, V_SEL, V_H, V_Q = 32, 33, 34, 35, 36, 37
    TT = 38
    ACC = 48
    FR = 112
    NB, ST = 3, 49152
    a('s_lshl_b32 s5, %s, 6' % S_NT)
    a('s_lshl_b32 s6, %s, 5' % S_WN)
    a('s_add_u32 s5, s5, s6')
    a('v_add_u32 v%d, s5, v%d' % (V_P2, V_L31))
    a('v_lshlrev_b32 v%d, 1, v%d' % (T0, V_P2))
    a('global_load_ushort v%d, v%d, s[26:27]' % (TT, T0))
    a('global_load_ushort v%d, v%d, s[28:29]' % (TT + 1, T0))
    a('global_load_ushort v%d, v%d, s[38:39]' % (TT + 2, T0))
    VW = [176, 177, 178, 179]
    srd(a, 48, 'Bx', 4 << 20)
    srd(a, 52, 'Bre', 2 << 20)
    srd(a, 56, 'Bim', 2 << 20)
    a('s_and_b32 s4, %s, 3' % S_WAVE)
    a('s_cmp_ge_u32 s4, 2')
    a('s_cselect_b32 s52, s56, s52')
    a('s_cselect_b32 s53, s57, s53')
    a('s_lshl_b32 s5, %s, 8' % S_MT)
    a('s_lshl_b32 s6, s4, 6')
    a('s_add_u32 s6, s5, s6')
    kc_dma_voffs(a, 's6', True)
    a('s_lshl_b32 %s, s7, 7' % S_OA)
    a('s_lshl_b32 s5, %s, 6' % S_NT)
    a('s_and_b32 s6, s4, 1')
    a('s_lshl_b32 s6, s6, 5')
    a('s_add_u32 s5, s5, s6')
    a('v_lshrrev_b32 v%d, 3, v%d' % (T0, V_LANE))
    a('v_add_u32 v%d, s5, v%d' % (T0, T0))
    a('v_lshlrev_b32 v%d, 11, v%d' % (T0, T0))
    for j in range(4):
        a('v_xor_b32 v%d, %d, v%d' % (T2, (j & 1) * 4, T1))
        a('v_lshl_add_u32 v%d, v%d, 4, v%d' % (VW[j], T2, T0))
        if j:
            a('v_add_u32 v%d, 0x%x, v%d' % (VW[j], 8 * j * 2048 - j * 1024, VW[j]))
    a('s_lshl_b32 %s, s4, 12' % S_MB)
    a('s_add_u32 %s, %s, %d' % (S_MB, S_MB, BBASE))
    set_stream(a, S_O2, S_ADV2, S_END2, 128, 16, 0)
    a('s_lshl_b32 %s, %s, 12' % (S_TMP, S_WN))
    kc_read_addrs(a, VB, V_L31, V_HH, S_TMP, BBASE, T0, T1)

    def mid(nvm):
        a('s_waitcnt vmcnt(%d)' % nvm)
        lre, lim, dt = TT, TT + 1, TT + 2
        a('v_lshlrev_b32 v%d, 16, v%d' % (lre, lre))
        a('v_lshlrev_b32 v%d, 16, v%d' % (lim, lim))
        a('v_lshlrev_b32 v%d, 16, v%d' % (dt, dt))
        a('v_mul_f32 v%d, %s, v%d' % (dt, S_L2E, dt))
        a('v_exp_f32 v%d, v%d' % (dt, dt))
        a('v_cvt_pk_bf16_f32 v%d, v%d, v%d' % (dt, dt, dt))
        a('v_lshlrev_b32 v%d, 16, v%d' % (dt, dt))
        a('v_mul_f32 v%d, v%d, v%d' % (TT + 3, dt, lre))
        a('v_mul_f32 v%d, v%d, v%d' % (TT + 4, dt, lim))
        a('v_mul_f32 v%d, %s, v%d' % (TT + 3, S_L2E, TT + 3))
        a('v_exp_f32 v%d, v%d' % (TT + 3, TT + 3))
        a('v_mul_f32 v%d, 0.15915494, v%d' % (TT + 4, TT + 4))
        a('v_rndne_f32 v%d, v%d' % (TT + 5, TT + 4))
        a('v_sub_f32 v%d, v%d, v%d' % (TT + 4, TT + 4, TT + 5))
        a('v_cos_f32 v%d, v%d' % (LR, TT + 4))
        a('v_sin_f32 v%d, v%d' % (LI, TT + 4))
        a('v_mul_f32 v%d, v%d, v%d' % (LR, LR, TT + 3))
        a('v_mul_f32 v%d, v%d, v%d' % (LI, LI, TT + 3))
        a('v_add_f32 v%d, -1.0, v%d' % (TT + 5, LR))
        a('v_mul_f32 v%d, v%d, v%d' % (TT + 6, lre, lre))
        a('v_fma_f32 v%d, v%d, v%d, v%d' % (TT + 6, lim, lim, TT + 6))
        a('v_rcp_f32 v%d, v%d' % (TT + 6, TT + 6))
        a('v_mul_f32 v%d, v%d, v%d' % (CR, TT + 5, lre))
        a('v_fma_f32 v%d, v%d, v%d, v%d' % (CR, LI, lim, CR))
        a('v_mul_f32 v%d, v%d, v%d' % (CI, TT + 5, lim))
        a('v_fma_f32 v%d, v%d, v%d, -v%d' % (CI, LI, lre, CI))
        a('v_add_f32 v%d, v%d, v%d' % (TT + 6, TT + 6, TT + 6))
        a('v_mul_f32 v%d, v%d, v%d' % (CR, CR, TT + 6))
        a('v_mul_f32 v%d, v%d, v%d' % (CI, CI, TT + 6))
        a('v_mov_b32 v%d, v%d' % (L32R, LR))
        a('v_mov_b32 v%d, v%d' % (L32I, LI))
        for _ in range(5):
            cmul(a, L32R, L32I, L32R, L32I, L32R, L32I, TT + 7)
        a('v_mov_b32 v%d, v%d' % (L256R, L32R))
        a('v_mov_b32 v%d, v%d' % (L256I, L32I))
        for _ in range(3):
            cmul(a, L256R, L256I, L256R, L256I, L256R, L256I, TT + 7)
        a('s_lshl_b32 s5, %s, 2' % S_NT)
        a('s_add_u32 s5, s5, 64')
        a('v_mov_b32 v%d, s5' % V_OFF)
        a('s_lshl_b32 s5, 1, %s' % S_MT)
        a('v_mov_b32 v%d, s5' % V_BIT)
        a('v_and_b32 v%d, 1, v%d' % (T0, V_LANE))
        a('v_mov_b32 v%d, 0x05040100' % V_SEL)
        a('v_mov_b32 v%d, 0x03020706' % T1)
        a('v_cmp_eq_u32 vcc, 1, v%d' % T0)
        a('v_cndmask_b32 v%d, v%d, v%d, vcc' % (V_SEL, V_SEL, T1))
        a('s_lshl_b32 s5, %s, 8' % S_MT)
        a('s_lshl_b32 s6, %s, 6' % S_WM)
        a('s_add_u32 s5, s5, s6')
        a('v_lshl_add_u32 v%d, v%d, 5, s5' % (V_H, V_HH))
        a('v_lshlrev_b32 v%d, 12, v%d' % (V_H, V_H))
        a('v_and_b32 v%d, -2, v%d' % (T1, V_P2))
        a('v_lshl_add_u32 v%d, v%d, 1, v%d' % (V_H, T1, V_H))
        a('v_lshl_add_u32 v%d, v%d, 11, v%d' % (V_H, T0, V_H))
        a('s_lshl_b32 s5, %s, 1' % S_WM)
        a('v_add_u32 v%d, s5, v%d' % (V_Q, V_HH))

    def acc(tm, tn):
        return vr(ACC + 32 * tm + 16 * tn, 16)

    stamp(a, 1)
    wgt(a, 1)
    ringA = Ring(32768, 3, ['s67', 's68', 's79'], S_TMP)
    ringB = Ring(16384, 3, ['s12', 's13', 's14'], S_TMP)
    sbg = [(S_MB, [(VW[j], 's[52:55]', S_O2, j * 1024) for j in range(4)])]
    run_roles(a, 'k1b', ringA, ringB, sbg, TM=2, TN=2, PD=PDB, NS=2 * PDB, FR=FR, vA=VA, offA=[0, 4096],
              bmode='kc', vB=VB, offB=[0, 8192], acc=acc, swap=lambda tm, tn: False,
              s_cnt=S_CNT, mid=mid)
    stamp(a, 2)
    wgt(a, 2)

    def ure(i):
        return ACC + 32 * (i >> 4) + (i & 15)

    def uim(i):
        return ure(i) + 16

    ER, EI = 112, 113
    t = 114
    for i in range(32):
        r, m = ure(i), uim(i)
        a('v_mul_f32 v%d, v%d, v%d' % (t, CI, m))
        a('v_mul_f32 v%d, v%d, v%d' % (t + 1, CI, r))
        a('v_fma_f32 v%d, v%d, v%d, -v%d' % (r, CR, r, t))
        a('v_fma_f32 v%d, v%d, v%d, v%d' % (m, CR, m, t + 1))
        if i == 0:
            a('v_mov_b32 v%d, v%d' % (ER, r))
            a('v_mov_b32 v%d, v%d' % (EI, m))
        else:
            cfma(a, ER, EI, LR, LI, r, m, t + 2)
    a('s_barrier')
    a('s_lshl_b32 s5, %s, 8' % S_WN)
    a('v_lshl_add_u32 v%d, v%d, 3, s5' % (T0, V_L31))
    a('v_lshl_add_u32 v%d, v%d, 9, v%d' % (T1, V_Q, T0))
    a('ds_write_b64 v%d, %s' % (T1, vr(ER, 2)))
    a('s_waitcnt lgkmcnt(0)')
    a('s_barrier')
    E = 120
    for q in range(8):
        a('ds_read_b64 %s, v%d offset:%d' % (vr(E + 2 * q, 2), T0, q * 512))
    PR, PI, WR, WI, SPR, SPI, SWR, SWI = 136, 137, 138, 139, 140, 141, 142, 143
    a('v_mov_b32 v%d, 0' % PR)
    a('v_mov_b32 v%d, 0' % PI)
    a('v_mov_b32 v%d, 1.0' % WR)
    a('v_mov_b32 v%d, 0' % WI)
    a('v_mov_b32 v%d, 0' % SPR)
    a('v_mov_b32 v%d, 0' % SPI)
    a('v_mov_b32 v%d, 1.0' % SWR)
    a('v_mov_b32 v%d, 0' % SWI)
    a('s_waitcnt lgkmcnt(0)')
    for q in range(8):
        cfma(a, PR, PI, L32R, L32I, E + 2 * q, E + 2 * q + 1, t)
        if q < 7:
            cmul(a, WR, WI, WR, WI, L32R, L32I, t + 2)
            a('v_cmp_eq_u32 vcc, %d, v%d' % (q + 1, V_Q))
            a('v_cndmask_b32 v%d, v%d, v%d, vcc' % (SPR, SPR, PR))
            a('v_cndmask_b32 v%d, v%d, v%d, vcc' % (SPI, SPI, PI))
            a('v_cndmask_b32 v%d, v%d, v%d, vcc' % (SWR, SWR, WR))
            a('v_cndmask_b32 v%d, v%d, v%d, vcc' % (SWI, SWI, WI))
    srd(a, 60, 'ws', 65536, WS_AGG)
    a('v_lshlrev_b32 v%d, 3, v%d' % (T2, V_P2))
    a('s_lshl_b32 s5, %s, 13' % S_MT)
    a('s_cmp_lg_u32 %s, 0' % S_WM)
    a('s_cbranch_scc1 k1b_nopub')
    a('buffer_store_dwordx2 %s, v%d, s[60:63], s5 offen sc1' % (vr(PR, 2), T2))
    a('s_waitcnt vmcnt(0)')
    a.label('k1b_nopub')
    a('s_barrier')
    a('s_cmp_lg_u32 %s, 0' % S_WAVE)
    a('s_cbranch_scc1 k1b_nosig')
    a('s_mov_b64 exec, 1')
    a('global_atomic_or v%d, v%d, s[44:45] sc1' % (V_OFF, V_BIT))
    a('s_mov_b64 exec, -1')
    a.label('k1b_nosig')
    stamp(a, 3)
    wgt(a, 3)
    a('s_lshl_b32 s7, 1, %s' % S_MT)
    a('s_sub_u32 s7, s7, 1')
    stamp(a, 4)
    wgt(a, 4)
    poll(a, 'k1b_poll', V_OFF, T0, 's7', 'and')
    stamp(a, 5)
    wgt(a, 5)
    for m in range(7):
        a('buffer_load_dwordx2 %s, v%d, s[60:63], %s offen sc1' % (vr(E + 2 * m, 2), T2, '0' if m == 0 else 's6'))
        a('s_mov_b32 s6, 0x%x' % ((m + 1) * 8192))
    HR, HI = 112, 113
    a('v_mov_b32 v%d, 0' % HR)
    a('v_mov_b32 v%d, 0' % HI)
    a('s_waitcnt vmcnt(0)')
    for m in range(7):
        a('s_cmp_le_u32 %s, %d' % (S_MT, m))
        a('s_cbranch_scc1 k1b_hdone')
        cfma(a, HR, HI, L256R, L256I, E + 2 * m, E + 2 * m + 1, t)
    a.label('k1b_hdone')
    cfma(a, HR, HI, SWR, SWI, SPR, SPI, t)
    srd(a, 60, 'ws', 8 << 20, WS_H)
    for i in range(32):
        r, m = ure(i), uim(i)
        cfma(a, HR, HI, LR, LI, r, m, t)
        w = 120 + (i & 3) * 3
        a('v_cvt_pk_bf16_f32 v%d, v%d, -v%d' % (w, HR, HI))
        a('s_mov_b32 s5, 0x%x' % (i * 4096))
        a('v_mov_b32_dpp v%d, v%d quad_perm:[1,0,3,2] row_mask:0xf bank_mask:0xf' % (w + 1, w))
        a('v_perm_b32 v%d, v%d, v%d, v%d' % (w + 2, w + 1, w, V_SEL))
        a('buffer_store_dword v%d, v%d, s[60:63], s5 offen%s' % (w + 2, V_H, os.environ.get('STH', '')))
    if not os.environ.get('NO_PF3'):
        prefetch_tail(a, [('Cre', 2 << 20), ('Cim', 2 << 20), ('wo', 2 << 20)], 255, T0)
    stamp(a, 6)
    wgt(a, 6)
    stamp_flush(a, 7, 128, 44)
    wgt_flush(a, 7, 0)
    a('s_endpgm')
```

```python
import sys, os
sys.path.insert(0, os.path.dirname(os.path.abspath(__file__)))
from asmlib import Asm
from gemm import Gemm, Ring, Stream

NAME = 'concat_heads__linear_kernel_hedgehog__ssm_conv_s5__prompt'

WS_O = 0
WS_H = 4 << 20
WS_KVP = 12 << 20
WS_ZP = 15 << 20
WS_AGG = 16 << 20

P = dict(Ax='s[16:17]', wqkv='s[18:19]', wphi='s[20:21]', wo='s[22:23]', Bx='s[24:25]', Lre='s[26:27]',
         Lim='s[28:29]', Bre='s[30:31]', Bim='s[32:33]', Cre='s[34:35]', Cim='s[36:37]', logdt='s[38:39]',
         Dsk='s[40:41]', out='s[42:43]', dbg='s[44:45]', ws='s[46:47]')
PN = dict(Ax=16, wqkv=18, wphi=20, wo=22, Bx=24, Lre=26, Lim=28, Bre=30, Bim=32, Cre=34, Cim=36, logdt=38,
          Dsk=40, out=42, dbg=44, ws=46)


def srd(a, d, ptr, nbytes, off=0):
    p = PN[ptr]
    if off:
        a('s_add_u32 s%d, s%d, 0x%x' % (d, p, off))
        a('s_addc_u32 s%d, s%d, 0' % (d + 1, p + 1))
        a('s_and_b32 s%d, s%d, 0xffff' % (d + 1, d + 1))
    else:
        a('s_mov_b32 s%d, s%d' % (d, p))
        a('s_and_b32 s%d, s%d, 0xffff' % (d + 1, p + 1))
    a('s_mov_b32 s%d, 0x%x' % (d + 2, nbytes))
    a('s_mov_b32 s%d, 0x00020000' % (d + 3))


STAMP = os.environ.get('STAMP')
def stamp(a, i):
    if not STAMP:
        return
    a('s_memtime s[%d:%d]' % (80 + 2 * i, 81 + 2 * i))
    if i == 0:
        a('s_memrealtime s[94:95]')


WGT = os.environ.get('WGT')
def wgt(a, i):
    if not WGT:
        return
    a('s_memrealtime s[%d:%d]' % (80 + 2 * i, 81 + 2 * i))
    if i == 1:
        a('s_memtime s[94:95]')
    if i == 2:
        a('s_memtime s[100:101]')


def wgt_flush(a, n, slot):
    if not WGT:
        return
    a('s_waitcnt lgkmcnt(0)')
    srd(a, 96, 'ws', 1 << 20, (48 << 20) + slot * 65536)
    a('s_lshl_b32 s5, s2, 5')
    a('v_mov_b32 v1, 0')
    for i in range(n):
        a('v_mov_b32 v2, s%d' % (80 + 2 * i))
        a('buffer_store_dword v2, v1, s[96:99], s5 offen offset:%d' % (4 * i))
    a('s_sub_u32 s94, s100, s94')
    a('v_mov_b32 v2, s94')
    a('buffer_store_dword v2, v1, s[96:99], s5 offen offset:28')


def stamp_flush(a, n, wg=0, base=32):
    if not STAMP:
        return
    a('s_memrealtime s[100:101]')
    a('s_waitcnt lgkmcnt(0)')
    a('s_cmp_lg_u32 s2, %d' % wg)
    a('s_cbranch_scc1 stamp_skip_%d' % len(a.lines))
    lab = 'stamp_skip_%d' % (len(a.lines) - 1)
    srd(a, 96, 'dbg', 256)
    a('v_mov_b32 v1, 0')
    for i in range(n):
        a('v_mov_b32 v2, s%d' % (80 + 2 * i))
        a('buffer_store_dword v2, v1, s[96:99], 0 offen offset:%d' % (4 * i + 4 * base))
    a('v_mov_b32 v2, s94')
    a('buffer_store_dword v2, v1, s[96:99], 0 offen offset:%d' % (4 * base + 32))
    a('v_mov_b32 v2, s100')
    a('buffer_store_dword v2, v1, s[96:99], 0 offen offset:%d' % (4 * base + 36))
    a.label(lab)


def kernel_head(a, name, nwg):
    a.lines.append('.globl %s' % name)
    a.lines.append('.p2align 8')
    a.lines.append('.type %s,@function' % name)
    a.label(name)
    a('s_cmp_ge_u32 s2, %d' % nwg)
    a('s_cbranch_scc1 %s_exit' % name)
    a('s_load_dwordx16 s[16:31], s[0:1], 0')
    a('s_load_dwordx16 s[32:47], s[0:1], 64')
    stamp(a, 0)
    wgt(a, 0)


def lane_consts(a, v_lane, v_l31, v_hh, s_wave, vtmp):
    a('v_and_b32 v%d, 63, v0' % v_lane)
    a('v_and_b32 v%d, 31, v0' % v_l31)
    a('v_bfe_u32 v%d, v0, 5, 1' % v_hh)
    a('v_lshrrev_b32 v%d, 6, v0' % vtmp)
    a('v_readfirstlane_b32 %s, v%d' % (s_wave, vtmp))


def kc_read_addrs(a, vdst4, v_l31, v_hh, s_rowbase128, tilebase, t0, t1):
    a('v_bfe_u32 v%d, v%d, 1, 3' % (t0, v_l31))
    a('v_lshlrev_b32 v%d, 7, v%d' % (t1, v_l31))
    a('v_add_u32 v%d, %s, v%d' % (t1, s_rowbase128, t1))
    if tilebase:
        a('v_add_u32 v%d, 0x%x, v%d' % (t1, tilebase, t1))
    for j in range(4):
        d = vdst4[j]
        a('v_or_b32 v%d, %d, v%d' % (d, 2 * j, v_hh))
        a('v_xor_b32 v%d, v%d, v%d' % (d, d, t0))
        a('v_lshl_add_u32 v%d, v%d, 4, v%d' % (d, d, t1))


def kn_read_addr(a, vd0, vd1, v_lane, s_base, tilebase, t0, t1):
    a('v_bfe_u32 v%d, v%d, 5, 1' % (t0, v_lane))
    a('v_lshlrev_b32 v%d, 10, v%d' % (vd0, t0))
    a('v_bfe_u32 v%d, v%d, 2, 2' % (t0, v_lane))
    a('v_lshl_add_u32 v%d, v%d, 7, v%d' % (vd0, t0, vd0))
    a('v_bfe_u32 v%d, v%d, 3, 1' % (t0, v_lane))
    a('v_lshl_add_u32 v%d, v%d, 6, v%d' % (vd0, t0, vd0))
    a('v_bfe_u32 v%d, v%d, 4, 1' % (t0, v_lane))
    a('v_lshl_add_u32 v%d, v%d, 5, v%d' % (vd0, t0, vd0))
    a('v_and_b32 v%d, 3, v%d' % (t0, v_lane))
    a('v_lshl_add_u32 v%d, v%d, 3, v%d' % (vd0, t0, vd0))
    if vd1 is not None:
        a('v_xor_b32 v%d, 64, v%d' % (vd1, vd0))
    a('v_add_u32 v%d, %s, v%d' % (vd0, s_base, vd0))
    if tilebase:
        a('v_add_u32 v%d, 0x%x, v%d' % (vd0, tilebase, vd0))
    if vd1 is not None:
        a('v_add_u32 v%d, %s, v%d' % (vd1, s_base, vd1))
        if tilebase:
            a('v_add_u32 v%d, 0x%x, v%d' % (vd1, tilebase, vd1))


def gen_k3(a):
    name = 'k3_kernel'
    kernel_head(a, name, 256)
    V_LANE, V_L31, V_HH, T0, T1, T2 = 1, 2, 3, 4, 5, 6
    VA = [8, 9, 10, 11]
    VB = [12, 13, 14, 15]
    VDA = [16, 17, 18, 19]
    VDB = [20, 21, 22, 23]
    V_OUT, V_X, V_LW, V_LR = 24, 25, 26, 27
    V_D = 28
    ACC = 64
    FR = 128
    XR = 192
    S_WAVE, S_CNT, S_WROFF, S_D0, S_D1, S_TMP = 's64', 's65', 's66', 's67', 's68', 's69'
    S_OA, S_OB, S_MA, S_MB, S_MT, S_NT, S_WM, S_WN, S_T2 = 's70', 's71', 's72', 's73', 's74', 's75', 's76', 's77', 's78'
    NB, ST = 4, 32768
    lane_consts(a, V_LANE, V_L31, V_HH, S_WAVE, T0)
    a('s_and_b32 s3, s2, 7')
    a('s_lshr_b32 s4, s2, 3')
    a('s_and_b32 s5, s4, 3')
    a('s_and_b32 s6, s3, 3')
    a('s_lshl_b32 s6, s6, 2')
    a('s_add_u32 %s, s6, s5' % S_MT)
    a('s_bfe_u32 s5, s4, 0x20002')
    a('s_lshr_b32 s6, s3, 2')
    a('s_lshl_b32 s6, s6, 2')
    a('s_add_u32 %s, s6, s5' % S_NT)
    a('s_lshr_b32 %s, %s, 1' % (S_WM, S_WAVE))
    a('s_and_b32 %s, %s, 1' % (S_WN, S_WAVE))
    a('s_lshl_b32 %s, %s, 12' % (S_MA, S_WAVE))
    a('s_add_u32 %s, %s, 16384' % (S_MB, S_MA))
    if os.environ.get('NO_ROT3'):
        a('s_mov_b32 s11, 0')
    else:
        a('s_lshl_b32 s5, s3, 1')
        a('s_bfe_u32 s6, s4, 0x10004')
        a('s_add_u32 s11, s5, s6')
    a('s_lshl_b32 %s, s11, 7' % S_OA)
    a('s_mov_b32 %s, %s' % (S_OB, S_OA))
    a('s_mov_b32 s10, 0')
    if os.environ.get('EXP_STAG'):
        a('s_lshr_b32 s5, s2, 3')
        a('s_and_b32 s5, s5, 15')
        a('s_lshl_b32 %s, s5, 7' % S_OA)
        a('s_lshl_b32 %s, s5, 7' % S_OB)
    if os.environ.get('EXP_ONLYB'):
        a('s_bitcmp1_b32 s4, 4')
        a('s_cbranch_scc1 k3_kernel_exit')
    a('s_lshl_b32 %s, %s, 13' % (S_TMP, S_WM))
    kc_read_addrs(a, VA, V_L31, V_HH, S_TMP, 0, T0, T1)
    a('s_lshl_b32 s5, %s, 7' % S_MT)
    a('s_lshl_b32 s6, %s, 6' % S_WM)
    a('s_add_u32 s5, s5, s6')
    a('s_lshl_b32 s6, %s, 7' % S_NT)
    a('s_lshl_b32 s7, %s, 6' % S_WN)
    a('s_add_u32 s6, s6, s7')
    a('v_lshrrev_b32 v%d, 4, v%d' % (T0, V_LANE))
    a('v_add_u32 v%d, s5, v%d' % (T0, T0))
    a('v_and_b32 v%d, 15, v%d' % (T1, V_LANE))
    a('v_lshl_add_u32 v%d, v%d, 2, s6' % (T1, T1))
    a('v_lshlrev_b32 v%d, 13, v%d' % (V_OUT, T0))
    a('v_lshl_add_u32 v%d, v%d, 2, v%d' % (V_OUT, T1, V_OUT))
    a('v_lshlrev_b32 v%d, 11, v%d' % (V_X, T0))
    a('v_lshl_add_u32 v%d, v%d, 1, v%d' % (V_X, T1, V_X))
    a('v_lshlrev_b32 v%d, 1, v%d' % (T2, T1))
    a('s_lshl_b32 s5, %s, 14' % S_WAVE)
    a('v_lshlrev_b32 v%d, 10, v%d' % (V_LW, V_HH))
    a('v_lshl_add_u32 v%d, v%d, 2, v%d' % (V_LW, V_L31, V_LW))
    a('v_add_u32 v%d, s5, v%d' % (V_LW, V_LW))
    a('v_lshl_add_u32 v%d, v%d, 4, s5' % (V_LR, V_LANE))
    a('s_waitcnt lgkmcnt(0)')
    srd(a, 56, 'out', 2048 * 2048 * 4)
    a('s_bitcmp1_b32 s4, 4')
    a('s_cbranch_scc1 k3_outa')

    def dma_kc_voffs(vd, s_row0, pitch_log2):
        a('s_lshl_b32 %s, %s, 5' % (S_T2, S_WAVE))
        a('s_add_u32 %s, %s, %s' % (S_T2, S_T2, s_row0))
        a('v_lshrrev_b32 v%d, 3, v%d' % (T0, V_LANE))
        a('v_add_u32 v%d, %s, v%d' % (T0, S_T2, T0))
        if os.environ.get('EXP_PITCH'):
            a('v_mul_u32_u24 v%d, %d, v%d' % (T0, (1 << pitch_log2) - 128 * int(os.environ['EXP_PITCH']), T0))
        else:
            a('v_lshlrev_b32 v%d, %d, v%d' % (T0, pitch_log2, T0))
        a('v_lshrrev_b32 v%d, 4, v%d' % (T1, V_LANE))
        a('v_and_b32 v%d, 7, v%d' % (T2, V_LANE))
        a('v_xor_b32 v%d, v%d, v%d' % (T1, T1, T2))
        for j in range(4):
            a('v_xor_b32 v%d, %d, v%d' % (T2, (j & 1) * 4, T1))
            a('v_lshl_add_u32 v%d, v%d, 4, v%d' % (vd[j], T2, T0))
            c = (8 * j << pitch_log2) - j * 1024
            if os.environ.get('EXP_PITCH'):
                c = 8 * j * ((1 << pitch_log2) - 128 * int(os.environ['EXP_PITCH'])) - j * 1024
            if c:
                a('v_add_u32 v%d, 0x%x, v%d' % (vd[j], c, vd[j]))

    ring = Ring(ST, NB, ['s67', 's68', 's79', 's9'], S_TMP)
    common = dict(TM=2, TN=2, ringA=ring, ringB=ring, PD=2, NS=4, FR=FR, vA=VA, offA=[0, 4096],
                  acc=lambda tm, tn: 'v[%d:%d]' % (ACC + 16 * (2 * tm + tn), ACC + 16 * (2 * tm + tn) + 15),
                  swap=lambda tm, tn: False,
                  s_cnt=S_CNT)

    srd(a, 60, 'Dsk', 2048)
    a('buffer_load_dwordx2 v[32:33], v%d, s[60:63], 0 offen' % T2)
    srd(a, 48, 'ws', 8 << 20, WS_H)
    srd(a, 52, 'Cre', 2 << 20)
    srd(a, 96, 'Bx', 4 << 20)
    a('s_lshl_b32 s5, %s, 7' % S_MT)
    dma_kc_voffs(VDA, 's5', 12)
    a('s_lshl_b32 s5, %s, 7' % S_NT)
    dma_kc_voffs(VDB, 's5', 11)
    a('s_lshl_b32 %s, %s, 13' % (S_TMP, S_WN))
    kc_read_addrs(a, VB, V_L31, V_HH, S_TMP, 16384, T0, T1)
    g = Gemm(a, pfx='k3b', bmode='kc', vB=VB, offB=[0, 4096],
             streams=[Stream(ring, [(S_MA, [(VDA[j], 's[48:51]', S_OA, j * 1024) for j in range(4)]),
                                    (S_MB, [(VDB[j], 's[52:55]', S_OB, j * 1024) for j in range(4)])],
                             ['s_add_u32 %s, %s, 128' % (S_OB, S_OB), 's_and_b32 %s, %s, 0x7ff' % (S_OB, S_OB),
                              's_or_b32 %s, %s, s10' % (S_OA, S_OB)])], **common)
    sw = ['s_mov_b32 s52, s36', 's_and_b32 s53, s37, 0xffff', 's_mov_b32 s10, 0x800',
          's_or_b32 %s, %s, s10' % (S_OA, S_OB)]
    xl = []
    for i in range(16):
        xl.append(['s_mov_b32 %s, 0x%x' % (S_T2, i * 4 * 2048),
                   'buffer_load_dwordx2 v[%d:%d], v%d, s[96:99], %s offen' % (XR + 2 * i, XR + 2 * i + 1, V_X, S_T2)])
    def midx(n):
        for grp in xl:
            for x in grp:
                a(x)
    g.mid = midx
    g.n_extra_vm = 16
    stamp(a, 1)
    wgt(a, 1)
    g.run(32, switch=(16 - NB, sw))
    stamp(a, 2)
    wgt(a, 2)

    def stage_out():
        for tm in range(2):
            for tn in range(2):
                for r in range(16):
                    row = 32 * tm + 8 * (r >> 2) + (r & 3)
                    a('ds_write_b32 v%d, v%d offset:%d' % (V_LW, ACC + 16 * (2 * tm + tn) + r, row * 256 + tn * 128))
        a('s_waitcnt lgkmcnt(0)')
        for i in range(16):
            a('ds_read_b128 v[%d:%d], v%d offset:%d' % (FR + 4 * i, FR + 4 * i + 3, V_LR, i * 1024))

    a('v_add_u32 v%d, 0x1000, v%d' % (V_OUT, V_OUT))
    a('v_lshlrev_b32 v%d, 16, v32' % V_D)
    a('v_and_b32 v%d, 0xffff0000, v32' % (V_D + 1))
    a('v_lshlrev_b32 v%d, 16, v33' % (V_D + 2))
    a('v_and_b32 v%d, 0xffff0000, v33' % (V_D + 3))
    stage_out()
    a('s_waitcnt vmcnt(0)')
    for i in range(16):
        x = XR + 2 * i
        t = ACC + 4 * (i & 3)
        c = FR + 4 * i
        a('v_lshlrev_b32 v%d, 16, v%d' % (t, x))
        a('v_and_b32 v%d, 0xffff0000, v%d' % (t + 1, x))
        a('v_lshlrev_b32 v%d, 16, v%d' % (t + 2, x + 1))
        a('v_and_b32 v%d, 0xffff0000, v%d' % (t + 3, x + 1))
        a('s_mov_b32 %s, 0x%x' % (S_T2, i * 4 * 8192))
        a('s_waitcnt lgkmcnt(%d)' % (15 - i))
        a('v_pk_fma_f32 v[%d:%d], v[%d:%d], v[%d:%d], v[%d:%d]' % (c, c + 1, t, t + 1, V_D, V_D + 1, c, c + 1))
        a('v_pk_fma_f32 v[%d:%d], v[%d:%d], v[%d:%d], v[%d:%d]' % (c + 2, c + 3, t + 2, t + 3, V_D + 2, V_D + 3, c + 2, c + 3))
        a('buffer_store_dwordx4 v[%d:%d], v%d, s[56:59], %s offen%s' % (c, c + 3, V_OUT, S_T2, os.environ.get('STOUT', '')))
    stamp(a, 3)
    wgt(a, 3)
    if STAMP or WGT:
        a('s_waitcnt vmcnt(0)')
    stamp(a, 4)
    for i in (4, 5, 6):
        wgt(a, i)
    stamp_flush(a, 5)
    wgt_flush(a, 7, 1)
    a('s_endpgm')

    a.label('k3_outa')
    srd(a, 48, 'ws', 4 << 20, WS_O)
    srd(a, 52, 'wo', 2 << 20)
    a('s_lshl_b32 %s, s11, 17' % S_OB)
    a('s_lshl_b32 s5, %s, 7' % S_MT)
    dma_kc_voffs(VDA, 's5', 11)
    a('s_lshl_b32 s5, %s, 5' % S_WN)
    a('v_lshrrev_b32 v%d, 3, v%d' % (T0, V_LANE))
    a('v_add_u32 v%d, s5, v%d' % (T0, T0))
    a('v_lshlrev_b32 v%d, 11, v%d' % (T0, T0))
    a('s_lshl_b32 s5, %s, 8' % S_NT)
    a('s_lshl_b32 s6, %s, 7' % S_WM)
    a('s_add_u32 s5, s5, s6')
    a('v_add_u32 v%d, s5, v%d' % (T0, T0))
    a('v_bfe_u32 v%d, v%d, 4, 1' % (T1, V_LANE))
    a('v_lshlrev_b32 v%d, 2, v%d' % (T1, T1))
    a('v_and_b32 v%d, 7, v%d' % (T2, V_LANE))
    a('v_xor_b32 v%d, v%d, v%d' % (T1, T1, T2))
    a('v_lshl_add_u32 v%d, v%d, 4, v%d' % (T0, T1, T0))
    for j in range(4):
        c = 8 * j * 2048 - j * 1024
        a('v_add_u32 v%d, 0x%x, v%d' % (VDB[j], c, T0))
    a('s_lshl_b32 %s, %s, 13' % (S_TMP, S_WN))
    kn_read_addr(a, VB[0], VB[1], V_LANE, S_TMP, 16384, T0, T1)
    g = Gemm(a, pfx='k3a', bmode='kn', vB=VB[:2], offB=[(0, 0), (1, 0)],
             streams=[Stream(ring, [(S_MA, [(VDA[j], 's[48:51]', S_OA, j * 1024) for j in range(4)]),
                                    (S_MB, [(VDB[j], 's[52:55]', S_OB, j * 1024) for j in range(4)])],
                             ['s_add_u32 %s, %s, 128' % (S_OA, S_OA), 's_and_b32 %s, %s, 0x7ff' % (S_OA, S_OA),
                              's_lshl_b32 %s, %s, 10' % (S_OB, S_OA)])], **common)
    wgt(a, 1)
    g.run(16)
    wgt(a, 2)
    stage_out()
    for i in range(16):
        c = FR + 4 * i
        t = ACC + 2 * (i & 3)
        a('s_mov_b32 %s, 0x%x' % (S_T2, i * 4 * 8192))
        a('s_waitcnt lgkmcnt(%d)' % (15 - i))
        a('v_cvt_pk_bf16_f32 v%d, v%d, v%d' % (t, c, c + 1))
        a('v_cvt_pk_bf16_f32 v%d, v%d, v%d' % (t + 1, c + 2, c + 3))
        a('v_lshlrev_b32 v%d, 16, v%d' % (c, t))
        a('v_and_b32 v%d, 0xffff0000, v%d' % (c + 1, t))
        a('v_lshlrev_b32 v%d, 16, v%d' % (c + 2, t + 1))
        a('v_and_b32 v%d, 0xffff0000, v%d' % (c + 3, t + 1))
        a('buffer_store_dwordx4 v[%d:%d], v%d, s[56:59], %s offen%s' % (c, c + 3, V_OUT, S_T2, os.environ.get('STOUT', '')))
    wgt(a, 3)
    if WGT:
        a('s_waitcnt vmcnt(0)')
    for i in (4, 5, 6):
        wgt(a, i)
    wgt_flush(a, 7, 1)
    a.label(name + '_exit')
    a('s_endpgm')


def descriptor(name, vgpr, accum, sgpr=102):
    return f'''.amdhsa_kernel {name}
  .amdhsa_next_free_vgpr {vgpr}
  .amdhsa_next_free_sgpr {sgpr}
  .amdhsa_accum_offset {accum}
  .amdhsa_group_segment_fixed_size 0
  .amdhsa_kernarg_size 128
  .amdhsa_user_sgpr_count 2
  .amdhsa_user_sgpr_kernarg_segment_ptr 1
  .amdhsa_system_sgpr_workgroup_id_x 1
.end_amdhsa_kernel
'''


def main():
    which = sys.argv[1] if len(sys.argv) > 1 else 'all'
    outp = sys.argv[2] if len(sys.argv) > 2 else 'cdna_kernels/%s.s' % NAME
    ref = open('cdna_kernels/%s.s.ref' % NAME).read().split('\n')
    head = [l for l in ref if l.startswith(';') and '@launch' not in l and 'Override launch' not in l
            and 'grid=ceil' not in l]
    launches = []
    a = Asm()
    descs = []
    if which in ('all', 'k1'):
        import k1
        k1.gen_k1(a)
        launches.append('; @launch kernel=k1_kernel grid=(256,1,1) block=(512,1,1) lds=%d' % k1.LDS_BYTES)
        descs.append(descriptor('k1_kernel', 256, 256))
    if which == 'k3' or (which == 'all' and os.environ.get('NO_FUSE')):
        gen_k3(a)
        launches.append('; @launch kernel=k3_kernel grid=(256,1,1) block=(256,1,1) lds=131072')
        descs.append(descriptor('k3_kernel', 256, 256))
    txt = '\n'.join(head) + '\n' + '\n'.join(launches) + '\n'
    txt += '.amdgcn_target "amdgcn-amd-amdhsa--gfx950"\n.text\n'
    if os.environ.get('NO_STORE'):
        a.lines = [l for l in a.lines if not (l.startswith('buffer_store') and 's[96:99]' not in l)]
    if os.environ.get('NO_XLOAD'):
        a.lines = [l for l in a.lines if not l.startswith('buffer_load_ushort')]
    txt += a.finish()
    txt += '.section .rodata,"a"\n'
    for d in descs:
        txt += '.p2align 6\n' + d
    if len(launches) == 1 and which == 'all' and not os.environ.get('LIST'):
        txt = txt.replace('; @launch kernel=k1_kernel ', '; @launch ').replace('k1_kernel', NAME + '_kernel')
    open(outp, 'w').write(txt)
    print('wrote', outp, len(txt), 'bytes')


if __name__ == '__main__':
    main()
```

```python
from asmlib import interleave
import os
NO_DMA = os.environ.get('NO_DMA'); NO_MFMA = os.environ.get('NO_MFMA'); NO_READS = os.environ.get('NO_READS')


class Ring:
    def __init__(self, ST, NB, sregs, s_tmp):
        self.ST, self.NB, self.d, self.s_tmp = ST, NB, sregs, s_tmp
        assert len(sregs) >= NB

    def init(self):
        out = []
        for i in range(self.NB):
            v = self.ST if i < self.NB - 1 else -(self.NB - 1) * self.ST
            out.append('s_mov_b32 %s, 0x%x' % (self.d[i], v & 0xffffffff))
        return out

    def rotate(self):
        if self.NB == 2:
            return ['s_sub_u32 %s, 0, %s' % (self.d[0], self.d[0]), 's_sub_u32 %s, 0, %s' % (self.d[1], self.d[1])]
        out = ['s_mov_b32 %s, %s' % (self.s_tmp, self.d[0])]
        for i in range(self.NB - 1):
            out.append('s_mov_b32 %s, %s' % (self.d[i], self.d[i + 1]))
        out.append('s_mov_b32 %s, %s' % (self.d[self.NB - 1], self.s_tmp))
        return out


class Stream:
    def __init__(self, ring, groups, adv, mod=''):
        self.ring, self.groups, self.adv, self.mod = ring, groups, adv, mod
        self.n = sum(len(g[1]) for g in groups)

    def batch(self, delta):
        out = []
        for (sm0, lst) in self.groups:
            for i, (vo, srd, so, io) in enumerate(lst):
                ins = 'buffer_load_dwordx4 v%d, %s, %s offen offset:%d%s lds' % (vo, srd, so, io, self.mod)
                if NO_DMA:
                    ins = 's_nop 0'
                if i == 0:
                    out.append(['s_mov_b32 m0, %s' % sm0, 's_add_u32 %s, %s, %s' % (sm0, sm0, delta), ins])
                else:
                    out.append([ins])
        for x in self.adv:
            out[-1].extend(x if isinstance(x, (list, tuple)) else [x])
        return out


class Gemm:
    def __init__(self, a, **cfg):
        self.a = a
        self.mid = None
        self.streams = []
        self.pro_first = None
        self.pro_between = None
        self.__dict__.update(cfg)
        self.SETSZ = 4 * (self.TM + self.TN)
        self.R = self.TM + (self.TN if self.bmode == 'kc' else 2 * self.TN)
        self.nloop = 0
        self.rings = [self.ringA] + ([self.ringB] if self.ringB is not self.ringA else [])
        self.NP = int(os.environ.get('NP' + self.pfx[:2], cfg.get('NP', 4)))

    def fragA(self, st, tm):
        return self.FR + st * self.SETSZ + 4 * tm

    def fragB(self, st, tn):
        return self.FR + st * self.SETSZ + 4 * self.TM + 4 * tn

    def reads(self, j, st):
        ra = []
        for tm in range(self.TM):
            b = self.fragA(st, tm)
            ra.append('ds_read_b128 v[%d:%d], v%d offset:%d' % (b, b + 3, self.vA[j], self.offA[tm]))
        rb = []
        for tn in range(self.TN):
            b = self.fragB(st, tn)
            if self.bmode == 'kc':
                rb.append('ds_read_b128 v[%d:%d], v%d offset:%d' % (b, b + 3, self.vB[j], self.offB[tn]))
            else:
                ri, off = self.offB[tn]
                for u in range(2):
                    rb.append('ds_read_b64_tr_b16 v[%d:%d], v%d offset:%d' %
                              (b + 2 * u, b + 2 * u + 1, self.vB[ri], off + j * 2048 + u * 512))
        out = [ra[0]] + rb + ra[1:]
        if NO_READS:
            return ['s_nop 0'] * len(out)
        return out

    def mfmas(self, st, zero=False):
        out = []
        for tm in range(self.TM):
            for tn in range(self.TN):
                fa = self.fragA(st, tm); fb = self.fragB(st, tn)
                A = 'v[%d:%d]' % (fa, fa + 3); B = 'v[%d:%d]' % (fb, fb + 3)
                if self.swap(tm, tn):
                    A, B = B, A
                acc = self.acc(tm, tn)
                if NO_MFMA and not zero:
                    out.append('s_nop 0')
                else:
                    out.append('v_mfma_f32_32x32x16_bf16 %s, %s, %s, %s' % (acc, A, B, '0' if zero else acc))
        return out

    def emit(self, lst):
        for f in lst:
            if isinstance(f, (list, tuple)):
                for x in f:
                    self.a(x)
            else:
                self.a(f)

    def active(self, sig):
        return [i for i, s in enumerate(self.streams) if sig + s.ring.NB < self.KS]

    def parts(self, act):
        if not act:
            return []
        items = []
        for i in act:
            n = self.streams[i].n
            items += [(i, k) for k in range(n)]
        NP = self.NP
        n = len(items)
        cuts = [(p * n) // NP for p in range(NP + 1)]
        out = []
        for p in range(NP):
            late = p >= self.PD
            lst = []
            for (i, k) in items[cuts[p]:cuts[p + 1]]:
                st = self.streams[i]
                d = st.ring.d[st.ring.NB - 1] if late else st.ring.d[0]
                lst.append(st.batch(d)[k])
            out.append(lst)
        return out

    def simulate(self):
        order = []
        maxnb = max([s.ring.NB for s in self.streams] + [0])
        self.pro = []
        if self.pro_first is not None:
            for st in range(self.streams[self.pro_first].ring.NB):
                self.pro.append((self.pro_first, st))
            self.pro.append(None)
        for st in range(maxnb):
            for i, s in enumerate(self.streams):
                if st < s.ring.NB and i != self.pro_first:
                    self.pro.append((i, st))
        for p in self.pro:
            if p is not None:
                order += [p] * self.streams[p[0]].n
        self.npro = len(order)
        order += [(-1, 1 << 30)] * getattr(self, 'n_extra_vm', 0)

        def allowed(stage, upto):
            last = -1
            for idx in range(upto):
                if order[idx][1] <= stage:
                    last = idx
            return upto - 1 - last
        self.vm_first = allowed(0, len(order))
        vm = []
        for sig in range(self.KS - 1):
            vm.append(allowed(sig + 1, len(order)))
            for i in self.active(sig):
                order += [(i, sig + self.streams[i].ring.NB)] * self.streams[i].n
        return vm

    def prologue(self):
        a = self.a
        for p in self.pro:
            if p is None:
                self.pro_between()
                continue
            s, st = self.streams[p[0]], p[1]
            d = s.ring.ST if st < s.ring.NB - 1 else -(s.ring.NB - 1) * s.ring.ST
            self.emit(s.batch('0x%x' % (d & 0xffffffff)))
        for r in self.rings:
            self.emit(r.init())
        if self.mid:
            self.mid(self.npro)
        if self.streams:
            a('s_waitcnt vmcnt(%d)' % self.vm_first)
        a('s_barrier')
        for j in range(self.PD):
            self.emit(self.reads(j, j % self.NS))
            a('v_add_u32 v%d, %s, v%d' % (self.vA[j], self.ringA.d[0], self.vA[j]))
            if self.bmode == 'kc':
                a('v_add_u32 v%d, %s, v%d' % (self.vB[j], self.ringB.d[0], self.vB[j]))

    def stage(self, act, pend, last, vm, first=False, extra=None, pre_dma=None):
        a = self.a
        PD, NS = self.PD, self.NS
        pnew = self.parts(act)
        pold = self.parts(pend)
        for s in range(4):
            if s == 4 - PD and not last:
                if self.streams:
                    a('s_waitcnt vmcnt(%d) lgkmcnt(0)' % vm)
                else:
                    a('s_waitcnt lgkmcnt(0)')
                a('s_barrier')
            else:
                ahead = PD - 1
                if last:
                    ahead = min(ahead, 3 - s)
                a('s_waitcnt lgkmcnt(%d)' % (ahead * self.R))
            fill = []
            dpart = []
            if s >= 4 - PD:
                k = s - (4 - PD)
                if k < len(pnew):
                    dpart = pnew[k]
            else:
                k = s + PD
                if k < len(pold):
                    dpart = pold[k]
            j = s + PD
            if j < 4 or not last:
                jj = j % 4
                fill += self.reads(jj, j % NS)
                di = 0 if j < 4 else 1
                fill.append('v_add_u32 v%d, %s, v%d' % (self.vA[jj], self.ringA.d[di], self.vA[jj]))
                if self.bmode == 'kc':
                    fill.append('v_add_u32 v%d, %s, v%d' % (self.vB[jj], self.ringB.d[di], self.vB[jj]))
                elif j == 3:
                    for r in self.vB:
                        fill.append('v_add_u32 v%d, %s, v%d' % (r, self.ringB.d[0], r))
            if pre_dma and s == 4 - PD:
                fill.append(list(pre_dma))
            fill += dpart
            if extra and s in extra:
                fill += extra[s]
            if s == 3 and not last:
                for r in self.rings:
                    fill += r.rotate()
            for l in interleave(self.mfmas(s % NS, zero=(first and s == 0)), fill):
                a(l)

    def run(self, KS, switch=None, tail_extra=None):
        a = self.a
        self.KS = KS
        vm = self.simulate()
        self.prologue()
        allst = list(range(len(self.streams)))
        desc = []
        for sig in range(KS):
            act = self.active(sig) if sig < KS - 1 else []
            pend = self.active(sig - 1) if sig > 0 else []
            special = (sig == 0) or (sig == KS - 1) or (switch and switch[0] == sig) or \
                      (tail_extra and sig in tail_extra)
            desc.append((tuple(act), tuple(pend), bool(special), vm[sig] if (sig < KS - 1 and sig >= 3) else -1))
        sig = 0
        while sig < KS:
            act, pend, special = desc[sig][:3]
            n = 1
            if not special:
                while sig + n < KS and desc[sig + n][:3] == desc[sig][:3] and \
                        (desc[sig + n][3] == desc[sig + n - 1][3] or desc[sig + n - 1][3] == -1):
                    n += 1
            if n >= 2:
                lab = '%s_L%d' % (self.pfx, self.nloop); self.nloop += 1
                a('s_mov_b32 %s, %d' % (self.s_cnt, n))
                a.label(lab)
                self.stage(act, pend, False, min(vm[sig:sig + n]))
                a('s_sub_u32 %s, %s, 1' % (self.s_cnt, self.s_cnt))
                a('s_cmp_lg_u32 %s, 0' % self.s_cnt)
                a('s_cbranch_scc1 %s' % lab)
            else:
                last = sig == KS - 1
                self.stage(act, pend, last, None if last else vm[sig], first=(sig == 0),
                           extra=(tail_extra.get(sig) if tail_extra else None),
                           pre_dma=(switch[1] if switch and switch[0] == sig else None))
            sig += n
```

```python
import os
from gemm import Gemm, Ring, Stream
from gen import srd, kernel_head, lane_consts, kc_read_addrs, kn_read_addr, stamp, stamp_flush, wgt, wgt_flush
from gen import WS_O, WS_H, WS_KVP, WS_ZP, WS_AGG

LDS_BYTES = 147456
LOG2E = 0x3fb8aa3b

V_LANE, V_L31, V_HH, T0, T1, T2, T3 = 1, 2, 3, 4, 5, 6, 7
S_WAVE, S_CNT, S_WROFF, S_D0, S_D1, S_TMP, S_ST = 's64', 's65', 's66', 's67', 's68', 's69', 's79'
S_OA, S_MA, S_MT, S_NT, S_WM, S_WN, S_T2 = 's70', 's72', 's74', 's75', 's76', 's77', 's78'
S_L2E, S_HD = 's8', 's10'
SPIN_MAX = 1 << 21
FUSE = not os.environ.get('NO_FUSE')
WGTA = bool(os.environ.get('WGTA'))
PDA = int(os.environ.get('PDA', '1')); PDB = int(os.environ.get('PDB', '1'))
ROT = not os.environ.get('NO_ROT')
PFD = int(os.environ.get('PFD', '4'))
EARLYPOLL = bool(os.environ.get('EARLYPOLL'))
S_MA2 = 's73'
S_O2, S_ADV2, S_END2 = 's71', 's11', 's15'
VD = [13, 14, 15, 16, 17, 18, 19, 20]
V_PFD = 47


def vr(b, n):
    return 'v[%d:%d]' % (b, b + n - 1)


def wrap_adv(so, adv, end):
    return ['s_add_u32 %s, %s, %s' % (so, so, adv),
            ['s_cmp_eq_u32 %s, %s' % (so, end), 's_cselect_b32 %s, 0, %s' % (so, so)]]


def set_stream(a, so, adv, end, step, nsteps, lead):
    a('s_add_u32 s5, s7, %d' % lead)
    a('s_and_b32 s5, s5, %d' % (nsteps - 1))
    a('s_mul_i32 %s, s5, 0x%x' % (so, step))
    a('s_mov_b32 %s, 0x%x' % (adv, step))
    a('s_mov_b32 %s, 0x%x' % (end, step * nsteps))


def kc_dma_voffs(a, s_row0, permute):
    if not permute:
        a('v_lshrrev_b32 v%d, 3, v%d' % (T0, V_LANE))
    else:
        a('v_bfe_u32 v%d, v%d, 3, 2' % (T0, V_LANE))
        a('v_lshl_add_u32 v%d, v%d, 5, v%d' % (T0, V_HH, T0))
    a('v_add_u32 v%d, %s, v%d' % (T0, s_row0, T0))
    a('v_lshlrev_b32 v%d, 11, v%d' % (T0, T0))
    a('v_lshrrev_b32 v%d, 4, v%d' % (T1, V_LANE))
    a('v_and_b32 v%d, 7, v%d' % (T2, V_LANE))
    a('v_xor_b32 v%d, v%d, v%d' % (T1, T1, T2))
    for j in range(8):
        a('v_xor_b32 v%d, %d, v%d' % (T2, (j & 1) * 4, T1))
        a('v_lshl_add_u32 v%d, v%d, 4, v%d' % (VD[j], T2, T0))
        rows = (8 * j) if not permute else (16 * (j >> 2) + 4 * (j & 3))
        c = rows * 2048 - (j & 3) * 1024
        if c:
            a('v_add_u32 v%d, 0x%x, v%d' % (VD[j], c, VD[j]))


def poll(a, tag, v_off, v_tmp, s_mask_or_count, mode):
    a('s_cmp_lg_u32 %s, 0' % S_WAVE)
    a('s_cbranch_scc1 %s_done' % tag)
    a('s_mov_b32 s5, 0')
    a.label('%s_loop' % tag)
    a('global_load_dword v%d, v%d, s[44:45] sc1' % (v_tmp, v_off))
    a('s_waitcnt vmcnt(0)')
    a('v_readfirstlane_b32 s6, v%d' % v_tmp)
    a('s_nop 3')
    if mode == 'ge':
        a('s_cmp_ge_u32 s6, %s' % s_mask_or_count)
    else:
        a('s_and_b32 s6, s6, %s' % s_mask_or_count)
        a('s_cmp_eq_u32 s6, %s' % s_mask_or_count)
    a('s_cbranch_scc1 %s_done' % tag)
    a('s_sleep 1')
    a('s_add_u32 s5, s5, 1')
    a('s_cmp_lt_u32 s5, %d' % SPIN_MAX)
    a('s_cbranch_scc1 %s_loop' % tag)
    a.label('%s_done' % tag)
    a('s_barrier')


def softmax_pm(a, PP, EP, EN, OUTP, OUTN, t):
    mx, mn, t1, t2 = t, t + 2, t + 4, t + 6
    a('v_max3_f32 v%d, v%d, v%d, v%d' % (mx, PP, PP + 1, PP + 2))
    a('v_min3_f32 v%d, v%d, v%d, v%d' % (mn, PP, PP + 1, PP + 2))
    for i in range(3, 15, 2):
        a('v_max3_f32 v%d, v%d, v%d, v%d' % (mx, mx, PP + i, PP + i + 1))
        a('v_min3_f32 v%d, v%d, v%d, v%d' % (mn, mn, PP + i, PP + i + 1))
    a('v_max_f32 v%d, v%d, v%d' % (mx, mx, PP + 15))
    a('v_min_f32 v%d, v%d, v%d' % (mn, mn, PP + 15))
    a('v_mov_b32 v%d, v%d' % (t1, mx))
    a('v_mov_b32 v%d, v%d' % (t2, mn))
    a('v_permlane32_swap_b32 v%d, v%d' % (mx, t1))
    a('v_permlane32_swap_b32 v%d, v%d' % (mn, t2))
    a('v_max_f32 v%d, v%d, v%d' % (mx, mx, t1))
    a('v_min_f32 v%d, v%d, v%d' % (mn, mn, t2))
    a('v_mul_f32 v%d, %s, v%d' % (mx, S_L2E, mx))
    a('v_mul_f32 v%d, %s, v%d' % (mn, S_L2E, mn))
    for i in range(0, 16, 2):
        a('v_pk_fma_f32 %s, %s, s[8:9], %s op_sel_hi:[1,1,0] neg_lo:[0,0,1] neg_hi:[0,0,1]' %
          (vr(EP + i, 2), vr(PP + i, 2), vr(mx, 2)))
        a('v_pk_fma_f32 %s, %s, s[8:9], %s op_sel_hi:[1,1,0] neg_lo:[1,0,0] neg_hi:[1,0,0]' %
          (vr(EN + i, 2), vr(PP + i, 2), vr(mn, 2)))
    for i in range(16):
        a('v_exp_f32 v%d, v%d' % (EP + i, EP + i))
        a('v_exp_f32 v%d, v%d' % (EN + i, EN + i))
    a('v_pk_add_f32 %s, %s, %s' % (vr(mx, 2), vr(EP, 2), vr(EP + 2, 2)))
    a('v_pk_add_f32 %s, %s, %s' % (vr(mn, 2), vr(EN, 2), vr(EN + 2, 2)))
    a('v_pk_add_f32 %s, %s, %s' % (vr(t1, 2), vr(EP + 4, 2), vr(EP + 6, 2)))
    a('v_pk_add_f32 %s, %s, %s' % (vr(t2, 2), vr(EN + 4, 2), vr(EN + 6, 2)))
    for i in (8, 12):
        a('v_pk_add_f32 %s, %s, %s' % (vr(mx, 2), vr(mx, 2), vr(EP + i, 2)))
        a('v_pk_add_f32 %s, %s, %s' % (vr(mn, 2), vr(mn, 2), vr(EN + i, 2)))
        a('v_pk_add_f32 %s, %s, %s' % (vr(t1, 2), vr(t1, 2), vr(EP + i + 2, 2)))
        a('v_pk_add_f32 %s, %s, %s' % (vr(t2, 2), vr(t2, 2), vr(EN + i + 2, 2)))
    a('v_pk_add_f32 %s, %s, %s' % (vr(mx, 2), vr(mx, 2), vr(t1, 2)))
    a('v_pk_add_f32 %s, %s, %s' % (vr(mn, 2), vr(mn, 2), vr(t2, 2)))
    a('v_add_f32 v%d, v%d, v%d' % (mx, mx, mx + 1))
    a('v_add_f32 v%d, v%d, v%d' % (mn, mn, mn + 1))
    a('v_mov_b32 v%d, v%d' % (t1, mx))
    a('v_mov_b32 v%d, v%d' % (t2, mn))
    a('v_permlane32_swap_b32 v%d, v%d' % (mx, t1))
    a('v_permlane32_swap_b32 v%d, v%d' % (mn, t2))
    a('v_add_f32 v%d, v%d, v%d' % (mx, mx, t1))
    a('v_add_f32 v%d, v%d, v%d' % (mn, mn, t2))
    a('v_rcp_f32 v%d, v%d' % (mx, mx))
    a('v_rcp_f32 v%d, v%d' % (mn, mn))
    for i in range(0, 16, 2):
        a('v_pk_mul_f32 %s, %s, %s op_sel_hi:[1,0]' % (vr(EP + i, 2), vr(EP + i, 2), vr(mx, 2)))
        a('v_pk_mul_f32 %s, %s, %s op_sel_hi:[1,0]' % (vr(EN + i, 2), vr(EN + i, 2), vr(mn, 2)))
    for k in range(8):
        a('v_cvt_pk_bf16_f32 v%d, v%d, v%d' % (OUTP + k, EP + 2 * k, EP + 2 * k + 1))
        a('v_cvt_pk_bf16_f32 v%d, v%d, v%d' % (OUTN + k, EN + 2 * k, EN + 2 * k + 1))


def prefetch_tail(a, items, vdst, vt):
    a('s_and_b32 s5, s2, 127')
    a('s_lshl_b32 s5, s5, 3')
    a('s_add_u32 s5, s5, %s' % S_WAVE)
    for (ptr, nbytes) in items:
        per = nbytes // 1024
        srd(a, 96, ptr, nbytes)
        a('s_mul_i32 s6, s5, %d' % per)
        a('v_min_u32 v%d, %d, v%d' % (vt, per // 128 - 1, V_LANE))
        a('v_lshlrev_b32 v%d, 7, v%d' % (vt, vt))
        a('buffer_load_dword v%d, v%d, s[96:99], s6 offen' % (vdst, vt))


def handoff_phase2(a, which):
    import p2
    tag = 'ho' + which
    base = 32 if which == 'b' else 40
    a('s_lshl_b32 s5, %s, 2' % S_MT)
    a('s_add_u32 s5, s5, %d' % (4 * base))
    a('v_mov_b32 v34, s5')
    a('v_mov_b32 v35, 1')
    a('s_waitcnt vmcnt(0) lgkmcnt(0)')
    a('s_barrier')
    a('s_cmp_lt_u32 %s, 4' % S_WAVE)
    a('s_cbranch_scc1 %s_go' % tag)
    a('s_endpgm')
    a.label('%s_go' % tag)
    a('s_cmp_lg_u32 %s, 0' % S_WAVE)
    a('s_cbranch_scc1 %s_nosig' % tag)
    a('s_mov_b64 exec, 1')
    a('global_atomic_add v34, v35, s[44:45] sc1')
    a('s_mov_b64 exec, -1')
    a.label('%s_nosig' % tag)
    wgt(a, 6 if WGTA else 3)
    a('s_lshl_b32 %s, %s, 1' % (S_MT, S_MT))
    a('s_and_b32 s5, %s, 1' % S_NT)
    a('s_add_u32 %s, %s, s5' % (S_MT, S_MT))
    a('s_lshr_b32 %s, %s, 1' % (S_NT, S_NT))
    a('s_and_b32 s5, s2, 7')
    a('s_lshl_b32 s11, s5, 1')
    if which == 'b':
        a('s_add_u32 s11, s11, 1')

    def wait_fn():
        poll(a, tag + '_poll', 34, T0, '16', 'ge')
        if not WGTA:
            wgt(a, 4)
    p2.phase2(a, which, wait_fn)


def gen_k1(a):
    name = 'k1_kernel'
    kernel_head(a, name, 256)
    lane_consts(a, V_LANE, V_L31, V_HH, S_WAVE, T0)
    a('s_and_b32 s3, s2, 7')
    a('s_lshr_b32 s4, s2, 3')
    a('s_and_b32 s5, s4, 3')
    a('s_and_b32 s6, s3, 1')
    a('s_lshl_b32 s6, s6, 2')
    a('s_add_u32 %s, s6, s5' % S_MT)
    a('s_bfe_u32 s5, s4, 0x20002')
    a('s_lshr_b32 s6, s3, 1')
    a('s_lshl_b32 s6, s6, 2')
    a('s_add_u32 %s, s6, s5' % S_NT)
    a('s_lshr_b32 %s, %s, 1' % (S_WM, S_WAVE))
    a('s_and_b32 %s, %s, 1' % (S_WN, S_WAVE))
    a('s_lshl_b32 %s, %s, 13' % (S_MA, S_WAVE))
    a('s_add_u32 %s, %s, 4096' % (S_MA2, S_MA))
    if ROT:
        a('s_lshl_b32 s5, s3, 1')
        a('s_bfe_u32 s6, s4, 0x10004')
        a('s_add_u32 s7, s5, s6')
    else:
        a('s_mov_b32 s7, 0')
    a('s_mov_b32 s8, 0x%x' % LOG2E)
    a('s_mov_b32 s9, 0x%x' % LOG2E)
    VA = [8, 9, 10, 11]
    a('s_lshl_b32 %s, %s, 13' % (S_TMP, S_WM))
    kc_read_addrs(a, VA, V_L31, V_HH, S_TMP, 0, T0, T1)
    a('s_waitcnt lgkmcnt(0)')
    a('s_bitcmp1_b32 s4, 4')
    a('s_cbranch_scc1 k1_B')
    gen_A(a, VA)
    a.label('k1_B')
    gen_B(a, VA)
    a.label(name + '_exit')
    a('s_endpgm')


S_MB, S_MB2 = 's66', 's78'


def run_roles(a, tag, ringA, ringB, streamB_groups, **cfg):
    a('s_cmp_ge_u32 %s, 4' % S_WAVE)
    a('s_cbranch_scc1 %s_r1' % tag)
    sa = Stream(ringA, [(S_MA, [(VD[j], 's[48:51]', S_OA, j * 1024) for j in range(4)]),
                        (S_MA2, [(VD[4 + j], 's[48:51]', S_OA, j * 1024) for j in range(4)])],
                ['s_add_u32 %s, %s, 128' % (S_OA, S_OA), 's_and_b32 %s, %s, 0x7ff' % (S_OA, S_OA)])
    sb = Stream(ringB, streamB_groups, wrap_adv(S_O2, S_ADV2, S_END2))
    g = Gemm(a, pfx=tag + 'd', streams=[sa, sb], ringA=ringA, ringB=ringB, **cfg)
    g.run(16)
    a('s_branch %s_join' % tag)
    a.label('%s_r1' % tag)
    g = Gemm(a, pfx=tag + 'n', streams=[], ringA=ringA, ringB=ringB, **cfg)
    g.run(16)
    a.label('%s_join' % tag)


BBASE = 98304
BBASE_A = 65536 if not os.environ.get('NO_SWAPRING') else 98304


def gen_A(a, VA):
    a.comment('==== A: qkv gemm')
    VB0 = 12
    WPH = 24
    VWR = 32
    VTR = 40
    V_OFF, V_ONE, V_O = 44, 45, 46
    V_OW, V_OR = 13, 47
    OBASE = 16384
    ACC = 48
    FR = 144
    AQ, AK, AV = ACC, ACC + 32, ACC + 64
    NB, ST = 2, 57344
    srd(a, 56, 'wphi', 65536)
    a('s_lshl_b32 %s, %s, 1' % (S_HD, S_NT))
    a('s_add_u32 %s, %s, %s' % (S_HD, S_HD, S_WN))
    a('v_lshlrev_b32 v%d, 8, v%d' % (T0, V_HH))
    a('v_lshl_add_u32 v%d, v%d, 1, v%d' % (T0, V_L31, T0))
    a('s_lshl_b32 s5, %s, 11' % S_HD)
    for s in range(2):
        for i in range(8):
            d = 16 * s + 8 * (i >> 2) + (i & 3)
            a('buffer_load_ushort v%d, v%d, s[56:59], s5 offen offset:%d' % (ACC + 8 * s + i, T0, d * 64))
    VW = [184, 185, 186, 187, 188, 189]
    srd(a, 48, 'Ax', 4 << 20)
    srd(a, 52, 'wqkv', 6 << 20)
    a('s_and_b32 s4, %s, 3' % S_WAVE)
    a('s_lshl_b32 s5, %s, 8' % S_MT)
    a('s_lshl_b32 s6, s4, 6')
    a('s_add_u32 s6, s5, s6')
    kc_dma_voffs(a, 's6', False)
    a('s_lshl_b32 %s, s7, 7' % S_OA)
    a('v_lshrrev_b32 v%d, 3, v%d' % (T0, V_LANE))
    a('v_mul_u32_u24 v%d, 6144, v%d' % (T0, T0))
    a('v_bfe_u32 v%d, v%d, 4, 1' % (T1, V_LANE))
    a('v_lshlrev_b32 v%d, 2, v%d' % (T1, T1))
    a('v_and_b32 v%d, 7, v%d' % (T2, V_LANE))
    a('v_xor_b32 v%d, v%d, v%d' % (T1, T1, T2))
    a('v_lshl_add_u32 v%d, v%d, 4, v%d' % (T0, T1, T0))
    a('s_mul_i32 s4, s4, 6')
    a('s_lshl_b32 %s, s4, 10' % S_MB)
    a('s_add_u32 %s, %s, %d' % (S_MB, S_MB, BBASE_A))
    a('s_add_u32 %s, %s, 4096' % (S_MB2, S_MB))
    for j in range(6):
        a('s_add_u32 s5, s4, %d' % j)
        a('s_lshr_b32 s6, s5, 3')
        a('s_and_b32 s5, s5, 7')
        a('s_mul_i32 s5, s5, 49152')
        a('s_lshl_b32 s6, s6, 11')
        a('s_add_u32 s5, s5, s6')
        a('s_lshl_b32 s6, %s, 7' % S_NT)
        a('s_add_u32 s5, s5, s6')
        if j & 3:
            a('s_sub_u32 s5, s5, %d' % ((j & 3) * 1024))
        a('v_add_u32 v%d, s5, v%d' % (VW[j], T0))
    set_stream(a, S_O2, S_ADV2, S_END2, 0x60000, 16, 0)
    a('s_mov_b32 %s, 0' % S_TMP)
    kn_read_addr(a, VB0, None, V_LANE, S_TMP, BBASE_A, T0, T1)
    a('s_lshl_b32 s5, %s, 6' % S_WN)
    a('v_xor_b32 v%d, s5, v%d' % (VB0, VB0))

    def mid(nvm):
        a('s_lshl_b32 s5, %s, 13' % S_WAVE)
        a('v_and_b32 v%d, 5, v%d' % (T0, V_L31))
        a('v_bfe_u32 v%d, v%d, 1, 1' % (T1, V_L31))
        a('v_lshl_or_b32 v%d, v%d, 3, v%d' % (T0, T1, T0))
        a('v_bfe_u32 v%d, v%d, 3, 1' % (T1, V_L31))
        a('v_lshl_or_b32 v%d, v%d, 1, v%d' % (T0, T1, T0))
        a('v_xor_b32 v%d, v%d, v%d' % (T0, T0, V_HH))
        a('v_lshlrev_b32 v%d, 3, v%d' % (T0, T0))
        a('v_lshl_add_u32 v%d, v%d, 7, v%d' % (T0, V_L31, T0))
        a('v_add_u32 v%d, s5, v%d' % (T0, T0))
        for k in range(8):
            a('v_xor_b32 v%d, %d, v%d' % (VWR + k, ((k & 3) * 2 + (k >> 2) * 8) * 8, T0))
        a('v_bfe_u32 v%d, v%d, 2, 2' % (T0, V_LANE))
        a('v_lshl_add_u32 v%d, v%d, 2, v%d' % (T0, V_HH, T0))
        a('v_and_b32 v%d, 5, v%d' % (T1, T0))
        a('v_bfe_u32 v%d, v%d, 1, 1' % (T2, T0))
        a('v_lshl_or_b32 v%d, v%d, 3, v%d' % (T1, T2, T1))
        a('v_and_b32 v%d, 3, v%d' % (T2, V_LANE))
        a('v_bfe_u32 v%d, v%d, 4, 1' % (T3, V_LANE))
        a('v_lshl_or_b32 v%d, v%d, 2, v%d' % (T2, T3, T2))
        a('v_xor_b32 v%d, v%d, v%d' % (T1, T1, T2))
        a('v_lshlrev_b32 v%d, 3, v%d' % (T1, T1))
        a('v_lshl_add_u32 v%d, v%d, 7, v%d' % (T1, T0, T1))
        a('v_add_u32 v%d, s5, v%d' % (T1, T1))
        for ft in range(2):
            for u in range(2):
                a('v_xor_b32 v%d, %d, v%d' % (VTR + 2 * ft + u, ft * 64 + u * 16, T1))
        a('s_lshl_b32 s5, %s, 2' % S_NT)
        a('s_add_u32 s5, s5, 192')
        a('v_mov_b32 v%d, s5' % V_OFF)
        a('v_mov_b32 v%d, 1' % V_ONE)
        a('s_lshl_b32 s5, %s, 12' % S_WAVE)
        a('v_lshrrev_b32 v%d, 3, v%d' % (T0, V_LANE))
        a('v_and_b32 v%d, 7, v%d' % (T1, V_LANE))
        a('v_xor_b32 v%d, v%d, v%d' % (T2, T0, T1))
        a('v_lshlrev_b32 v%d, 4, v%d' % (T2, T2))
        a('v_lshl_add_u32 v%d, v%d, 7, v%d' % (T2, T0, T2))
        a('v_add_u32 v%d, s5, v%d' % (V_OR, T2))
        a('s_lshl_b32 s5, %s, 8' % S_MT)
        a('s_lshl_b32 s6, %s, 5' % S_WAVE)
        a('s_add_u32 s5, s5, s6')
        a('v_add_u32 v%d, s5, v%d' % (T0, T0))
        a('v_lshlrev_b32 v%d, 11, v%d' % (T0, T0))
        a('v_lshl_add_u32 v%d, v%d, 4, v%d' % (T0, T1, T0))
        a('s_lshl_b32 s5, %s, 7' % S_NT)
        a('v_add_u32 v%d, s5, v%d' % (V_O, T0))
        a('s_waitcnt vmcnt(%d)' % nvm)
        for r in range(8):
            a('v_lshl_or_b32 v%d, v%d, 16, v%d' % (WPH + r, ACC + 2 * r + 1, ACC + 2 * r))

    def acc(tm, tn):
        return vr(ACC + 32 * tn + 16 * tm, 16)

    stamp(a, 1)
    wgt(a, 1)
    if not os.environ.get('NO_SWAPRING'):
        ringA = Ring(32768, 2, ['s67', 's68', 's79'], S_TMP)
        ringB = Ring(24576, 3, ['s12', 's13', 's14'], S_TMP)
    else:
        ringA = Ring(32768, 3, ['s67', 's68', 's79'], S_TMP)
        ringB = Ring(24576, 2, ['s12', 's13'], S_TMP)
    sbg = [(S_MB, [(VW[j], 's[52:55]', S_O2, j * 1024) for j in range(4)]),
           (S_MB2, [(VW[4 + j], 's[52:55]', S_O2, j * 1024) for j in range(2)])]
    run_roles(a, 'k1a', ringA, ringB, sbg, TM=2, TN=3, PD=PDA, NS=2 * PDA, FR=FR, vA=VA, offA=[0, 4096],
              bmode='kn', vB=[VB0], offB=[(0, 0), (0, 8192), (0, 16384)], acc=acc,
              swap=lambda tm, tn: tn < 2,
              s_cnt=S_CNT, mid=mid)
    stamp(a, 2)
    wgt(a, 2)
    PK = 144
    PP = 152
    EP = 168
    EN = 184
    OP = 200
    ON = 208
    KV = 216
    TS = 248
    ZA = 22
    V_ONES = 21
    AF = 168
    a('v_mov_b32 v%d, 0x3f803f80' % V_ONES)
    a('v_mov_b32 v%d, 0' % ZA)
    a('v_mov_b32 v%d, 0' % (ZA + 1))
    srd(a, 56, 'ws', 4 << 20, WS_KVP)
    srd(a, 60, 'ws', 4 << 20, WS_O)

    def featmap(src, outp, outn):
        for k in range(8):
            a('v_cvt_pk_bf16_f32 v%d, v%d, v%d' % (PK + k, src + 2 * k, src + 2 * k + 1))
        a('v_mfma_f32_32x32x16_bf16 %s, %s, %s, 0' % (vr(PP, 16), vr(WPH, 4), vr(PK, 4)))
        a('v_mfma_f32_32x32x16_bf16 %s, %s, %s, %s' % (vr(PP, 16), vr(WPH + 4, 4), vr(PK + 4, 4), vr(PP, 16)))
        softmax_pm(a, PP, EP, EN, outp, outn, TS)

    for tm in range(2):
        featmap(AK + 16 * tm, OP, ON)
        if tm == 0:
            a('s_barrier')
        for g4 in range(4):
            a('ds_write_b64 v%d, %s offset:%d' % (VWR + g4, vr(OP + 2 * g4, 2), tm * 4096))
            a('ds_write_b64 v%d, %s offset:%d' % (VWR + 4 + g4, vr(ON + 2 * g4, 2), tm * 4096))
        for k in range(8):
            a('v_cvt_pk_bf16_f32 v%d, v%d, v%d' % (PK + k, AV + 16 * tm + 2 * k, AV + 16 * tm + 2 * k + 1))
        a('s_waitcnt lgkmcnt(0)')
        for ft in range(2):
            for s in range(2):
                f = AF + 4 * (2 * ft + s)
                for u in range(2):
                    a('ds_read_b64_tr_b16 %s, v%d offset:%d' % (vr(f + 2 * u, 2), VTR + 2 * ft + u,
                                                                 tm * 4096 + s * 2048 + u * 1024))
        for ft in range(2):
            for s in range(2):
                f = AF + 4 * (2 * ft + s)
                a('s_waitcnt lgkmcnt(%d)' % (6 - 2 * (2 * ft + s)))
                c = '0' if (tm == 0 and s == 0) else vr(KV + 16 * ft, 16)
                a('v_mfma_f32_32x32x16_bf16 %s, %s, %s, %s' % (vr(KV + 16 * ft, 16), vr(f, 4), vr(PK + 4 * s, 4), c))
                for k in range(4):
                    a('v_dot2c_f32_bf16 v%d, v%d, v%d' % (ZA + ft, f + k, V_ONES))
    a('v_mov_b32 v%d, v%d' % (TS, ZA))
    a('v_mov_b32 v%d, v%d' % (TS + 1, ZA + 1))
    a('v_permlane32_swap_b32 v%d, v%d' % (ZA, TS))
    a('v_permlane32_swap_b32 v%d, v%d' % (ZA + 1, TS + 1))
    a('v_add_f32 v%d, v%d, v%d' % (ZA, ZA, TS))
    a('v_add_f32 v%d, v%d, v%d' % (ZA + 1, ZA + 1, TS + 1))
    a('v_cmp_eq_u32 vcc, 1, v%d' % V_HH)
    a('v_cndmask_b32 v%d, v%d, v%d, vcc' % (ZA, ZA, ZA + 1))
    a('s_lshl_b32 s5, %s, 13' % S_WAVE)
    a('v_lshl_add_u32 v%d, v%d, 4, s5' % (T0, V_LANE))
    a('s_lshl_b32 s5, %s, 8' % S_WAVE)
    a('s_add_u32 s5, s5, 65536')
    a('v_lshl_add_u32 v%d, v%d, 2, s5' % (T1, V_LANE))
    a('ds_write_b32 v%d, v%d' % (T1, ZA))
    for q in range(8):
        a('ds_write_b128 v%d, %s offset:%d' % (T0, vr(KV + 4 * q, 4), q * 1024))
    a('s_lshl_b32 s5, %s, 13' % S_WN)
    a('s_lshl_b32 s6, %s, 11' % S_WM)
    a('s_add_u32 s5, s5, s6')
    a('v_lshl_add_u32 v%d, v%d, 4, s5' % (T0, V_LANE))
    a('s_lshl_b32 s5, %s, 8' % S_WN)
    a('s_add_u32 s5, s5, 65536')
    a('v_lshl_add_u32 v%d, v%d, 2, s5' % (T1, V_LANE))
    a('s_lshl_b32 s5, %s, 5' % S_MT)
    a('s_add_u32 s5, s5, %s' % S_HD)
    a('s_lshl_b32 s6, s5, 13')
    a('s_lshl_b32 s7, %s, 11' % S_WM)
    a('s_add_u32 s6, s6, s7')
    a('v_lshlrev_b32 v%d, 4, v%d' % (T2, V_LANE))
    a('s_lshl_b32 s7, s5, 8')
    a('s_add_u32 s7, s7, 0x%x' % (WS_ZP - WS_KVP))
    a('v_lshlrev_b32 v%d, 2, v%d' % (T3, V_LANE))
    a('s_waitcnt lgkmcnt(0)')
    a('s_barrier')
    R = 216
    for w in range(4):
        for q in range(2):
            a('ds_read_b128 %s, v%d offset:%d' % (vr(R + 8 * w + 4 * q, 4), T0, w * 16384 + q * 1024))
    for w in range(4):
        a('ds_read_b32 v%d, v%d offset:%d' % (OP + w, T1, w * 512))
    a('s_waitcnt lgkmcnt(4)')
    for k in range(0, 8, 2):
        a('v_pk_add_f32 %s, %s, %s' % (vr(R + k, 2), vr(R + k, 2), vr(R + 8 + k, 2)))
        a('v_pk_add_f32 %s, %s, %s' % (vr(R + 16 + k, 2), vr(R + 16 + k, 2), vr(R + 24 + k, 2)))
    for k in range(0, 8, 2):
        a('v_pk_add_f32 %s, %s, %s' % (vr(R + k, 2), vr(R + k, 2), vr(R + 16 + k, 2)))
    a('buffer_store_dwordx4 %s, v%d, s[56:59], s6 offen sc1' % (vr(R, 4), T2))
    a('buffer_store_dwordx4 %s, v%d, s[56:59], s6 offen offset:1024 sc1' % (vr(R + 4, 4), T2))
    a('s_waitcnt lgkmcnt(0)')
    a('v_add_f32 v%d, v%d, v%d' % (OP, OP, OP + 1))
    a('v_add_f32 v%d, v%d, v%d' % (OP + 2, OP + 2, OP + 3))
    a('v_add_f32 v%d, v%d, v%d' % (ZA, OP, OP + 2))
    a('s_cmp_lg_u32 %s, 0' % S_WM)
    a('s_cbranch_scc1 k1a_noz')
    a('buffer_store_dword v%d, v%d, s[56:59], s7 offen sc1' % (ZA, T3))
    a.label('k1a_noz')
    stamp(a, 3)
    if (not FUSE) or WGTA:
        wgt(a, 3)
    PQ = AK
    featmap(AQ, PQ, PQ + 8)
    a('s_waitcnt vmcnt(0)')
    a('s_barrier')
    a('s_cmp_lg_u32 %s, 0' % S_WAVE)
    a('s_cbranch_scc1 k1a_nosig')
    a('s_mov_b64 exec, 1')
    a('global_atomic_add v%d, v%d, s[44:45] sc1' % (V_OFF, V_ONE))
    a('s_mov_b64 exec, -1')
    a.label('k1a_nosig')
    if not EARLYPOLL:
        featmap(AQ + 16, PQ + 16, PQ + 24)
    stamp(a, 4)
    if (not FUSE) or WGTA:
        wgt(a, 4)
    poll(a, 'k1a_poll', V_OFF, T0, '8', 'ge')
    stamp(a, 5)
    if (not FUSE) or WGTA:
        wgt(a, 5)
    a('s_lshl_b32 s6, %s, 13' % S_HD)
    a('s_lshl_b32 s7, %s, 11' % S_WM)
    a('s_add_u32 s6, s6, s7')
    if EARLYPOLL:
        L = AV
        LM = [AV, AV + 8, AV + 16, AV + 24, 216, 224, 232, 240]
        ZL = AQ
    else:
        LM = [144 + 8 * m for m in range(8)]
        ZL = 208
    for m in range(8):
        a('buffer_load_dwordx4 %s, v%d, s[56:59], s6 offen sc1' % (vr(LM[m], 4), T2))
        a('buffer_load_dwordx4 %s, v%d, s[56:59], s6 offen offset:1024 sc1' % (vr(LM[m] + 4, 4), T2))
        if m < 7:
            a('s_add_u32 s6, s6, 0x40000')
    a('s_lshl_b32 s7, %s, 8' % S_HD)
    a('s_add_u32 s7, s7, 0x%x' % (WS_ZP - WS_KVP))
    for m in range(8):
        a('buffer_load_dword v%d, v%d, s[56:59], s7 offen sc1' % (ZL + m, T3))
        if m < 7:
            a('s_add_u32 s7, s7, 0x2000')
    if EARLYPOLL:
        featmap(AQ + 16, PQ + 16, PQ + 24)
    a('s_lshl_b32 s5, %s, 12' % S_WN)
    a('v_lshl_add_u32 v%d, v%d, 4, s5' % (T0, V_LANE))
    a('s_lshl_b32 s6, %s, 10' % S_WM)
    a('v_add_u32 v%d, s6, v%d' % (T1, T0))
    a('s_lshl_b32 s5, %s, 13' % S_WM)
    a('s_lshl_b32 s6, %s, 2' % S_WN)
    a('v_or_b32 v%d, s6, v%d' % (TS, V_HH))
    a('v_and_b32 v%d, 7, v%d' % ((TS + 1), V_L31))
    a('v_xor_b32 v%d, v%d, v%d' % (TS, TS, (TS + 1)))
    a('v_lshlrev_b32 v%d, 4, v%d' % (TS, TS))
    a('v_lshl_add_u32 v%d, v%d, 7, v%d' % (TS, V_L31, TS))
    a('v_add_u32 v%d, s5, v%d' % (V_OW, TS))
    a('v_xor_b32 v%d, 32, v%d' % (V_OW + 1, V_OW))
    a('s_waitcnt vmcnt(8)')
    for k in range(0, 8, 2):
        for m in range(0, 8, 2):
            a('v_pk_add_f32 %s, %s, %s' % (vr(LM[m] + k, 2), vr(LM[m] + k, 2), vr(LM[m + 1] + k, 2)))
    for k in range(0, 8, 2):
        a('v_pk_add_f32 %s, %s, %s' % (vr(LM[0] + k, 2), vr(LM[0] + k, 2), vr(LM[2] + k, 2)))
        a('v_pk_add_f32 %s, %s, %s' % (vr(LM[4] + k, 2), vr(LM[4] + k, 2), vr(LM[6] + k, 2)))
    for k in range(0, 8, 2):
        a('v_pk_add_f32 %s, %s, %s' % (vr(LM[0] + k, 2), vr(LM[0] + k, 2), vr(LM[4] + k, 2)))
    for k in range(4):
        a('v_cvt_pk_bf16_f32 v%d, v%d, v%d' % (LM[1] + k, LM[0] + 2 * k, LM[0] + 2 * k + 1))
    a('ds_write_b128 v%d, %s' % (T1, vr(LM[1], 4)))
    a('s_waitcnt vmcnt(0)')
    for m in range(0, 8, 4):
        a('v_pk_add_f32 %s, %s, %s' % (vr(ZL + m, 2), vr(ZL + m, 2), vr(ZL + m + 2, 2)))
    a('v_pk_add_f32 %s, %s, %s' % (vr(ZL, 2), vr(ZL, 2), vr(ZL + 4, 2)))
    a('v_add_f32 v%d, v%d, v%d' % (ZL, ZL, ZL + 1))
    a('v_cvt_pk_bf16_f32 v%d, v%d, v%d' % (ZL, ZL, ZL))
    a('s_lshl_b32 s5, %s, 7' % S_WN)
    a('s_add_u32 s5, s5, 8192')
    a('v_lshl_add_u32 v%d, v%d, 1, s5' % (T1, V_LANE))
    a('ds_write_b16 v%d, v%d' % (T1, ZL))
    a('v_lshl_add_u32 v%d, v%d, 3, s5' % (T1, V_HH))
    a('s_lshl_b32 s5, %s, 6' % S_HD)
    a('s_add_u32 s6, s5, 0x10000')
    a('s_waitcnt lgkmcnt(0)')
    a('s_barrier')
    KF = 144
    ZF = 160
    for f in range(4):
        a('ds_read_b128 %s, v%d offset:%d' % (vr(KF + 4 * f, 4), T0, f * 1024))
        a('ds_read_b64 %s, v%d offset:%d' % (vr(ZF + 4 * f, 2), T1, f * 32))
        a('ds_read_b64 %s, v%d offset:%d' % (vr(ZF + 4 * f + 2, 2), T1, f * 32 + 16))
    NUM = 176
    DEN = 208
    for f in range(4):
        a('s_waitcnt lgkmcnt(%d)' % (9 - 3 * f))
        for tm in range(2):
            b = PQ + 16 * tm + 4 * f
            a('v_mfma_f32_32x32x16_bf16 %s, %s, %s, %s' % (vr(DEN + 16 * tm, 16), vr(ZF + 4 * f, 4), vr(b, 4),
                                                           '0' if f == 0 else vr(DEN + 16 * tm, 16)))
            a('v_mfma_f32_32x32x16_bf16 %s, %s, %s, %s' % (vr(NUM + 16 * tm, 16), vr(KF + 4 * f, 4), vr(b, 4),
                                                           '0' if f == 0 else vr(NUM + 16 * tm, 16)))
    for tm in range(2):
        d = DEN + 16 * tm
        n = NUM + 16 * tm
        a('v_add_f32 v%d, 0x358637bd, v%d' % (d, d))
        a('v_rcp_f32 v%d, v%d' % (d, d))
        for k in range(0, 16, 2):
            a('v_pk_mul_f32 %s, %s, %s op_sel_hi:[1,0]' % (vr(n + k, 2), vr(n + k, 2), vr(d, 2)))
        o = d + 4
        for k in range(8):
            a('v_cvt_pk_bf16_f32 v%d, v%d, v%d' % (o + k, n + 2 * k, n + 2 * k + 1))
        for p in range(2):
            a('v_permlane32_swap_b32 v%d, v%d' % (o + 4 * p, o + 4 * p + 2))
            a('v_permlane32_swap_b32 v%d, v%d' % (o + 4 * p + 1, o + 4 * p + 3))
            a('ds_write_b128 v%d, %s offset:%d' % (V_OW + p, vr(o + 4 * p, 4), OBASE + tm * 4096))
    a('s_waitcnt lgkmcnt(0)')
    a('s_barrier')
    for i in range(4):
        a('ds_read_b128 %s, v%d offset:%d' % (vr(144 + 4 * i, 4), V_OR, OBASE + i * 1024))
    for i in range(4):
        a('s_mov_b32 s5, 0x%x' % (i * 8 * 2048))
        a('s_waitcnt lgkmcnt(%d)' % (3 - i))
        a('buffer_store_dwordx4 %s, v%d, s[60:63], s5 offen%s' % (vr(144 + 4 * i, 4), V_O,
                                                                  os.environ.get('STO', ' sc1' if FUSE else '')))
    if FUSE:
        handoff_phase2(a, 'a')
        return
    stamp(a, 6)
    wgt(a, 6)
    stamp_flush(a, 7, 0)
    wgt_flush(a, 7, 0)
    a('s_endpgm')


def cmul(a, dr, di, ar, ai, br, bi, t):
    a('v_mul_f32 v%d, v%d, v%d' % (t, ai, bi))
    a('v_mul_f32 v%d, v%d, v%d' % (t + 1, ar, bi))
    a('v_fma_f32 v%d, v%d, v%d, -v%d' % (t, ar, br, t))
    a('v_fma_f32 v%d, v%d, v%d, v%d' % (di, ai, br, t + 1))
    a('v_mov_b32 v%d, v%d' % (dr, t))


def cfma(a, hr, hi, lr, li, ur, ui, t):
    a('v_fma_f32 v%d, -v%d, v%d, v%d' % (t, li, hi, ur))
    a('v_fma_f32 v%d, v%d, v%d, v%d' % (t + 1, li, hr, ui))
    a('v_fma_f32 v%d, v%d, v%d, v%d' % (hr, lr, hr, t))
    a('v_fma_f32 v%d, v%d, v%d, v%d' % (hi, lr, hi, t + 1))


def gen_B(a, VA):
    a.comment('==== B: input projection gemm')
    VB = [12, 21, 22, 23]
    LR, LI, CR, CI, L32R, L32I, L256R, L256I = 24, 25, 26, 27, 28, 29, 30, 31
    V_P2, V_OFF, V_BIT, V_SEL, V_H, V_Q = 32, 33, 34, 35, 36, 37
    TT = 38
    V_HW = 47
    ACC = 48
    FR = 112
    NB, ST = 3, 49152
    a('s_lshl_b32 s5, %s, 6' % S_NT)
    a('s_lshl_b32 s6, %s, 5' % S_WN)
    a('s_add_u32 s5, s5, s6')
    a('v_add_u32 v%d, s5, v%d' % (V_P2, V_L31))
    a('v_lshlrev_b32 v%d, 1, v%d' % (T0, V_P2))
    a('global_load_ushort v%d, v%d, s[26:27]' % (TT, T0))
    a('global_load_ushort v%d, v%d, s[28:29]' % (TT + 1, T0))
    a('global_load_ushort v%d, v%d, s[38:39]' % (TT + 2, T0))
    VW = [176, 177, 178, 179]
    srd(a, 48, 'Bx', 4 << 20)
    srd(a, 52, 'Bre', 2 << 20)
    srd(a, 56, 'Bim', 2 << 20)
    a('s_and_b32 s4, %s, 3' % S_WAVE)
    a('s_cmp_ge_u32 s4, 2')
    a('s_cselect_b32 s52, s56, s52')
    a('s_cselect_b32 s53, s57, s53')
    a('s_lshl_b32 s5, %s, 8' % S_MT)
    a('s_lshl_b32 s6, s4, 6')
    a('s_add_u32 s6, s5, s6')
    kc_dma_voffs(a, 's6', True)
    a('s_lshl_b32 %s, s7, 7' % S_OA)
    a('s_lshl_b32 s5, %s, 6' % S_NT)
    a('s_and_b32 s6, s4, 1')
    a('s_lshl_b32 s6, s6, 5')
    a('s_add_u32 s5, s5, s6')
    a('v_lshrrev_b32 v%d, 3, v%d' % (T0, V_LANE))
    a('v_add_u32 v%d, s5, v%d' % (T0, T0))
    a('v_lshlrev_b32 v%d, 11, v%d' % (T0, T0))
    for j in range(4):
        a('v_xor_b32 v%d, %d, v%d' % (T2, (j & 1) * 4, T1))
        a('v_lshl_add_u32 v%d, v%d, 4, v%d' % (VW[j], T2, T0))
        if j:
            a('v_add_u32 v%d, 0x%x, v%d' % (VW[j], 8 * j * 2048 - j * 1024, VW[j]))
    a('s_lshl_b32 %s, s4, 12' % S_MB)
    a('s_add_u32 %s, %s, %d' % (S_MB, S_MB, BBASE))
    set_stream(a, S_O2, S_ADV2, S_END2, 128, 16, 0)
    a('s_lshl_b32 %s, %s, 12' % (S_TMP, S_WN))
    kc_read_addrs(a, VB, V_L31, V_HH, S_TMP, BBASE, T0, T1)

    def mid(nvm):
        a('s_waitcnt vmcnt(%d)' % nvm)
        lre, lim, dt = TT, TT + 1, TT + 2
        a('v_lshlrev_b32 v%d, 16, v%d' % (lre, lre))
        a('v_lshlrev_b32 v%d, 16, v%d' % (lim, lim))
        a('v_lshlrev_b32 v%d, 16, v%d' % (dt, dt))
        a('v_mul_f32 v%d, %s, v%d' % (dt, S_L2E, dt))
        a('v_exp_f32 v%d, v%d' % (dt, dt))
        a('v_cvt_pk_bf16_f32 v%d, v%d, v%d' % (dt, dt, dt))
        a('v_lshlrev_b32 v%d, 16, v%d' % (dt, dt))
        a('v_mul_f32 v%d, v%d, v%d' % (TT + 3, dt, lre))
        a('v_mul_f32 v%d, v%d, v%d' % (TT + 4, dt, lim))
        a('v_mul_f32 v%d, %s, v%d' % (TT + 3, S_L2E, TT + 3))
        a('v_exp_f32 v%d, v%d' % (TT + 3, TT + 3))
        a('v_mul_f32 v%d, 0.15915494, v%d' % (TT + 4, TT + 4))
        a('v_rndne_f32 v%d, v%d' % (TT + 5, TT + 4))
        a('v_sub_f32 v%d, v%d, v%d' % (TT + 4, TT + 4, TT + 5))
        a('v_cos_f32 v%d, v%d' % (LR, TT + 4))
        a('v_sin_f32 v%d, v%d' % (LI, TT + 4))
        a('v_mul_f32 v%d, v%d, v%d' % (LR, LR, TT + 3))
        a('v_mul_f32 v%d, v%d, v%d' % (LI, LI, TT + 3))
        a('v_add_f32 v%d, -1.0, v%d' % (TT + 5, LR))
        a('v_mul_f32 v%d, v%d, v%d' % (TT + 6, lre, lre))
        a('v_fma_f32 v%d, v%d, v%d, v%d' % (TT + 6, lim, lim, TT + 6))
        a('v_rcp_f32 v%d, v%d' % (TT + 6, TT + 6))
        a('v_mul_f32 v%d, v%d, v%d' % (CR, TT + 5, lre))
        a('v_fma_f32 v%d, v%d, v%d, v%d' % (CR, LI, lim, CR))
        a('v_mul_f32 v%d, v%d, v%d' % (CI, TT + 5, lim))
        a('v_fma_f32 v%d, v%d, v%d, -v%d' % (CI, LI, lre, CI))
        a('v_add_f32 v%d, v%d, v%d' % (TT + 6, TT + 6, TT + 6))
        a('v_mul_f32 v%d, v%d, v%d' % (CR, CR, TT + 6))
        a('v_mul_f32 v%d, v%d, v%d' % (CI, CI, TT + 6))
        a('v_mov_b32 v%d, v%d' % (L32R, LR))
        a('v_mov_b32 v%d, v%d' % (L32I, LI))
        for _ in range(5):
            cmul(a, L32R, L32I, L32R, L32I, L32R, L32I, TT + 7)
        a('v_mov_b32 v%d, v%d' % (L256R, L32R))
        a('v_mov_b32 v%d, v%d' % (L256I, L32I))
        for _ in range(3):
            cmul(a, L256R, L256I, L256R, L256I, L256R, L256I, TT + 7)
        a('s_lshl_b32 s5, %s, 2' % S_NT)
        a('s_add_u32 s5, s5, 64')
        a('v_mov_b32 v%d, s5' % V_OFF)
        a('s_lshl_b32 s5, 1, %s' % S_MT)
        a('v_mov_b32 v%d, s5' % V_BIT)
        a('v_and_b32 v%d, 1, v%d' % (T0, V_LANE))
        a('v_mov_b32 v%d, 0x05040100' % V_SEL)
        a('v_mov_b32 v%d, 0x03020706' % T1)
        a('v_cmp_eq_u32 vcc, 1, v%d' % T0)
        a('v_cndmask_b32 v%d, v%d, v%d, vcc' % (V_SEL, V_SEL, T1))
        a('s_lshl_b32 s5, %s, 14' % S_WM)
        a('s_lshl_b32 s6, %s, 6' % S_WN)
        a('s_add_u32 s5, s5, s6')
        a('v_lshl_add_u32 v%d, v%d, 13, s5' % (V_HW, V_HH))
        a('v_lshl_add_u32 v%d, v%d, 7, v%d' % (V_HW, T0, V_HW))
        a('v_and_b32 v%d, 30, v%d' % (T1, V_L31))
        a('v_lshl_add_u32 v%d, v%d, 1, v%d' % (V_HW, T1, V_HW))
        a('s_lshl_b32 s5, %s, 8' % S_MT)
        a('s_lshl_b32 s6, %s, 5' % S_WAVE)
        a('s_add_u32 s5, s5, s6')
        a('v_lshrrev_b32 v%d, 4, v%d' % (T1, V_LANE))
        a('v_add_u32 v%d, s5, v%d' % (T1, T1))
        a('v_lshlrev_b32 v%d, 12, v%d' % (V_H, T1))
        a('v_bfe_u32 v%d, v%d, 3, 1' % (T1, V_LANE))
        a('v_lshl_add_u32 v%d, v%d, 11, v%d' % (V_H, T1, V_H))
        a('v_and_b32 v%d, 7, v%d' % (T1, V_LANE))
        a('v_lshl_add_u32 v%d, v%d, 4, v%d' % (V_H, T1, V_H))
        a('s_lshl_b32 s5, %s, 7' % S_NT)
        a('v_add_u32 v%d, s5, v%d' % (V_H, V_H))
        a('s_lshl_b32 s5, %s, 1' % S_WM)
        a('v_add_u32 v%d, s5, v%d' % (V_Q, V_HH))

    def acc(tm, tn):
        return vr(ACC + 32 * tm + 16 * tn, 16)

    stamp(a, 1)
    wgt(a, 1)
    ringA = Ring(32768, 3, ['s67', 's68', 's79'], S_TMP)
    ringB = Ring(16384, 3, ['s12', 's13', 's14'], S_TMP)
    sbg = [(S_MB, [(VW[j], 's[52:55]', S_O2, j * 1024) for j in range(4)])]
    run_roles(a, 'k1b', ringA, ringB, sbg, TM=2, TN=2, PD=PDB, NS=2 * PDB, FR=FR, vA=VA, offA=[0, 4096],
              bmode='kc', vB=VB, offB=[0, 8192], acc=acc, swap=lambda tm, tn: False,
              s_cnt=S_CNT, mid=mid)
    stamp(a, 2)
    wgt(a, 2)
    if FUSE and not os.environ.get('NO_PF3'):
        prefetch_tail(a, [('Cre', 2 << 20), ('Cim', 2 << 20), ('wo', 2 << 20)], 255, T0)

    def ure(i):
        return ACC + 32 * (i >> 4) + (i & 15)

    def uim(i):
        return ure(i) + 16

    ER, EI = 112, 113
    t = 114
    for i in range(32):
        r, m = ure(i), uim(i)
        a('v_mul_f32 v%d, v%d, v%d' % (t, CI, m))
        a('v_mul_f32 v%d, v%d, v%d' % (t + 1, CI, r))
        a('v_fma_f32 v%d, v%d, v%d, -v%d' % (r, CR, r, t))
        a('v_fma_f32 v%d, v%d, v%d, v%d' % (m, CR, m, t + 1))
        if i == 0:
            a('v_mov_b32 v%d, v%d' % (ER, r))
            a('v_mov_b32 v%d, v%d' % (EI, m))
        else:
            cfma(a, ER, EI, LR, LI, r, m, t + 2)
    a('s_barrier')
    a('s_lshl_b32 s5, %s, 8' % S_WN)
    a('v_lshl_add_u32 v%d, v%d, 3, s5' % (T0, V_L31))
    a('v_lshl_add_u32 v%d, v%d, 9, v%d' % (T1, V_Q, T0))
    a('ds_write_b64 v%d, %s' % (T1, vr(ER, 2)))
    a('s_waitcnt lgkmcnt(0)')
    a('s_barrier')
    E = 120
    for q in range(8):
        a('ds_read_b64 %s, v%d offset:%d' % (vr(E + 2 * q, 2), T0, q * 512))
    PR, PI, WR, WI, SPR, SPI, SWR, SWI = 136, 137, 138, 139, 140, 141, 142, 143
    a('v_mov_b32 v%d, 0' % PR)
    a('v_mov_b32 v%d, 0' % PI)
    a('v_mov_b32 v%d, 1.0' % WR)
    a('v_mov_b32 v%d, 0' % WI)
    a('v_mov_b32 v%d, 0' % SPR)
    a('v_mov_b32 v%d, 0' % SPI)
    a('v_mov_b32 v%d, 1.0' % SWR)
    a('v_mov_b32 v%d, 0' % SWI)
    a('s_waitcnt lgkmcnt(0)')
    for q in range(8):
        cfma(a, PR, PI, L32R, L32I, E + 2 * q, E + 2 * q + 1, t)
        if q < 7:
            cmul(a, WR, WI, WR, WI, L32R, L32I, t + 2)
            a('v_cmp_eq_u32 vcc, %d, v%d' % (q + 1, V_Q))
            a('v_cndmask_b32 v%d, v%d, v%d, vcc' % (SPR, SPR, PR))
            a('v_cndmask_b32 v%d, v%d, v%d, vcc' % (SPI, SPI, PI))
            a('v_cndmask_b32 v%d, v%d, v%d, vcc' % (SWR, SWR, WR))
            a('v_cndmask_b32 v%d, v%d, v%d, vcc' % (SWI, SWI, WI))
    srd(a, 60, 'ws', 65536, WS_AGG)
    a('v_lshlrev_b32 v%d, 3, v%d' % (T2, V_P2))
    a('s_lshl_b32 s5, %s, 13' % S_MT)
    a('s_cmp_lg_u32 %s, 0' % S_WM)
    a('s_cbranch_scc1 k1b_nopub')
    a('buffer_store_dwordx2 %s, v%d, s[60:63], s5 offen sc1' % (vr(PR, 2), T2))
    a('s_waitcnt vmcnt(0)')
    a.label('k1b_nopub')
    a('s_barrier')
    a('s_cmp_lg_u32 %s, 0' % S_WAVE)
    a('s_cbranch_scc1 k1b_nosig')
    a('s_mov_b64 exec, 1')
    a('global_atomic_or v%d, v%d, s[44:45] sc1' % (V_OFF, V_BIT))
    a('s_mov_b64 exec, -1')
    a.label('k1b_nosig')
    stamp(a, 3)
    if (not FUSE) or WGTA:
        wgt(a, 3)
    a('s_lshl_b32 s7, 1, %s' % S_MT)
    a('s_sub_u32 s7, s7, 1')
    stamp(a, 4)
    if (not FUSE) or WGTA:
        wgt(a, 4)
    poll(a, 'k1b_poll', V_OFF, T0, 's7', 'and')
    stamp(a, 5)
    if (not FUSE) or WGTA:
        wgt(a, 5)
    for m in range(7):
        a('buffer_load_dwordx2 %s, v%d, s[60:63], %s offen sc1' % (vr(E + 2 * m, 2), T2, '0' if m == 0 else 's6'))
        a('s_mov_b32 s6, 0x%x' % ((m + 1) * 8192))
    HR, HI = 112, 113
    a('v_mov_b32 v%d, 0' % HR)
    a('v_mov_b32 v%d, 0' % HI)
    a('s_waitcnt vmcnt(0)')
    for m in range(7):
        a('s_cmp_le_u32 %s, %d' % (S_MT, m))
        a('s_cbranch_scc1 k1b_hdone')
        cfma(a, HR, HI, L256R, L256I, E + 2 * m, E + 2 * m + 1, t)
    a.label('k1b_hdone')
    cfma(a, HR, HI, SWR, SWI, SPR, SPI, t)
    srd(a, 60, 'ws', 8 << 20, WS_H)
    for i in range(32):
        r, m = ure(i), uim(i)
        cfma(a, HR, HI, LR, LI, r, m, t)
        w = 120 + (i & 3) * 3
        a('v_cvt_pk_bf16_f32 v%d, v%d, -v%d' % (w, HR, HI))
        a('v_mov_b32_dpp v%d, v%d quad_perm:[1,0,3,2] row_mask:0xf bank_mask:0xf' % (w + 1, w))
        a('v_perm_b32 v%d, v%d, v%d, v%d' % (w + 2, w + 1, w, V_SEL))
        a('ds_write_b32 v%d, v%d offset:%d' % (V_HW, w + 2, i * 256))
    a('s_waitcnt lgkmcnt(0)')
    a('s_barrier')
    a('s_lshl_b32 s5, %s, 13' % S_WAVE)
    a('v_lshl_add_u32 v%d, v%d, 4, s5' % (T0, V_LANE))
    for i in range(8):
        a('ds_read_b128 %s, v%d offset:%d' % (vr(144 + 4 * i, 4), T0, i * 1024))
    for i in range(8):
        a('s_mov_b32 s5, 0x%x' % (i * 4 * 4096))
        a('s_waitcnt lgkmcnt(%d)' % (7 - i))
        a('buffer_store_dwordx4 %s, v%d, s[60:63], s5 offen%s' % (vr(144 + 4 * i, 4), V_H,
                                                                  os.environ.get('STH', ' sc1' if FUSE else '')))
    if FUSE:
        handoff_phase2(a, 'b')
        return
    if not os.environ.get('NO_PF3'):
        prefetch_tail(a, [('Cre', 2 << 20), ('Cim', 2 << 20), ('wo', 2 << 20)], 255, T0)
    stamp(a, 6)
    wgt(a, 6)
    stamp_flush(a, 7, 128, 44)
    wgt_flush(a, 7, 0)
    a('s_endpgm')
```

```python
import os
from gemm import Gemm, Ring, Stream
from gen import srd, kc_read_addrs, kn_read_addr, wgt, wgt_flush, WGT
from gen import WS_O, WS_H

V_LANE, V_L31, V_HH, T0, T1, T2 = 1, 2, 3, 4, 5, 6
VA = [8, 9, 10, 11]
VB = [12, 13, 14, 15]
VDA = [16, 17, 18, 19]
VDB = [20, 21, 22, 23]
V_OUT, V_X, V_LW, V_LR = 24, 25, 26, 27
V_D = 28
ACC = 64
FR = 128
XR = 192
S_WAVE, S_CNT, S_TMP = 's64', 's65', 's69'
S_OA, S_OB, S_MA, S_MB, S_MT, S_NT, S_WM, S_WN, S_T2 = 's70', 's71', 's72', 's73', 's74', 's75', 's76', 's77', 's78'
NB, ST = 4, 32768
AMOD = os.environ.get('AMOD', ' sc1')


def phase2(a, which, wait_fn):
    a.comment('==== phase 2 (%s)' % which)
    a('s_lshl_b32 %s, %s, 12' % (S_MA, S_WAVE))
    a('s_add_u32 %s, %s, 16384' % (S_MB, S_MA))
    a('s_lshl_b32 %s, s11, 7' % S_OA)
    a('s_mov_b32 %s, %s' % (S_OB, S_OA))
    a('s_mov_b32 s10, 0')
    a('s_lshl_b32 %s, %s, 13' % (S_TMP, S_WM))
    kc_read_addrs(a, VA, V_L31, V_HH, S_TMP, 0, T0, T1)
    a('s_lshl_b32 s5, %s, 7' % S_MT)
    a('s_lshl_b32 s6, %s, 6' % S_WM)
    a('s_add_u32 s5, s5, s6')
    a('s_lshl_b32 s6, %s, 7' % S_NT)
    a('s_lshl_b32 s7, %s, 6' % S_WN)
    a('s_add_u32 s6, s6, s7')
    a('v_lshrrev_b32 v%d, 4, v%d' % (T0, V_LANE))
    a('v_add_u32 v%d, s5, v%d' % (T0, T0))
    a('v_and_b32 v%d, 15, v%d' % (T1, V_LANE))
    a('v_lshl_add_u32 v%d, v%d, 2, s6' % (T1, T1))
    a('v_lshlrev_b32 v%d, 13, v%d' % (V_OUT, T0))
    a('v_lshl_add_u32 v%d, v%d, 2, v%d' % (V_OUT, T1, V_OUT))
    a('v_lshlrev_b32 v%d, 11, v%d' % (V_X, T0))
    a('v_lshl_add_u32 v%d, v%d, 1, v%d' % (V_X, T1, V_X))
    a('v_lshlrev_b32 v%d, 1, v%d' % (T2, T1))
    a('s_lshl_b32 s5, %s, 14' % S_WAVE)
    a('v_lshlrev_b32 v%d, 10, v%d' % (V_LW, V_HH))
    a('v_lshl_add_u32 v%d, v%d, 2, v%d' % (V_LW, V_L31, V_LW))
    a('v_add_u32 v%d, s5, v%d' % (V_LW, V_LW))
    a('v_lshl_add_u32 v%d, v%d, 4, s5' % (V_LR, V_LANE))
    srd(a, 56, 'out', 2048 * 2048 * 4)

    def dma_kc_voffs(vd, s_row0, pitch_log2):
        a('s_lshl_b32 %s, %s, 5' % (S_T2, S_WAVE))
        a('s_add_u32 %s, %s, %s' % (S_T2, S_T2, s_row0))
        a('v_lshrrev_b32 v%d, 3, v%d' % (T0, V_LANE))
        a('v_add_u32 v%d, %s, v%d' % (T0, S_T2, T0))
        a('v_lshlrev_b32 v%d, %d, v%d' % (T0, pitch_log2, T0))
        a('v_lshrrev_b32 v%d, 4, v%d' % (T1, V_LANE))
        a('v_and_b32 v%d, 7, v%d' % (T2, V_LANE))
        a('v_xor_b32 v%d, v%d, v%d' % (T1, T1, T2))
        for j in range(4):
            a('v_xor_b32 v%d, %d, v%d' % (T2, (j & 1) * 4, T1))
            a('v_lshl_add_u32 v%d, v%d, 4, v%d' % (vd[j], T2, T0))
            c = (8 * j << pitch_log2) - j * 1024
            if c:
                a('v_add_u32 v%d, 0x%x, v%d' % (vd[j], c, vd[j]))

    ring = Ring(ST, NB, ['s67', 's68', 's79', 's9'], S_TMP)
    common = dict(TM=2, TN=2, ringA=ring, ringB=ring, PD=2, NS=4, FR=FR, vA=VA, offA=[0, 4096],
                  acc=lambda tm, tn: 'v[%d:%d]' % (ACC + 16 * (2 * tm + tn), ACC + 16 * (2 * tm + tn) + 15),
                  swap=lambda tm, tn: False, s_cnt=S_CNT, pro_first=1, pro_between=wait_fn)
    grpA = [(S_MA, [(VDA[j], 's[48:51]', S_OA, j * 1024) for j in range(4)])]
    grpB = [(S_MB, [(VDB[j], 's[52:55]', S_OB, j * 1024) for j in range(4)])]

    def stage_out():
        for tm in range(2):
            for tn in range(2):
                for r in range(16):
                    row = 32 * tm + 8 * (r >> 2) + (r & 3)
                    a('ds_write_b32 v%d, v%d offset:%d' % (V_LW, ACC + 16 * (2 * tm + tn) + r, row * 256 + tn * 128))
        a('s_waitcnt lgkmcnt(0)')
        for i in range(16):
            a('ds_read_b128 v[%d:%d], v%d offset:%d' % (FR + 4 * i, FR + 4 * i + 3, V_LR, i * 1024))

    if which == 'b':
        srd(a, 60, 'Dsk', 2048)
        a('buffer_load_dwordx2 v[32:33], v%d, s[60:63], 0 offen' % T2)
        srd(a, 48, 'ws', 8 << 20, WS_H)
        srd(a, 52, 'Cre', 2 << 20)
        srd(a, 96, 'Bx', 4 << 20)
        for i in range(16):
            a('s_mov_b32 %s, 0x%x' % (S_T2, i * 4 * 2048))
            a('buffer_load_dwordx2 v[%d:%d], v%d, s[96:99], %s offen' % (XR + 2 * i, XR + 2 * i + 1, V_X, S_T2))
        a('s_lshl_b32 s5, %s, 7' % S_MT)
        dma_kc_voffs(VDA, 's5', 12)
        a('s_lshl_b32 s5, %s, 7' % S_NT)
        dma_kc_voffs(VDB, 's5', 11)
        a('s_lshl_b32 %s, %s, 13' % (S_TMP, S_WN))
        kc_read_addrs(a, VB, V_L31, V_HH, S_TMP, 16384, T0, T1)
        sA = Stream(ring, grpA, ['s_add_u32 %s, %s, 128' % (S_OA, S_OA), 's_and_b32 %s, %s, 0x7ff' % (S_OA, S_OA),
                                 's_or_b32 %s, %s, s10' % (S_OA, S_OA)], mod=AMOD)
        sB = Stream(ring, grpB, ['s_add_u32 %s, %s, 128' % (S_OB, S_OB), 's_and_b32 %s, %s, 0x7ff' % (S_OB, S_OB)])
        g = Gemm(a, pfx='p2b', bmode='kc', vB=VB, offB=[0, 4096], streams=[sA, sB], **common)
        sw = ['s_mov_b32 s52, s36', 's_and_b32 s53, s37, 0xffff', 's_mov_b32 s10, 0x800',
              's_or_b32 %s, %s, s10' % (S_OA, S_OA)]
        g.run(32, switch=(16 - NB, sw))
        if not os.environ.get('WGTA'):
            wgt(a, 5)
        a('v_add_u32 v%d, 0x1000, v%d' % (V_OUT, V_OUT))
        a('v_lshlrev_b32 v%d, 16, v32' % V_D)
        a('v_and_b32 v%d, 0xffff0000, v32' % (V_D + 1))
        a('v_lshlrev_b32 v%d, 16, v33' % (V_D + 2))
        a('v_and_b32 v%d, 0xffff0000, v33' % (V_D + 3))
        stage_out()
        for i in range(16):
            x = XR + 2 * i
            t = ACC + 4 * (i & 3)
            c = FR + 4 * i
            a('v_lshlrev_b32 v%d, 16, v%d' % (t, x))
            a('v_and_b32 v%d, 0xffff0000, v%d' % (t + 1, x))
            a('v_lshlrev_b32 v%d, 16, v%d' % (t + 2, x + 1))
            a('v_and_b32 v%d, 0xffff0000, v%d' % (t + 3, x + 1))
            a('s_mov_b32 %s, 0x%x' % (S_T2, i * 4 * 8192))
            a('s_waitcnt lgkmcnt(%d)' % (15 - i))
            a('v_pk_fma_f32 v[%d:%d], v[%d:%d], v[%d:%d], v[%d:%d]' % (c, c + 1, t, t + 1, V_D, V_D + 1, c, c + 1))
            a('v_pk_fma_f32 v[%d:%d], v[%d:%d], v[%d:%d], v[%d:%d]' % (c + 2, c + 3, t + 2, t + 3, V_D + 2, V_D + 3, c + 2, c + 3))
            a('buffer_store_dwordx4 v[%d:%d], v%d, s[56:59], %s offen%s' % (c, c + 3, V_OUT, S_T2, os.environ.get('STOUT', '')))
    else:
        srd(a, 48, 'ws', 4 << 20, WS_O)
        srd(a, 52, 'wo', 2 << 20)
        a('s_lshl_b32 %s, s11, 17' % S_OB)
        a('s_lshl_b32 s5, %s, 7' % S_MT)
        dma_kc_voffs(VDA, 's5', 11)
        a('s_lshl_b32 s5, %s, 5' % S_WN)
        a('v_lshrrev_b32 v%d, 3, v%d' % (T0, V_LANE))
        a('v_add_u32 v%d, s5, v%d' % (T0, T0))
        a('v_lshlrev_b32 v%d, 11, v%d' % (T0, T0))
        a('s_lshl_b32 s5, %s, 8' % S_NT)
        a('s_lshl_b32 s6, %s, 7' % S_WM)
        a('s_add_u32 s5, s5, s6')
        a('v_add_u32 v%d, s5, v%d' % (T0, T0))
        a('v_bfe_u32 v%d, v%d, 4, 1' % (T1, V_LANE))
        a('v_lshlrev_b32 v%d, 2, v%d' % (T1, T1))
        a('v_and_b32 v%d, 7, v%d' % (T2, V_LANE))
        a('v_xor_b32 v%d, v%d, v%d' % (T1, T1, T2))
        a('v_lshl_add_u32 v%d, v%d, 4, v%d' % (T0, T1, T0))
        for j in range(4):
            a('v_add_u32 v%d, 0x%x, v%d' % (VDB[j], 8 * j * 2048 - j * 1024, T0))
        a('s_lshl_b32 %s, %s, 13' % (S_TMP, S_WN))
        kn_read_addr(a, VB[0], VB[1], V_LANE, S_TMP, 16384, T0, T1)
        sA = Stream(ring, grpA, ['s_add_u32 %s, %s, 128' % (S_OA, S_OA), 's_and_b32 %s, %s, 0x7ff' % (S_OA, S_OA)],
                    mod=AMOD)
        sB = Stream(ring, grpB, ['s_add_u32 %s, %s, 0x20000' % (S_OB, S_OB), 's_and_b32 %s, %s, 0x1fffff' % (S_OB, S_OB)])
        g = Gemm(a, pfx='p2a', bmode='kn', vB=VB[:2], offB=[(0, 0), (1, 0)], streams=[sA, sB], **common)
        g.run(16)
        if not os.environ.get('WGTA'):
            wgt(a, 5)
        stage_out()
        for i in range(16):
            c = FR + 4 * i
            t = ACC + 2 * (i & 3)
            a('s_mov_b32 %s, 0x%x' % (S_T2, i * 4 * 8192))
            a('s_waitcnt lgkmcnt(%d)' % (15 - i))
            a('v_cvt_pk_bf16_f32 v%d, v%d, v%d' % (t, c, c + 1))
            a('v_cvt_pk_bf16_f32 v%d, v%d, v%d' % (t + 1, c + 2, c + 3))
            a('v_lshlrev_b32 v%d, 16, v%d' % (c, t))
            a('v_and_b32 v%d, 0xffff0000, v%d' % (c + 1, t))
            a('v_lshlrev_b32 v%d, 16, v%d' % (c + 2, t + 1))
            a('v_and_b32 v%d, 0xffff0000, v%d' % (c + 3, t + 1))
            a('buffer_store_dwordx4 v[%d:%d], v%d, s[56:59], %s offen%s' % (c, c + 3, V_OUT, S_T2, os.environ.get('STOUT', '')))
    if WGT:
        a('s_waitcnt vmcnt(0)')
    if not os.environ.get('WGTA'):
        wgt(a, 6)
    wgt_flush(a, 7, 0)
    a('s_endpgm')
```

```python
import sys, os
sys.path.insert(0, os.path.dirname(os.path.abspath(__file__)))
from asmlib import Asm
from gemm import Gemm, Ring, Stream

NAME = 'concat_heads__linear_kernel_hedgehog__ssm_conv_s5__prompt'

WS_O = 0
WS_H = 4 << 20
WS_KVP = 12 << 20
WS_ZP = 15 << 20
WS_AGG = 16 << 20

P = dict(Ax='s[16:17]', wqkv='s[18:19]', wphi='s[20:21]', wo='s[22:23]', Bx='s[24:25]', Lre='s[26:27]',
         Lim='s[28:29]', Bre='s[30:31]', Bim='s[32:33]', Cre='s[34:35]', Cim='s[36:37]', logdt='s[38:39]',
         Dsk='s[40:41]', out='s[42:43]', dbg='s[44:45]', ws='s[46:47]')
PN = dict(Ax=16, wqkv=18, wphi=20, wo=22, Bx=24, Lre=26, Lim=28, Bre=30, Bim=32, Cre=34, Cim=36, logdt=38,
          Dsk=40, out=42, dbg=44, ws=46)


def srd(a, d, ptr, nbytes, off=0):
    p = PN[ptr]
    if off:
        a('s_add_u32 s%d, s%d, 0x%x' % (d, p, off))
        a('s_addc_u32 s%d, s%d, 0' % (d + 1, p + 1))
        a('s_and_b32 s%d, s%d, 0xffff' % (d + 1, d + 1))
    else:
        a('s_mov_b32 s%d, s%d' % (d, p))
        a('s_and_b32 s%d, s%d, 0xffff' % (d + 1, p + 1))
    a('s_mov_b32 s%d, 0x%x' % (d + 2, nbytes))
    a('s_mov_b32 s%d, 0x00020000' % (d + 3))


STAMP = os.environ.get('STAMP')
def stamp(a, i):
    if not STAMP:
        return
    a('s_memtime s[%d:%d]' % (80 + 2 * i, 81 + 2 * i))
    if i == 0:
        a('s_memrealtime s[94:95]')


WGT = os.environ.get('WGT')
def wgt(a, i):
    if not WGT:
        return
    a('s_memrealtime s[%d:%d]' % (80 + 2 * i, 81 + 2 * i))
    if i == 1:
        a('s_memtime s[94:95]')
    if i == 2:
        a('s_memtime s[100:101]')


def wgt_flush(a, n, slot):
    if not WGT:
        return
    a('s_waitcnt lgkmcnt(0)')
    if os.environ.get('DBGT'):
        a('s_not_b32 s80, s80')
        a('s_lshr_b32 s5, s2, 7')
        a('s_mul_i32 s5, s5, 24')
        a('s_mov_b64 exec, 1')
        for i in range(n):
            if i == 0:
                a('v_mov_b32 v1, 0')
            else:
                a('s_add_u32 s6, s5, %d' % (4 * i))
                a('v_mov_b32 v1, s6')
            a('v_mov_b32 v2, s%d' % (80 + 2 * i))
            a('global_atomic_umax v1, v2, s[44:45] sc1')
        a('s_mov_b64 exec, -1')
        return
    srd(a, 96, 'ws', 1 << 20, (48 << 20) + slot * 65536)
    a('s_lshl_b32 s5, s2, 5')
    a('v_mov_b32 v1, 0')
    for i in range(n):
        a('v_mov_b32 v2, s%d' % (80 + 2 * i))
        a('buffer_store_dword v2, v1, s[96:99], s5 offen offset:%d' % (4 * i))
    a('s_sub_u32 s94, s100, s94')
    a('v_mov_b32 v2, s94')
    a('buffer_store_dword v2, v1, s[96:99], s5 offen offset:28')


def stamp_flush(a, n, wg=0, base=32):
    if not STAMP:
        return
    a('s_memrealtime s[100:101]')
    a('s_waitcnt lgkmcnt(0)')
    a('s_cmp_lg_u32 s2, %d' % wg)
    a('s_cbranch_scc1 stamp_skip_%d' % len(a.lines))
    lab = 'stamp_skip_%d' % (len(a.lines) - 1)
    srd(a, 96, 'dbg', 256)
    a('v_mov_b32 v1, 0')
    for i in range(n):
        a('v_mov_b32 v2, s%d' % (80 + 2 * i))
        a('buffer_store_dword v2, v1, s[96:99], 0 offen offset:%d' % (4 * i + 4 * base))
    a('v_mov_b32 v2, s94')
    a('buffer_store_dword v2, v1, s[96:99], 0 offen offset:%d' % (4 * base + 32))
    a('v_mov_b32 v2, s100')
    a('buffer_store_dword v2, v1, s[96:99], 0 offen offset:%d' % (4 * base + 36))
    a.label(lab)


def kernel_head(a, name, nwg):
    a.lines.append('.globl %s' % name)
    a.lines.append('.p2align 8')
    a.lines.append('.type %s,@function' % name)
    a.label(name)
    a('s_cmp_ge_u32 s2, %d' % nwg)
    a('s_cbranch_scc1 %s_exit' % name)
    a('s_load_dwordx16 s[16:31], s[0:1], 0')
    a('s_load_dwordx16 s[32:47], s[0:1], 64')
    stamp(a, 0)
    wgt(a, 0)


def lane_consts(a, v_lane, v_l31, v_hh, s_wave, vtmp):
    a('v_and_b32 v%d, 63, v0' % v_lane)
    a('v_and_b32 v%d, 31, v0' % v_l31)
    a('v_bfe_u32 v%d, v0, 5, 1' % v_hh)
    a('v_lshrrev_b32 v%d, 6, v0' % vtmp)
    a('v_readfirstlane_b32 %s, v%d' % (s_wave, vtmp))


def kc_read_addrs(a, vdst4, v_l31, v_hh, s_rowbase128, tilebase, t0, t1):
    a('v_bfe_u32 v%d, v%d, 1, 3' % (t0, v_l31))
    a('v_lshlrev_b32 v%d, 7, v%d' % (t1, v_l31))
    a('v_add_u32 v%d, %s, v%d' % (t1, s_rowbase128, t1))
    if tilebase:
        a('v_add_u32 v%d, 0x%x, v%d' % (t1, tilebase, t1))
    for j in range(4):
        d = vdst4[j]
        a('v_or_b32 v%d, %d, v%d' % (d, 2 * j, v_hh))
        a('v_xor_b32 v%d, v%d, v%d' % (d, d, t0))
        a('v_lshl_add_u32 v%d, v%d, 4, v%d' % (d, d, t1))


def kn_read_addr(a, vd0, vd1, v_lane, s_base, tilebase, t0, t1):
    a('v_bfe_u32 v%d, v%d, 5, 1' % (t0, v_lane))
    a('v_lshlrev_b32 v%d, 10, v%d' % (vd0, t0))
    a('v_bfe_u32 v%d, v%d, 2, 2' % (t0, v_lane))
    a('v_lshl_add_u32 v%d, v%d, 7, v%d' % (vd0, t0, vd0))
    a('v_bfe_u32 v%d, v%d, 3, 1' % (t0, v_lane))
    a('v_lshl_add_u32 v%d, v%d, 6, v%d' % (vd0, t0, vd0))
    a('v_bfe_u32 v%d, v%d, 4, 1' % (t0, v_lane))
    a('v_lshl_add_u32 v%d, v%d, 5, v%d' % (vd0, t0, vd0))
    a('v_and_b32 v%d, 3, v%d' % (t0, v_lane))
    a('v_lshl_add_u32 v%d, v%d, 3, v%d' % (vd0, t0, vd0))
    if vd1 is not None:
        a('v_xor_b32 v%d, 64, v%d' % (vd1, vd0))
    a('v_add_u32 v%d, %s, v%d' % (vd0, s_base, vd0))
    if tilebase:
        a('v_add_u32 v%d, 0x%x, v%d' % (vd0, tilebase, vd0))
    if vd1 is not None:
        a('v_add_u32 v%d, %s, v%d' % (vd1, s_base, vd1))
        if tilebase:
            a('v_add_u32 v%d, 0x%x, v%d' % (vd1, tilebase, vd1))


def gen_k3(a):
    name = 'k3_kernel'
    kernel_head(a, name, 256)
    V_LANE, V_L31, V_HH, T0, T1, T2 = 1, 2, 3, 4, 5, 6
    VA = [8, 9, 10, 11]
    VB = [12, 13, 14, 15]
    VDA = [16, 17, 18, 19]
    VDB = [20, 21, 22, 23]
    V_OUT, V_X, V_LW, V_LR = 24, 25, 26, 27
    V_D = 28
    ACC = 64
    FR = 128
    XR = 192
    S_WAVE, S_CNT, S_WROFF, S_D0, S_D1, S_TMP = 's64', 's65', 's66', 's67', 's68', 's69'
    S_OA, S_OB, S_MA, S_MB, S_MT, S_NT, S_WM, S_WN, S_T2 = 's70', 's71', 's72', 's73', 's74', 's75', 's76', 's77', 's78'
    NB, ST = 4, 32768
    lane_consts(a, V_LANE, V_L31, V_HH, S_WAVE, T0)
    a('s_and_b32 s3, s2, 7')
    a('s_lshr_b32 s4, s2, 3')
    a('s_and_b32 s5, s4, 3')
    a('s_and_b32 s6, s3, 3')
    a('s_lshl_b32 s6, s6, 2')
    a('s_add_u32 %s, s6, s5' % S_MT)
    a('s_bfe_u32 s5, s4, 0x20002')
    a('s_lshr_b32 s6, s3, 2')
    a('s_lshl_b32 s6, s6, 2')
    a('s_add_u32 %s, s6, s5' % S_NT)
    a('s_lshr_b32 %s, %s, 1' % (S_WM, S_WAVE))
    a('s_and_b32 %s, %s, 1' % (S_WN, S_WAVE))
    a('s_lshl_b32 %s, %s, 12' % (S_MA, S_WAVE))
    a('s_add_u32 %s, %s, 16384' % (S_MB, S_MA))
    if os.environ.get('NO_ROT3'):
        a('s_mov_b32 s11, 0')
    else:
        a('s_lshl_b32 s5, s3, 1')
        a('s_bfe_u32 s6, s4, 0x10004')
        a('s_add_u32 s11, s5, s6')
    a('s_lshl_b32 %s, s11, 7' % S_OA)
    a('s_mov_b32 %s, %s' % (S_OB, S_OA))
    a('s_mov_b32 s10, 0')
    if os.environ.get('EXP_STAG'):
        a('s_lshr_b32 s5, s2, 3')
        a('s_and_b32 s5, s5, 15')
        a('s_lshl_b32 %s, s5, 7' % S_OA)
        a('s_lshl_b32 %s, s5, 7' % S_OB)
    if os.environ.get('EXP_ONLYB'):
        a('s_bitcmp1_b32 s4, 4')
        a('s_cbranch_scc1 k3_kernel_exit')
    a('s_lshl_b32 %s, %s, 13' % (S_TMP, S_WM))
    kc_read_addrs(a, VA, V_L31, V_HH, S_TMP, 0, T0, T1)
    a('s_lshl_b32 s5, %s, 7' % S_MT)
    a('s_lshl_b32 s6, %s, 6' % S_WM)
    a('s_add_u32 s5, s5, s6')
    a('s_lshl_b32 s6, %s, 7' % S_NT)
    a('s_lshl_b32 s7, %s, 6' % S_WN)
    a('s_add_u32 s6, s6, s7')
    a('v_lshrrev_b32 v%d, 4, v%d' % (T0, V_LANE))
    a('v_add_u32 v%d, s5, v%d' % (T0, T0))
    a('v_and_b32 v%d, 15, v%d' % (T1, V_LANE))
    a('v_lshl_add_u32 v%d, v%d, 2, s6' % (T1, T1))
    a('v_lshlrev_b32 v%d, 13, v%d' % (V_OUT, T0))
    a('v_lshl_add_u32 v%d, v%d, 2, v%d' % (V_OUT, T1, V_OUT))
    a('v_lshlrev_b32 v%d, 11, v%d' % (V_X, T0))
    a('v_lshl_add_u32 v%d, v%d, 1, v%d' % (V_X, T1, V_X))
    a('v_lshlrev_b32 v%d, 1, v%d' % (T2, T1))
    a('s_lshl_b32 s5, %s, 14' % S_WAVE)
    a('v_lshlrev_b32 v%d, 10, v%d' % (V_LW, V_HH))
    a('v_lshl_add_u32 v%d, v%d, 2, v%d' % (V_LW, V_L31, V_LW))
    a('v_add_u32 v%d, s5, v%d' % (V_LW, V_LW))
    a('v_lshl_add_u32 v%d, v%d, 4, s5' % (V_LR, V_LANE))
    a('s_waitcnt lgkmcnt(0)')
    srd(a, 56, 'out', 2048 * 2048 * 4)
    a('s_bitcmp1_b32 s4, 4')
    a('s_cbranch_scc1 k3_outa')

    def dma_kc_voffs(vd, s_row0, pitch_log2):
        a('s_lshl_b32 %s, %s, 5' % (S_T2, S_WAVE))
        a('s_add_u32 %s, %s, %s' % (S_T2, S_T2, s_row0))
        a('v_lshrrev_b32 v%d, 3, v%d' % (T0, V_LANE))
        a('v_add_u32 v%d, %s, v%d' % (T0, S_T2, T0))
        if os.environ.get('EXP_PITCH'):
            a('v_mul_u32_u24 v%d, %d, v%d' % (T0, (1 << pitch_log2) - 128 * int(os.environ['EXP_PITCH']), T0))
        else:
            a('v_lshlrev_b32 v%d, %d, v%d' % (T0, pitch_log2, T0))
        a('v_lshrrev_b32 v%d, 4, v%d' % (T1, V_LANE))
        a('v_and_b32 v%d, 7, v%d' % (T2, V_LANE))
        a('v_xor_b32 v%d, v%d, v%d' % (T1, T1, T2))
        for j in range(4):
            a('v_xor_b32 v%d, %d, v%d' % (T2, (j & 1) * 4, T1))
            a('v_lshl_add_u32 v%d, v%d, 4, v%d' % (vd[j], T2, T0))
            c = (8 * j << pitch_log2) - j * 1024
            if os.environ.get('EXP_PITCH'):
                c = 8 * j * ((1 << pitch_log2) - 128 * int(os.environ['EXP_PITCH'])) - j * 1024
            if c:
                a('v_add_u32 v%d, 0x%x, v%d' % (vd[j], c, vd[j]))

    ring = Ring(ST, NB, ['s67', 's68', 's79', 's9'], S_TMP)
    common = dict(TM=2, TN=2, ringA=ring, ringB=ring, PD=2, NS=4, FR=FR, vA=VA, offA=[0, 4096],
                  acc=lambda tm, tn: 'v[%d:%d]' % (ACC + 16 * (2 * tm + tn), ACC + 16 * (2 * tm + tn) + 15),
                  swap=lambda tm, tn: False,
                  s_cnt=S_CNT)

    srd(a, 60, 'Dsk', 2048)
    a('buffer_load_dwordx2 v[32:33], v%d, s[60:63], 0 offen' % T2)
    srd(a, 48, 'ws', 8 << 20, WS_H)
    srd(a, 52, 'Cre', 2 << 20)
    srd(a, 96, 'Bx', 4 << 20)
    a('s_lshl_b32 s5, %s, 7' % S_MT)
    dma_kc_voffs(VDA, 's5', 12)
    a('s_lshl_b32 s5, %s, 7' % S_NT)
    dma_kc_voffs(VDB, 's5', 11)
    a('s_lshl_b32 %s, %s, 13' % (S_TMP, S_WN))
    kc_read_addrs(a, VB, V_L31, V_HH, S_TMP, 16384, T0, T1)
    g = Gemm(a, pfx='k3b', bmode='kc', vB=VB, offB=[0, 4096],
             streams=[Stream(ring, [(S_MA, [(VDA[j], 's[48:51]', S_OA, j * 1024) for j in range(4)]),
                                    (S_MB, [(VDB[j], 's[52:55]', S_OB, j * 1024) for j in range(4)])],
                             ['s_add_u32 %s, %s, 128' % (S_OB, S_OB), 's_and_b32 %s, %s, 0x7ff' % (S_OB, S_OB),
                              's_or_b32 %s, %s, s10' % (S_OA, S_OB)])], **common)
    sw = ['s_mov_b32 s52, s36', 's_and_b32 s53, s37, 0xffff', 's_mov_b32 s10, 0x800',
          's_or_b32 %s, %s, s10' % (S_OA, S_OB)]
    xl = []
    for i in range(16):
        xl.append(['s_mov_b32 %s, 0x%x' % (S_T2, i * 4 * 2048),
                   'buffer_load_dwordx2 v[%d:%d], v%d, s[96:99], %s offen' % (XR + 2 * i, XR + 2 * i + 1, V_X, S_T2)])
    def midx(n):
        for grp in xl:
            for x in grp:
                a(x)
    g.mid = midx
    g.n_extra_vm = 16
    stamp(a, 1)
    wgt(a, 1)
    g.run(32, switch=(16 - NB, sw))
    stamp(a, 2)
    wgt(a, 2)

    def stage_out():
        for tm in range(2):
            for tn in range(2):
                for r in range(16):
                    row = 32 * tm + 8 * (r >> 2) + (r & 3)
                    a('ds_write_b32 v%d, v%d offset:%d' % (V_LW, ACC + 16 * (2 * tm + tn) + r, row * 256 + tn * 128))
        a('s_waitcnt lgkmcnt(0)')
        for i in range(16):
            a('ds_read_b128 v[%d:%d], v%d offset:%d' % (FR + 4 * i, FR + 4 * i + 3, V_LR, i * 1024))

    a('v_add_u32 v%d, 0x1000, v%d' % (V_OUT, V_OUT))
    a('v_lshlrev_b32 v%d, 16, v32' % V_D)
    a('v_and_b32 v%d, 0xffff0000, v32' % (V_D + 1))
    a('v_lshlrev_b32 v%d, 16, v33' % (V_D + 2))
    a('v_and_b32 v%d, 0xffff0000, v33' % (V_D + 3))
    stage_out()
    a('s_waitcnt vmcnt(0)')
    for i in range(16):
        x = XR + 2 * i
        t = ACC + 4 * (i & 3)
        c = FR + 4 * i
        a('v_lshlrev_b32 v%d, 16, v%d' % (t, x))
        a('v_and_b32 v%d, 0xffff0000, v%d' % (t + 1, x))
        a('v_lshlrev_b32 v%d, 16, v%d' % (t + 2, x + 1))
        a('v_and_b32 v%d, 0xffff0000, v%d' % (t + 3, x + 1))
        a('s_mov_b32 %s, 0x%x' % (S_T2, i * 4 * 8192))
        a('s_waitcnt lgkmcnt(%d)' % (15 - i))
        a('v_pk_fma_f32 v[%d:%d], v[%d:%d], v[%d:%d], v[%d:%d]' % (c, c + 1, t, t + 1, V_D, V_D + 1, c, c + 1))
        a('v_pk_fma_f32 v[%d:%d], v[%d:%d], v[%d:%d], v[%d:%d]' % (c + 2, c + 3, t + 2, t + 3, V_D + 2, V_D + 3, c + 2, c + 3))
        a('buffer_store_dwordx4 v[%d:%d], v%d, s[56:59], %s offen%s' % (c, c + 3, V_OUT, S_T2, os.environ.get('STOUT', '')))
    stamp(a, 3)
    wgt(a, 3)
    if STAMP or WGT:
        a('s_waitcnt vmcnt(0)')
    stamp(a, 4)
    for i in (4, 5, 6):
        wgt(a, i)
    stamp_flush(a, 5)
    wgt_flush(a, 7, 1)
    a('s_endpgm')

    a.label('k3_outa')
    srd(a, 48, 'ws', 4 << 20, WS_O)
    srd(a, 52, 'wo', 2 << 20)
    a('s_lshl_b32 %s, s11, 17' % S_OB)
    a('s_lshl_b32 s5, %s, 7' % S_MT)
    dma_kc_voffs(VDA, 's5', 11)
    a('s_lshl_b32 s5, %s, 5' % S_WN)
    a('v_lshrrev_b32 v%d, 3, v%d' % (T0, V_LANE))
    a('v_add_u32 v%d, s5, v%d' % (T0, T0))
    a('v_lshlrev_b32 v%d, 11, v%d' % (T0, T0))
    a('s_lshl_b32 s5, %s, 8' % S_NT)
    a('s_lshl_b32 s6, %s, 7' % S_WM)
    a('s_add_u32 s5, s5, s6')
    a('v_add_u32 v%d, s5, v%d' % (T0, T0))
    a('v_bfe_u32 v%d, v%d, 4, 1' % (T1, V_LANE))
    a('v_lshlrev_b32 v%d, 2, v%d' % (T1, T1))
    a('v_and_b32 v%d, 7, v%d' % (T2, V_LANE))
    a('v_xor_b32 v%d, v%d, v%d' % (T1, T1, T2))
    a('v_lshl_add_u32 v%d, v%d, 4, v%d' % (T0, T1, T0))
    for j in range(4):
        c = 8 * j * 2048 - j * 1024
        a('v_add_u32 v%d, 0x%x, v%d' % (VDB[j], c, T0))
    a('s_lshl_b32 %s, %s, 13' % (S_TMP, S_WN))
    kn_read_addr(a, VB[0], VB[1], V_LANE, S_TMP, 16384, T0, T1)
    g = Gemm(a, pfx='k3a', bmode='kn', vB=VB[:2], offB=[(0, 0), (1, 0)],
             streams=[Stream(ring, [(S_MA, [(VDA[j], 's[48:51]', S_OA, j * 1024) for j in range(4)]),
                                    (S_MB, [(VDB[j], 's[52:55]', S_OB, j * 1024) for j in range(4)])],
                             ['s_add_u32 %s, %s, 128' % (S_OA, S_OA), 's_and_b32 %s, %s, 0x7ff' % (S_OA, S_OA),
                              's_lshl_b32 %s, %s, 10' % (S_OB, S_OA)])], **common)
    wgt(a, 1)
    g.run(16)
    wgt(a, 2)
    stage_out()
    for i in range(16):
        c = FR + 4 * i
        t = ACC + 2 * (i & 3)
        a('s_mov_b32 %s, 0x%x' % (S_T2, i * 4 * 8192))
        a('s_waitcnt lgkmcnt(%d)' % (15 - i))
        a('v_cvt_pk_bf16_f32 v%d, v%d, v%d' % (t, c, c + 1))
        a('v_cvt_pk_bf16_f32 v%d, v%d, v%d' % (t + 1, c + 2, c + 3))
        a('v_lshlrev_b32 v%d, 16, v%d' % (c, t))
        a('v_and_b32 v%d, 0xffff0000, v%d' % (c + 1, t))
        a('v_lshlrev_b32 v%d, 16, v%d' % (c + 2, t + 1))
        a('v_and_b32 v%d, 0xffff0000, v%d' % (c + 3, t + 1))
        a('buffer_store_dwordx4 v[%d:%d], v%d, s[56:59], %s offen%s' % (c, c + 3, V_OUT, S_T2, os.environ.get('STOUT', '')))
    wgt(a, 3)
    if WGT:
        a('s_waitcnt vmcnt(0)')
    for i in (4, 5, 6):
        wgt(a, i)
    wgt_flush(a, 7, 1)
    a.label(name + '_exit')
    a('s_endpgm')


def descriptor(name, vgpr, accum, sgpr=102):
    return f'''.amdhsa_kernel {name}
  .amdhsa_next_free_vgpr {vgpr}
  .amdhsa_next_free_sgpr {sgpr}
  .amdhsa_accum_offset {accum}
  .amdhsa_group_segment_fixed_size 0
  .amdhsa_kernarg_size 128
  .amdhsa_user_sgpr_count 2
  .amdhsa_user_sgpr_kernarg_segment_ptr 1
  .amdhsa_system_sgpr_workgroup_id_x 1
.end_amdhsa_kernel
'''


def main():
    which = sys.argv[1] if len(sys.argv) > 1 else 'all'
    outp = sys.argv[2] if len(sys.argv) > 2 else 'cdna_kernels/%s.s' % NAME
    ref = open('cdna_kernels/%s.s.ref' % NAME).read().split('\n')
    head = [l for l in ref if l.startswith(';') and '@launch' not in l and 'Override launch' not in l
            and 'grid=ceil' not in l]
    launches = []
    a = Asm()
    descs = []
    if which in ('all', 'k1'):
        import k1
        k1.gen_k1(a)
        launches.append('; @launch kernel=k1_kernel grid=(256,1,1) block=(512,1,1) lds=%d' % k1.LDS_BYTES)
        descs.append(descriptor('k1_kernel', 256, 256))
    if which == 'k3' or (which == 'all' and os.environ.get('NO_FUSE')):
        gen_k3(a)
        launches.append('; @launch kernel=k3_kernel grid=(256,1,1) block=(256,1,1) lds=131072')
        descs.append(descriptor('k3_kernel', 256, 256))
    txt = '\n'.join(head) + '\n' + '\n'.join(launches) + '\n'
    txt += '.amdgcn_target "amdgcn-amd-amdhsa--gfx950"\n.text\n'
    if os.environ.get('NO_STORE'):
        a.lines = [l for l in a.lines if not (l.startswith('buffer_store') and 's[96:99]' not in l)]
    if os.environ.get('NO_XLOAD'):
        a.lines = [l for l in a.lines if not l.startswith('buffer_load_ushort')]
    txt += a.finish()
    txt += '.section .rodata,"a"\n'
    for d in descs:
        txt += '.p2align 6\n' + d
    if len(launches) == 1 and which == 'all' and not os.environ.get('LIST'):
        txt = txt.replace('; @launch kernel=k1_kernel ', '; @launch ').replace('k1_kernel', NAME + '_kernel')
    open(outp, 'w').write(txt)
    print('wrote', outp, len(txt), 'bytes')


if __name__ == '__main__':
    main()
```

```python
import os
from gemm import Gemm, Ring, Stream
from gen import srd, kernel_head, lane_consts, kc_read_addrs, kn_read_addr, stamp, stamp_flush, wgt, wgt_flush
from gen import WS_O, WS_H, WS_KVP, WS_ZP, WS_AGG

LDS_BYTES = 147456
LOG2E = 0x3fb8aa3b

V_LANE, V_L31, V_HH, T0, T1, T2, T3 = 1, 2, 3, 4, 5, 6, 7
S_WAVE, S_CNT, S_WROFF, S_D0, S_D1, S_TMP, S_ST = 's64', 's65', 's66', 's67', 's68', 's69', 's79'
S_OA, S_MA, S_MT, S_NT, S_WM, S_WN, S_T2 = 's70', 's72', 's74', 's75', 's76', 's77', 's78'
S_L2E, S_HD = 's8', 's10'
SPIN_MAX = 1 << 21
FUSE = not os.environ.get('NO_FUSE')
XMAP = bool(os.environ.get('XMAP'))
WGTA = bool(os.environ.get('WGTA'))
PDA = int(os.environ.get('PDA', '1')); PDB = int(os.environ.get('PDB', '1'))
ROT = not os.environ.get('NO_ROT')
PFD = int(os.environ.get('PFD', '4'))
EARLYPOLL = bool(os.environ.get('EARLYPOLL'))
S_MA2 = 's73'
S_O2, S_ADV2, S_END2 = 's71', 's11', 's15'
VD = [13, 14, 15, 16, 17, 18, 19, 20]
V_PFD = 47


def vr(b, n):
    return 'v[%d:%d]' % (b, b + n - 1)


def wrap_adv(so, adv, end):
    return ['s_add_u32 %s, %s, %s' % (so, so, adv),
            ['s_cmp_eq_u32 %s, %s' % (so, end), 's_cselect_b32 %s, 0, %s' % (so, so)]]


def set_stream(a, so, adv, end, step, nsteps, lead):
    a('s_add_u32 s5, s7, %d' % lead)
    a('s_and_b32 s5, s5, %d' % (nsteps - 1))
    a('s_mul_i32 %s, s5, 0x%x' % (so, step))
    a('s_mov_b32 %s, 0x%x' % (adv, step))
    a('s_mov_b32 %s, 0x%x' % (end, step * nsteps))


def kc_dma_voffs(a, s_row0, permute):
    if not permute:
        a('v_lshrrev_b32 v%d, 3, v%d' % (T0, V_LANE))
    else:
        a('v_bfe_u32 v%d, v%d, 3, 2' % (T0, V_LANE))
        a('v_lshl_add_u32 v%d, v%d, 5, v%d' % (T0, V_HH, T0))
    a('v_add_u32 v%d, %s, v%d' % (T0, s_row0, T0))
    a('v_lshlrev_b32 v%d, 11, v%d' % (T0, T0))
    a('v_lshrrev_b32 v%d, 4, v%d' % (T1, V_LANE))
    a('v_and_b32 v%d, 7, v%d' % (T2, V_LANE))
    a('v_xor_b32 v%d, v%d, v%d' % (T1, T1, T2))
    for j in range(8):
        a('v_xor_b32 v%d, %d, v%d' % (T2, (j & 1) * 4, T1))
        a('v_lshl_add_u32 v%d, v%d, 4, v%d' % (VD[j], T2, T0))
        rows = (8 * j) if not permute else (16 * (j >> 2) + 4 * (j & 3))
        c = rows * 2048 - (j & 3) * 1024
        if c:
            a('v_add_u32 v%d, 0x%x, v%d' % (VD[j], c, VD[j]))


def poll(a, tag, v_off, v_tmp, s_mask_or_count, mode):
    a('s_cmp_lg_u32 %s, 0' % S_WAVE)
    a('s_cbranch_scc1 %s_done' % tag)
    a('s_mov_b32 s5, 0')
    a.label('%s_loop' % tag)
    a('global_load_dword v%d, v%d, s[44:45] sc1' % (v_tmp, v_off))
    a('s_waitcnt vmcnt(0)')
    a('v_readfirstlane_b32 s6, v%d' % v_tmp)
    a('s_nop 3')
    if mode == 'ge':
        a('s_cmp_ge_u32 s6, %s' % s_mask_or_count)
    else:
        a('s_and_b32 s6, s6, %s' % s_mask_or_count)
        a('s_cmp_eq_u32 s6, %s' % s_mask_or_count)
    a('s_cbranch_scc1 %s_done' % tag)
    a('s_sleep %s' % os.environ.get('SLEEP', '1'))
    a('s_add_u32 s5, s5, 1')
    a('s_cmp_lt_u32 s5, %d' % SPIN_MAX)
    a('s_cbranch_scc1 %s_loop' % tag)
    a.label('%s_done' % tag)
    a('s_barrier')


def softmax_pm(a, PP, EP, EN, OUTP, OUTN, t):
    mx, mn, t1, t2 = t, t + 2, t + 4, t + 6
    a('v_max3_f32 v%d, v%d, v%d, v%d' % (mx, PP, PP + 1, PP + 2))
    a('v_min3_f32 v%d, v%d, v%d, v%d' % (mn, PP, PP + 1, PP + 2))
    for i in range(3, 15, 2):
        a('v_max3_f32 v%d, v%d, v%d, v%d' % (mx, mx, PP + i, PP + i + 1))
        a('v_min3_f32 v%d, v%d, v%d, v%d' % (mn, mn, PP + i, PP + i + 1))
    a('v_max_f32 v%d, v%d, v%d' % (mx, mx, PP + 15))
    a('v_min_f32 v%d, v%d, v%d' % (mn, mn, PP + 15))
    a('v_mov_b32 v%d, v%d' % (t1, mx))
    a('v_mov_b32 v%d, v%d' % (t2, mn))
    a('v_permlane32_swap_b32 v%d, v%d' % (mx, t1))
    a('v_permlane32_swap_b32 v%d, v%d' % (mn, t2))
    a('v_max_f32 v%d, v%d, v%d' % (mx, mx, t1))
    a('v_min_f32 v%d, v%d, v%d' % (mn, mn, t2))
    a('v_mul_f32 v%d, %s, v%d' % (mx, S_L2E, mx))
    a('v_mul_f32 v%d, %s, v%d' % (mn, S_L2E, mn))
    for i in range(0, 16, 2):
        a('v_pk_fma_f32 %s, %s, s[8:9], %s op_sel_hi:[1,1,0] neg_lo:[0,0,1] neg_hi:[0,0,1]' %
          (vr(EP + i, 2), vr(PP + i, 2), vr(mx, 2)))
        a('v_pk_fma_f32 %s, %s, s[8:9], %s op_sel_hi:[1,1,0] neg_lo:[1,0,0] neg_hi:[1,0,0]' %
          (vr(EN + i, 2), vr(PP + i, 2), vr(mn, 2)))
    for i in range(16):
        a('v_exp_f32 v%d, v%d' % (EP + i, EP + i))
        a('v_exp_f32 v%d, v%d' % (EN + i, EN + i))
    a('v_pk_add_f32 %s, %s, %s' % (vr(mx, 2), vr(EP, 2), vr(EP + 2, 2)))
    a('v_pk_add_f32 %s, %s, %s' % (vr(mn, 2), vr(EN, 2), vr(EN + 2, 2)))
    a('v_pk_add_f32 %s, %s, %s' % (vr(t1, 2), vr(EP + 4, 2), vr(EP + 6, 2)))
    a('v_pk_add_f32 %s, %s, %s' % (vr(t2, 2), vr(EN + 4, 2), vr(EN + 6, 2)))
    for i in (8, 12):
        a('v_pk_add_f32 %s, %s, %s' % (vr(mx, 2), vr(mx, 2), vr(EP + i, 2)))
        a('v_pk_add_f32 %s, %s, %s' % (vr(mn, 2), vr(mn, 2), vr(EN + i, 2)))
        a('v_pk_add_f32 %s, %s, %s' % (vr(t1, 2), vr(t1, 2), vr(EP + i + 2, 2)))
        a('v_pk_add_f32 %s, %s, %s' % (vr(t2, 2), vr(t2, 2), vr(EN + i + 2, 2)))
    a('v_pk_add_f32 %s, %s, %s' % (vr(mx, 2), vr(mx, 2), vr(t1, 2)))
    a('v_pk_add_f32 %s, %s, %s' % (vr(mn, 2), vr(mn, 2), vr(t2, 2)))
    a('v_add_f32 v%d, v%d, v%d' % (mx, mx, mx + 1))
    a('v_add_f32 v%d, v%d, v%d' % (mn, mn, mn + 1))
    a('v_mov_b32 v%d, v%d' % (t1, mx))
    a('v_mov_b32 v%d, v%d' % (t2, mn))
    a('v_permlane32_swap_b32 v%d, v%d' % (mx, t1))
    a('v_permlane32_swap_b32 v%d, v%d' % (mn, t2))
    a('v_add_f32 v%d, v%d, v%d' % (mx, mx, t1))
    a('v_add_f32 v%d, v%d, v%d' % (mn, mn, t2))
    a('v_rcp_f32 v%d, v%d' % (mx, mx))
    a('v_rcp_f32 v%d, v%d' % (mn, mn))
    for i in range(0, 16, 2):
        a('v_pk_mul_f32 %s, %s, %s op_sel_hi:[1,0]' % (vr(EP + i, 2), vr(EP + i, 2), vr(mx, 2)))
        a('v_pk_mul_f32 %s, %s, %s op_sel_hi:[1,0]' % (vr(EN + i, 2), vr(EN + i, 2), vr(mn, 2)))
    for k in range(8):
        a('v_cvt_pk_bf16_f32 v%d, v%d, v%d' % (OUTP + k, EP + 2 * k, EP + 2 * k + 1))
        a('v_cvt_pk_bf16_f32 v%d, v%d, v%d' % (OUTN + k, EN + 2 * k, EN + 2 * k + 1))


def prefetch_tail(a, items, vdst, vt):
    a('s_lshl_b32 s5, %s, 4' % S_MT)
    a('s_add_u32 s5, s5, %s' % S_NT)
    a('s_lshl_b32 s5, s5, 3')
    a('s_add_u32 s5, s5, %s' % S_WAVE)
    for (ptr, nbytes) in items:
        per = nbytes // 1024
        srd(a, 96, ptr, nbytes)
        a('s_mul_i32 s6, s5, %d' % per)
        a('v_min_u32 v%d, %d, v%d' % (vt, per // 128 - 1, V_LANE))
        a('v_lshlrev_b32 v%d, 7, v%d' % (vt, vt))
        a('buffer_load_dword v%d, v%d, s[96:99], s6 offen' % (vdst, vt))


def handoff_phase2(a, which):
    import p2
    tag = 'ho' + which
    base = 32 if which == 'b' else 40
    a('s_lshl_b32 s5, %s, 2' % S_MT)
    a('s_add_u32 s5, s5, %d' % (4 * base))
    a('v_mov_b32 v34, s5')
    a('v_mov_b32 v35, 1')
    a('s_waitcnt vmcnt(0) lgkmcnt(0)')
    a('s_barrier')
    a('s_cmp_lt_u32 %s, 4' % S_WAVE)
    a('s_cbranch_scc1 %s_go' % tag)
    a('s_endpgm')
    a.label('%s_go' % tag)
    a('s_cmp_lg_u32 %s, 0' % S_WAVE)
    a('s_cbranch_scc1 %s_nosig' % tag)
    a('s_mov_b64 exec, 1')
    a('global_atomic_add v34, v35, s[44:45] sc1')
    a('s_mov_b64 exec, -1')
    a.label('%s_nosig' % tag)
    wgt(a, 6 if WGTA else 3)
    a('s_lshl_b32 %s, %s, 1' % (S_MT, S_MT))
    a('s_and_b32 s5, %s, 1' % S_NT)
    a('s_add_u32 %s, %s, s5' % (S_MT, S_MT))
    a('s_lshr_b32 %s, %s, 1' % (S_NT, S_NT))
    if XMAP:
        a('s_and_b32 s5, s2, 3')
        a('s_lshl_b32 s11, s5, 2')
    else:
        a('s_and_b32 s5, s2, 7')
        a('s_lshl_b32 s11, s5, 1')
    if which == 'b':
        a('s_add_u32 s11, s11, 1')

    def wait_fn():
        poll(a, tag + '_poll', 34, T0, '16', 'ge')
        if not WGTA:
            wgt(a, 4)
    p2.phase2(a, which, wait_fn)


def gen_k1(a):
    name = 'k1_kernel'
    kernel_head(a, name, 256)
    lane_consts(a, V_LANE, V_L31, V_HH, S_WAVE, T0)
    a('s_and_b32 s3, s2, 7')
    a('s_lshr_b32 s4, s2, 3')
    a('s_and_b32 s5, s4, 3')
    a('s_and_b32 s6, s3, 1')
    a('s_lshl_b32 s6, s6, 2')
    a('s_add_u32 %s, s6, s5' % S_MT)
    if XMAP:
        a('s_lshr_b32 s5, s4, 2')
        a('s_bfe_u32 s6, s3, 0x10001')
        a('s_lshl_b32 s6, s6, 3')
        a('s_add_u32 %s, s6, s5' % S_NT)
        a('s_lshr_b32 s4, s3, 2')
        a('s_lshl_b32 s4, s4, 4')
    else:
        a('s_bfe_u32 s5, s4, 0x20002')
        a('s_lshr_b32 s6, s3, 1')
        a('s_lshl_b32 s6, s6, 2')
        a('s_add_u32 %s, s6, s5' % S_NT)
    a('s_lshr_b32 %s, %s, 1' % (S_WM, S_WAVE))
    a('s_and_b32 %s, %s, 1' % (S_WN, S_WAVE))
    a('s_lshl_b32 %s, %s, 13' % (S_MA, S_WAVE))
    a('s_add_u32 %s, %s, 4096' % (S_MA2, S_MA))
    if ROT and XMAP:
        a('s_and_b32 s5, s3, 3')
        a('s_lshl_b32 s5, s5, 2')
        a('s_bfe_u32 s6, s4, 0x10004')
        a('s_lshl_b32 s6, s6, 1')
        a('s_add_u32 s7, s5, s6')
    elif ROT:
        a('s_lshl_b32 s5, s3, 1')
        a('s_bfe_u32 s6, s4, 0x10004')
        a('s_add_u32 s7, s5, s6')
    else:
        a('s_mov_b32 s7, 0')
    a('s_mov_b32 s8, 0x%x' % LOG2E)
    a('s_mov_b32 s9, 0x%x' % LOG2E)
    VA = [8, 9, 10, 11]
    a('s_lshl_b32 %s, %s, 13' % (S_TMP, S_WM))
    kc_read_addrs(a, VA, V_L31, V_HH, S_TMP, 0, T0, T1)
    a('s_waitcnt lgkmcnt(0)')
    a('s_bitcmp1_b32 s4, 4')
    a('s_cbranch_scc1 k1_B')
    gen_A(a, VA)
    a.label('k1_B')
    gen_B(a, VA)
    a.label(name + '_exit')
    a('s_endpgm')


S_MB, S_MB2 = 's66', 's78'


def run_roles(a, tag, ringA, ringB, streamB_groups, **cfg):
    a('s_cmp_ge_u32 %s, 4' % S_WAVE)
    a('s_cbranch_scc1 %s_r1' % tag)
    sa = Stream(ringA, [(S_MA, [(VD[j], 's[48:51]', S_OA, j * 1024) for j in range(4)]),
                        (S_MA2, [(VD[4 + j], 's[48:51]', S_OA, j * 1024) for j in range(4)])],
                ['s_add_u32 %s, %s, 128' % (S_OA, S_OA), 's_and_b32 %s, %s, 0x7ff' % (S_OA, S_OA)])
    sb = Stream(ringB, streamB_groups, wrap_adv(S_O2, S_ADV2, S_END2))
    g = Gemm(a, pfx=tag + 'd', streams=[sa, sb], ringA=ringA, ringB=ringB, **cfg)
    g.run(16)
    a('s_branch %s_join' % tag)
    a.label('%s_r1' % tag)
    g = Gemm(a, pfx=tag + 'n', streams=[], ringA=ringA, ringB=ringB, **cfg)
    g.run(16)
    a.label('%s_join' % tag)


BBASE = 98304
BBASE_A = 65536 if not os.environ.get('NO_SWAPRING') else 98304


def gen_A(a, VA):
    a.comment('==== A: qkv gemm')
    VB0 = 12
    WPH = 24
    VWR = 32
    VTR = 40
    V_OFF, V_ONE, V_O = 44, 45, 46
    V_OW, V_OR = 13, 47
    OBASE = 16384
    ACC = 48
    FR = 144
    AQ, AK, AV = ACC, ACC + 32, ACC + 64
    NB, ST = 2, 57344
    srd(a, 56, 'wphi', 65536)
    a('s_lshl_b32 %s, %s, 1' % (S_HD, S_NT))
    a('s_add_u32 %s, %s, %s' % (S_HD, S_HD, S_WN))
    a('v_lshlrev_b32 v%d, 8, v%d' % (T0, V_HH))
    a('v_lshl_add_u32 v%d, v%d, 1, v%d' % (T0, V_L31, T0))
    a('s_lshl_b32 s5, %s, 11' % S_HD)
    for s in range(2):
        for i in range(8):
            d = 16 * s + 8 * (i >> 2) + (i & 3)
            a('buffer_load_ushort v%d, v%d, s[56:59], s5 offen offset:%d' % (ACC + 8 * s + i, T0, d * 64))
    VW = [184, 185, 186, 187, 188, 189]
    srd(a, 48, 'Ax', 4 << 20)
    srd(a, 52, 'wqkv', 6 << 20)
    a('s_and_b32 s4, %s, 3' % S_WAVE)
    a('s_lshl_b32 s5, %s, 8' % S_MT)
    a('s_lshl_b32 s6, s4, 6')
    a('s_add_u32 s6, s5, s6')
    kc_dma_voffs(a, 's6', False)
    a('s_lshl_b32 %s, s7, 7' % S_OA)
    a('v_lshrrev_b32 v%d, 3, v%d' % (T0, V_LANE))
    a('v_mul_u32_u24 v%d, 6144, v%d' % (T0, T0))
    a('v_bfe_u32 v%d, v%d, 4, 1' % (T1, V_LANE))
    a('v_lshlrev_b32 v%d, 2, v%d' % (T1, T1))
    a('v_and_b32 v%d, 7, v%d' % (T2, V_LANE))
    a('v_xor_b32 v%d, v%d, v%d' % (T1, T1, T2))
    a('v_lshl_add_u32 v%d, v%d, 4, v%d' % (T0, T1, T0))
    a('s_mul_i32 s4, s4, 6')
    a('s_lshl_b32 %s, s4, 10' % S_MB)
    a('s_add_u32 %s, %s, %d' % (S_MB, S_MB, BBASE_A))
    a('s_add_u32 %s, %s, 4096' % (S_MB2, S_MB))
    for j in range(6):
        a('s_add_u32 s5, s4, %d' % j)
        a('s_lshr_b32 s6, s5, 3')
        a('s_and_b32 s5, s5, 7')
        a('s_mul_i32 s5, s5, 49152')
        a('s_lshl_b32 s6, s6, 11')
        a('s_add_u32 s5, s5, s6')
        a('s_lshl_b32 s6, %s, 7' % S_NT)
        a('s_add_u32 s5, s5, s6')
        if j & 3:
            a('s_sub_u32 s5, s5, %d' % ((j & 3) * 1024))
        a('v_add_u32 v%d, s5, v%d' % (VW[j], T0))
    set_stream(a, S_O2, S_ADV2, S_END2, 0x60000, 16, 0)
    a('s_mov_b32 %s, 0' % S_TMP)
    kn_read_addr(a, VB0, None, V_LANE, S_TMP, BBASE_A, T0, T1)
    a('s_lshl_b32 s5, %s, 6' % S_WN)
    a('v_xor_b32 v%d, s5, v%d' % (VB0, VB0))

    def mid(nvm):
        a('s_lshl_b32 s5, %s, 13' % S_WAVE)
        a('v_and_b32 v%d, 5, v%d' % (T0, V_L31))
        a('v_bfe_u32 v%d, v%d, 1, 1' % (T1, V_L31))
        a('v_lshl_or_b32 v%d, v%d, 3, v%d' % (T0, T1, T0))
        a('v_bfe_u32 v%d, v%d, 3, 1' % (T1, V_L31))
        a('v_lshl_or_b32 v%d, v%d, 1, v%d' % (T0, T1, T0))
        a('v_xor_b32 v%d, v%d, v%d' % (T0, T0, V_HH))
        a('v_lshlrev_b32 v%d, 3, v%d' % (T0, T0))
        a('v_lshl_add_u32 v%d, v%d, 7, v%d' % (T0, V_L31, T0))
        a('v_add_u32 v%d, s5, v%d' % (T0, T0))
        for k in range(8):
            a('v_xor_b32 v%d, %d, v%d' % (VWR + k, ((k & 3) * 2 + (k >> 2) * 8) * 8, T0))
        a('v_bfe_u32 v%d, v%d, 2, 2' % (T0, V_LANE))
        a('v_lshl_add_u32 v%d, v%d, 2, v%d' % (T0, V_HH, T0))
        a('v_and_b32 v%d, 5, v%d' % (T1, T0))
        a('v_bfe_u32 v%d, v%d, 1, 1' % (T2, T0))
        a('v_lshl_or_b32 v%d, v%d, 3, v%d' % (T1, T2, T1))
        a('v_and_b32 v%d, 3, v%d' % (T2, V_LANE))
        a('v_bfe_u32 v%d, v%d, 4, 1' % (T3, V_LANE))
        a('v_lshl_or_b32 v%d, v%d, 2, v%d' % (T2, T3, T2))
        a('v_xor_b32 v%d, v%d, v%d' % (T1, T1, T2))
        a('v_lshlrev_b32 v%d, 3, v%d' % (T1, T1))
        a('v_lshl_add_u32 v%d, v%d, 7, v%d' % (T1, T0, T1))
        a('v_add_u32 v%d, s5, v%d' % (T1, T1))
        for ft in range(2):
            for u in range(2):
                a('v_xor_b32 v%d, %d, v%d' % (VTR + 2 * ft + u, ft * 64 + u * 16, T1))
        a('s_lshl_b32 s5, %s, 2' % S_NT)
        if os.environ.get('DBGT'):
            a('s_add_u32 s5, s5, 192')
        a('v_mov_b32 v%d, s5' % V_OFF)
        a('v_mov_b32 v%d, 1' % V_ONE)
        a('s_lshl_b32 s5, %s, 12' % S_WAVE)
        a('v_lshrrev_b32 v%d, 3, v%d' % (T0, V_LANE))
        a('v_and_b32 v%d, 7, v%d' % (T1, V_LANE))
        a('v_xor_b32 v%d, v%d, v%d' % (T2, T0, T1))
        a('v_lshlrev_b32 v%d, 4, v%d' % (T2, T2))
        a('v_lshl_add_u32 v%d, v%d, 7, v%d' % (T2, T0, T2))
        a('v_add_u32 v%d, s5, v%d' % (V_OR, T2))
        a('s_lshl_b32 s5, %s, 8' % S_MT)
        a('s_lshl_b32 s6, %s, 5' % S_WAVE)
        a('s_add_u32 s5, s5, s6')
        a('v_add_u32 v%d, s5, v%d' % (T0, T0))
        a('v_lshlrev_b32 v%d, 11, v%d' % (T0, T0))
        a('v_lshl_add_u32 v%d, v%d, 4, v%d' % (T0, T1, T0))
        a('s_lshl_b32 s5, %s, 7' % S_NT)
        a('v_add_u32 v%d, s5, v%d' % (V_O, T0))
        a('s_waitcnt vmcnt(%d)' % nvm)
        for r in range(8):
            a('v_lshl_or_b32 v%d, v%d, 16, v%d' % (WPH + r, ACC + 2 * r + 1, ACC + 2 * r))

    def acc(tm, tn):
        return vr(ACC + 32 * tn + 16 * tm, 16)

    stamp(a, 1)
    wgt(a, 1)
    if not os.environ.get('NO_SWAPRING'):
        ringA = Ring(32768, 2, ['s67', 's68', 's79'], S_TMP)
        ringB = Ring(24576, 3, ['s12', 's13', 's14'], S_TMP)
    else:
        ringA = Ring(32768, 3, ['s67', 's68', 's79'], S_TMP)
        ringB = Ring(24576, 2, ['s12', 's13'], S_TMP)
    sbg = [(S_MB, [(VW[j], 's[52:55]', S_O2, j * 1024) for j in range(4)]),
           (S_MB2, [(VW[4 + j], 's[52:55]', S_O2, j * 1024) for j in range(2)])]
    run_roles(a, 'k1a', ringA, ringB, sbg, TM=2, TN=3, PD=PDA, NS=2 * PDA, FR=FR, vA=VA, offA=[0, 4096],
              bmode='kn', vB=[VB0], offB=[(0, 0), (0, 8192), (0, 16384)], acc=acc,
              swap=lambda tm, tn: tn < 2,
              s_cnt=S_CNT, mid=mid)
    stamp(a, 2)
    wgt(a, 2)
    PK = 144
    PP = 152
    EP = 168
    EN = 184
    OP = 200
    ON = 208
    KV = 216
    TS = 248
    ZA = 22
    V_ONES = 21
    AF = 168
    a('v_mov_b32 v%d, 0x3f803f80' % V_ONES)
    a('v_mov_b32 v%d, 0' % ZA)
    a('v_mov_b32 v%d, 0' % (ZA + 1))
    srd(a, 56, 'ws', 4 << 20, WS_KVP)
    srd(a, 60, 'ws', 4 << 20, WS_O)

    def featmap(src, outp, outn):
        for k in range(8):
            a('v_cvt_pk_bf16_f32 v%d, v%d, v%d' % (PK + k, src + 2 * k, src + 2 * k + 1))
        a('v_mfma_f32_32x32x16_bf16 %s, %s, %s, 0' % (vr(PP, 16), vr(WPH, 4), vr(PK, 4)))
        a('v_mfma_f32_32x32x16_bf16 %s, %s, %s, %s' % (vr(PP, 16), vr(WPH + 4, 4), vr(PK + 4, 4), vr(PP, 16)))
        softmax_pm(a, PP, EP, EN, outp, outn, TS)

    for tm in range(2):
        featmap(AK + 16 * tm, OP, ON)
        if tm == 0:
            a('s_barrier')
        for g4 in range(4):
            a('ds_write_b64 v%d, %s offset:%d' % (VWR + g4, vr(OP + 2 * g4, 2), tm * 4096))
            a('ds_write_b64 v%d, %s offset:%d' % (VWR + 4 + g4, vr(ON + 2 * g4, 2), tm * 4096))
        for k in range(8):
            a('v_cvt_pk_bf16_f32 v%d, v%d, v%d' % (PK + k, AV + 16 * tm + 2 * k, AV + 16 * tm + 2 * k + 1))
        a('s_waitcnt lgkmcnt(0)')
        for ft in range(2):
            for s in range(2):
                f = AF + 4 * (2 * ft + s)
                for u in range(2):
                    a('ds_read_b64_tr_b16 %s, v%d offset:%d' % (vr(f + 2 * u, 2), VTR + 2 * ft + u,
                                                                 tm * 4096 + s * 2048 + u * 1024))
        for ft in range(2):
            for s in range(2):
                f = AF + 4 * (2 * ft + s)
                a('s_waitcnt lgkmcnt(%d)' % (6 - 2 * (2 * ft + s)))
                c = '0' if (tm == 0 and s == 0) else vr(KV + 16 * ft, 16)
                a('v_mfma_f32_32x32x16_bf16 %s, %s, %s, %s' % (vr(KV + 16 * ft, 16), vr(f, 4), vr(PK + 4 * s, 4), c))
                for k in range(4):
                    a('v_dot2c_f32_bf16 v%d, v%d, v%d' % (ZA + ft, f + k, V_ONES))
    a('v_mov_b32 v%d, v%d' % (TS, ZA))
    a('v_mov_b32 v%d, v%d' % (TS + 1, ZA + 1))
    a('v_permlane32_swap_b32 v%d, v%d' % (ZA, TS))
    a('v_permlane32_swap_b32 v%d, v%d' % (ZA + 1, TS + 1))
    a('v_add_f32 v%d, v%d, v%d' % (ZA, ZA, TS))
    a('v_add_f32 v%d, v%d, v%d' % (ZA + 1, ZA + 1, TS + 1))
    a('v_cmp_eq_u32 vcc, 1, v%d' % V_HH)
    a('v_cndmask_b32 v%d, v%d, v%d, vcc' % (ZA, ZA, ZA + 1))
    a('s_lshl_b32 s5, %s, 13' % S_WAVE)
    a('v_lshl_add_u32 v%d, v%d, 4, s5' % (T0, V_LANE))
    a('s_lshl_b32 s5, %s, 8' % S_WAVE)
    a('s_add_u32 s5, s5, 65536')
    a('v_lshl_add_u32 v%d, v%d, 2, s5' % (T1, V_LANE))
    a('ds_write_b32 v%d, v%d' % (T1, ZA))
    for q in range(8):
        a('ds_write_b128 v%d, %s offset:%d' % (T0, vr(KV + 4 * q, 4), q * 1024))
    a('s_lshl_b32 s5, %s, 13' % S_WN)
    a('s_lshl_b32 s6, %s, 11' % S_WM)
    a('s_add_u32 s5, s5, s6')
    a('v_lshl_add_u32 v%d, v%d, 4, s5' % (T0, V_LANE))
    a('s_lshl_b32 s5, %s, 8' % S_WN)
    a('s_add_u32 s5, s5, 65536')
    a('v_lshl_add_u32 v%d, v%d, 2, s5' % (T1, V_LANE))
    a('s_lshl_b32 s5, %s, 5' % S_MT)
    a('s_add_u32 s5, s5, %s' % S_HD)
    a('s_lshl_b32 s6, s5, 13')
    a('s_lshl_b32 s7, %s, 11' % S_WM)
    a('s_add_u32 s6, s6, s7')
    a('v_lshlrev_b32 v%d, 4, v%d' % (T2, V_LANE))
    a('s_lshl_b32 s7, s5, 8')
    a('s_add_u32 s7, s7, 0x%x' % (WS_ZP - WS_KVP))
    a('v_lshlrev_b32 v%d, 2, v%d' % (T3, V_LANE))
    a('s_waitcnt lgkmcnt(0)')
    a('s_barrier')
    R = 216
    for w in range(4):
        for q in range(2):
            a('ds_read_b128 %s, v%d offset:%d' % (vr(R + 8 * w + 4 * q, 4), T0, w * 16384 + q * 1024))
    for w in range(4):
        a('ds_read_b32 v%d, v%d offset:%d' % (OP + w, T1, w * 512))
    a('s_waitcnt lgkmcnt(4)')
    for k in range(0, 8, 2):
        a('v_pk_add_f32 %s, %s, %s' % (vr(R + k, 2), vr(R + k, 2), vr(R + 8 + k, 2)))
        a('v_pk_add_f32 %s, %s, %s' % (vr(R + 16 + k, 2), vr(R + 16 + k, 2), vr(R + 24 + k, 2)))
    for k in range(0, 8, 2):
        a('v_pk_add_f32 %s, %s, %s' % (vr(R + k, 2), vr(R + k, 2), vr(R + 16 + k, 2)))
    a('buffer_store_dwordx4 %s, v%d, s[56:59], s6 offen sc1' % (vr(R, 4), T2))
    a('buffer_store_dwordx4 %s, v%d, s[56:59], s6 offen offset:1024 sc1' % (vr(R + 4, 4), T2))
    a('s_waitcnt lgkmcnt(0)')
    a('v_add_f32 v%d, v%d, v%d' % (OP, OP, OP + 1))
    a('v_add_f32 v%d, v%d, v%d' % (OP + 2, OP + 2, OP + 3))
    a('v_add_f32 v%d, v%d, v%d' % (ZA, OP, OP + 2))
    a('s_cmp_lg_u32 %s, 0' % S_WM)
    a('s_cbranch_scc1 k1a_noz')
    a('buffer_store_dword v%d, v%d, s[56:59], s7 offen sc1' % (ZA, T3))
    a.label('k1a_noz')
    stamp(a, 3)
    if (not FUSE) or WGTA:
        wgt(a, 3)
    PQ = AK
    featmap(AQ, PQ, PQ + 8)
    a('s_waitcnt vmcnt(0)')
    a('s_barrier')
    a('s_cmp_lg_u32 %s, 0' % S_WAVE)
    a('s_cbranch_scc1 k1a_nosig')
    a('s_mov_b64 exec, 1')
    a('global_atomic_add v%d, v%d, s[44:45] sc1' % (V_OFF, V_ONE))
    a('s_mov_b64 exec, -1')
    a.label('k1a_nosig')
    if not EARLYPOLL:
        featmap(AQ + 16, PQ + 16, PQ + 24)
    stamp(a, 4)
    if (not FUSE) or WGTA:
        wgt(a, 4)
    poll(a, 'k1a_poll', V_OFF, T0, '8', 'ge')
    stamp(a, 5)
    if (not FUSE) or WGTA:
        wgt(a, 5)
    a('s_lshl_b32 s6, %s, 13' % S_HD)
    a('s_lshl_b32 s7, %s, 11' % S_WM)
    a('s_add_u32 s6, s6, s7')
    if EARLYPOLL:
        L = AV
        LM = [AV, AV + 8, AV + 16, AV + 24, 216, 224, 232, 240]
        ZL = AQ
    else:
        LM = [144 + 8 * m for m in range(8)]
        ZL = 208
    for m in range(8):
        a('buffer_load_dwordx4 %s, v%d, s[56:59], s6 offen sc1' % (vr(LM[m], 4), T2))
        a('buffer_load_dwordx4 %s, v%d, s[56:59], s6 offen offset:1024 sc1' % (vr(LM[m] + 4, 4), T2))
        if m < 7:
            a('s_add_u32 s6, s6, 0x40000')
    a('s_lshl_b32 s7, %s, 8' % S_HD)
    a('s_add_u32 s7, s7, 0x%x' % (WS_ZP - WS_KVP))
    for m in range(8):
        a('buffer_load_dword v%d, v%d, s[56:59], s7 offen sc1' % (ZL + m, T3))
        if m < 7:
            a('s_add_u32 s7, s7, 0x2000')
    if EARLYPOLL:
        featmap(AQ + 16, PQ + 16, PQ + 24)
    a('s_lshl_b32 s5, %s, 12' % S_WN)
    a('v_lshl_add_u32 v%d, v%d, 4, s5' % (T0, V_LANE))
    a('s_lshl_b32 s6, %s, 10' % S_WM)
    a('v_add_u32 v%d, s6, v%d' % (T1, T0))
    a('s_lshl_b32 s5, %s, 13' % S_WM)
    a('s_lshl_b32 s6, %s, 2' % S_WN)
    a('v_or_b32 v%d, s6, v%d' % (TS, V_HH))
    a('v_and_b32 v%d, 7, v%d' % ((TS + 1), V_L31))
    a('v_xor_b32 v%d, v%d, v%d' % (TS, TS, (TS + 1)))
    a('v_lshlrev_b32 v%d, 4, v%d' % (TS, TS))
    a('v_lshl_add_u32 v%d, v%d, 7, v%d' % (TS, V_L31, TS))
    a('v_add_u32 v%d, s5, v%d' % (V_OW, TS))
    a('v_xor_b32 v%d, 32, v%d' % (V_OW + 1, V_OW))
    a('s_waitcnt vmcnt(8)')
    for k in range(0, 8, 2):
        for m in range(0, 8, 2):
            a('v_pk_add_f32 %s, %s, %s' % (vr(LM[m] + k, 2), vr(LM[m] + k, 2), vr(LM[m + 1] + k, 2)))
    for k in range(0, 8, 2):
        a('v_pk_add_f32 %s, %s, %s' % (vr(LM[0] + k, 2), vr(LM[0] + k, 2), vr(LM[2] + k, 2)))
        a('v_pk_add_f32 %s, %s, %s' % (vr(LM[4] + k, 2), vr(LM[4] + k, 2), vr(LM[6] + k, 2)))
    for k in range(0, 8, 2):
        a('v_pk_add_f32 %s, %s, %s' % (vr(LM[0] + k, 2), vr(LM[0] + k, 2), vr(LM[4] + k, 2)))
    for k in range(4):
        a('v_cvt_pk_bf16_f32 v%d, v%d, v%d' % (LM[1] + k, LM[0] + 2 * k, LM[0] + 2 * k + 1))
    a('ds_write_b128 v%d, %s' % (T1, vr(LM[1], 4)))
    a('s_waitcnt vmcnt(0)')
    for m in range(0, 8, 4):
        a('v_pk_add_f32 %s, %s, %s' % (vr(ZL + m, 2), vr(ZL + m, 2), vr(ZL + m + 2, 2)))
    a('v_pk_add_f32 %s, %s, %s' % (vr(ZL, 2), vr(ZL, 2), vr(ZL + 4, 2)))
    a('v_add_f32 v%d, v%d, v%d' % (ZL, ZL, ZL + 1))
    a('v_cvt_pk_bf16_f32 v%d, v%d, v%d' % (ZL, ZL, ZL))
    a('s_lshl_b32 s5, %s, 7' % S_WN)
    a('s_add_u32 s5, s5, 8192')
    a('v_lshl_add_u32 v%d, v%d, 1, s5' % (T1, V_LANE))
    a('ds_write_b16 v%d, v%d' % (T1, ZL))
    a('v_lshl_add_u32 v%d, v%d, 3, s5' % (T1, V_HH))
    a('s_lshl_b32 s5, %s, 6' % S_HD)
    a('s_add_u32 s6, s5, 0x10000')
    a('s_waitcnt lgkmcnt(0)')
    a('s_barrier')
    KF = 144
    ZF = 160
    for f in range(4):
        a('ds_read_b128 %s, v%d offset:%d' % (vr(KF + 4 * f, 4), T0, f * 1024))
        a('ds_read_b64 %s, v%d offset:%d' % (vr(ZF + 4 * f, 2), T1, f * 32))
        a('ds_read_b64 %s, v%d offset:%d' % (vr(ZF + 4 * f + 2, 2), T1, f * 32 + 16))
    NUM = 176
    DEN = 208
    for f in range(4):
        a('s_waitcnt lgkmcnt(%d)' % (9 - 3 * f))
        for tm in range(2):
            b = PQ + 16 * tm + 4 * f
            a('v_mfma_f32_32x32x16_bf16 %s, %s, %s, %s' % (vr(DEN + 16 * tm, 16), vr(ZF + 4 * f, 4), vr(b, 4),
                                                           '0' if f == 0 else vr(DEN + 16 * tm, 16)))
            a('v_mfma_f32_32x32x16_bf16 %s, %s, %s, %s' % (vr(NUM + 16 * tm, 16), vr(KF + 4 * f, 4), vr(b, 4),
                                                           '0' if f == 0 else vr(NUM + 16 * tm, 16)))
    for tm in range(2):
        d = DEN + 16 * tm
        n = NUM + 16 * tm
        a('v_add_f32 v%d, 0x358637bd, v%d' % (d, d))
        a('v_rcp_f32 v%d, v%d' % (d, d))
        for k in range(0, 16, 2):
            a('v_pk_mul_f32 %s, %s, %s op_sel_hi:[1,0]' % (vr(n + k, 2), vr(n + k, 2), vr(d, 2)))
        o = d + 4
        for k in range(8):
            a('v_cvt_pk_bf16_f32 v%d, v%d, v%d' % (o + k, n + 2 * k, n + 2 * k + 1))
        for p in range(2):
            a('v_permlane32_swap_b32 v%d, v%d' % (o + 4 * p, o + 4 * p + 2))
            a('v_permlane32_swap_b32 v%d, v%d' % (o + 4 * p + 1, o + 4 * p + 3))
            a('ds_write_b128 v%d, %s offset:%d' % (V_OW + p, vr(o + 4 * p, 4), OBASE + tm * 4096))
    a('s_waitcnt lgkmcnt(0)')
    a('s_barrier')
    for i in range(4):
        a('ds_read_b128 %s, v%d offset:%d' % (vr(144 + 4 * i, 4), V_OR, OBASE + i * 1024))
    for i in range(4):
        a('s_mov_b32 s5, 0x%x' % (i * 8 * 2048))
        a('s_waitcnt lgkmcnt(%d)' % (3 - i))
        a('buffer_store_dwordx4 %s, v%d, s[60:63], s5 offen%s' % (vr(144 + 4 * i, 4), V_O,
                                                                  os.environ.get('STO', ' sc1' if FUSE else '')))
    if FUSE:
        handoff_phase2(a, 'a')
        return
    stamp(a, 6)
    wgt(a, 6)
    stamp_flush(a, 7, 0)
    wgt_flush(a, 7, 0)
    a('s_endpgm')


def cmul(a, dr, di, ar, ai, br, bi, t):
    a('v_mul_f32 v%d, v%d, v%d' % (t, ai, bi))
    a('v_mul_f32 v%d, v%d, v%d' % (t + 1, ar, bi))
    a('v_fma_f32 v%d, v%d, v%d, -v%d' % (t, ar, br, t))
    a('v_fma_f32 v%d, v%d, v%d, v%d' % (di, ai, br, t + 1))
    a('v_mov_b32 v%d, v%d' % (dr, t))


def cfma(a, hr, hi, lr, li, ur, ui, t):
    a('v_fma_f32 v%d, -v%d, v%d, v%d' % (t, li, hi, ur))
    a('v_fma_f32 v%d, v%d, v%d, v%d' % (t + 1, li, hr, ui))
    a('v_fma_f32 v%d, v%d, v%d, v%d' % (hr, lr, hr, t))
    a('v_fma_f32 v%d, v%d, v%d, v%d' % (hi, lr, hi, t + 1))


def gen_B(a, VA):
    a.comment('==== B: input projection gemm')
    VB = [12, 21, 22, 23]
    LR, LI, CR, CI, L32R, L32I, L256R, L256I = 24, 25, 26, 27, 28, 29, 30, 31
    V_P2, V_OFF, V_BIT, V_SEL, V_H, V_Q = 32, 33, 34, 35, 36, 37
    TT = 38
    V_HW = 47
    ACC = 48
    FR = 112
    NB, ST = 3, 49152
    a('s_lshl_b32 s5, %s, 6' % S_NT)
    a('s_lshl_b32 s6, %s, 5' % S_WN)
    a('s_add_u32 s5, s5, s6')
    a('v_add_u32 v%d, s5, v%d' % (V_P2, V_L31))
    a('v_lshlrev_b32 v%d, 1, v%d' % (T0, V_P2))
    a('global_load_ushort v%d, v%d, s[26:27]' % (TT, T0))
    a('global_load_ushort v%d, v%d, s[28:29]' % (TT + 1, T0))
    a('global_load_ushort v%d, v%d, s[38:39]' % (TT + 2, T0))
    VW = [176, 177, 178, 179]
    srd(a, 48, 'Bx', 4 << 20)
    srd(a, 52, 'Bre', 2 << 20)
    srd(a, 56, 'Bim', 2 << 20)
    a('s_and_b32 s4, %s, 3' % S_WAVE)
    a('s_cmp_ge_u32 s4, 2')
    a('s_cselect_b32 s52, s56, s52')
    a('s_cselect_b32 s53, s57, s53')
    a('s_lshl_b32 s5, %s, 8' % S_MT)
    a('s_lshl_b32 s6, s4, 6')
    a('s_add_u32 s6, s5, s6')
    kc_dma_voffs(a, 's6', True)
    a('s_lshl_b32 %s, s7, 7' % S_OA)
    a('s_lshl_b32 s5, %s, 6' % S_NT)
    a('s_and_b32 s6, s4, 1')
    a('s_lshl_b32 s6, s6, 5')
    a('s_add_u32 s5, s5, s6')
    a('v_lshrrev_b32 v%d, 3, v%d' % (T0, V_LANE))
    a('v_add_u32 v%d, s5, v%d' % (T0, T0))
    a('v_lshlrev_b32 v%d, 11, v%d' % (T0, T0))
    for j in range(4):
        a('v_xor_b32 v%d, %d, v%d' % (T2, (j & 1) * 4, T1))
        a('v_lshl_add_u32 v%d, v%d, 4, v%d' % (VW[j], T2, T0))
        if j:
            a('v_add_u32 v%d, 0x%x, v%d' % (VW[j], 8 * j * 2048 - j * 1024, VW[j]))
    a('s_lshl_b32 %s, s4, 12' % S_MB)
    a('s_add_u32 %s, %s, %d' % (S_MB, S_MB, BBASE))
    set_stream(a, S_O2, S_ADV2, S_END2, 128, 16, 0)
    a('s_lshl_b32 %s, %s, 12' % (S_TMP, S_WN))
    kc_read_addrs(a, VB, V_L31, V_HH, S_TMP, BBASE, T0, T1)

    def mid(nvm):
        a('s_waitcnt vmcnt(%d)' % nvm)
        lre, lim, dt = TT, TT + 1, TT + 2
        a('v_lshlrev_b32 v%d, 16, v%d' % (lre, lre))
        a('v_lshlrev_b32 v%d, 16, v%d' % (lim, lim))
        a('v_lshlrev_b32 v%d, 16, v%d' % (dt, dt))
        a('v_mul_f32 v%d, %s, v%d' % (dt, S_L2E, dt))
        a('v_exp_f32 v%d, v%d' % (dt, dt))
        a('v_cvt_pk_bf16_f32 v%d, v%d, v%d' % (dt, dt, dt))
        a('v_lshlrev_b32 v%d, 16, v%d' % (dt, dt))
        a('v_mul_f32 v%d, v%d, v%d' % (TT + 3, dt, lre))
        a('v_mul_f32 v%d, v%d, v%d' % (TT + 4, dt, lim))
        a('v_mul_f32 v%d, %s, v%d' % (TT + 3, S_L2E, TT + 3))
        a('v_exp_f32 v%d, v%d' % (TT + 3, TT + 3))
        a('v_mul_f32 v%d, 0.15915494, v%d' % (TT + 4, TT + 4))
        a('v_rndne_f32 v%d, v%d' % (TT + 5, TT + 4))
        a('v_sub_f32 v%d, v%d, v%d' % (TT + 4, TT + 4, TT + 5))
        a('v_cos_f32 v%d, v%d' % (LR, TT + 4))
        a('v_sin_f32 v%d, v%d' % (LI, TT + 4))
        a('v_mul_f32 v%d, v%d, v%d' % (LR, LR, TT + 3))
        a('v_mul_f32 v%d, v%d, v%d' % (LI, LI, TT + 3))
        a('v_add_f32 v%d, -1.0, v%d' % (TT + 5, LR))
        a('v_mul_f32 v%d, v%d, v%d' % (TT + 6, lre, lre))
        a('v_fma_f32 v%d, v%d, v%d, v%d' % (TT + 6, lim, lim, TT + 6))
        a('v_rcp_f32 v%d, v%d' % (TT + 6, TT + 6))
        a('v_mul_f32 v%d, v%d, v%d' % (CR, TT + 5, lre))
        a('v_fma_f32 v%d, v%d, v%d, v%d' % (CR, LI, lim, CR))
        a('v_mul_f32 v%d, v%d, v%d' % (CI, TT + 5, lim))
        a('v_fma_f32 v%d, v%d, v%d, -v%d' % (CI, LI, lre, CI))
        a('v_add_f32 v%d, v%d, v%d' % (TT + 6, TT + 6, TT + 6))
        a('v_mul_f32 v%d, v%d, v%d' % (CR, CR, TT + 6))
        a('v_mul_f32 v%d, v%d, v%d' % (CI, CI, TT + 6))
        a('v_mov_b32 v%d, v%d' % (L32R, LR))
        a('v_mov_b32 v%d, v%d' % (L32I, LI))
        for _ in range(5):
            cmul(a, L32R, L32I, L32R, L32I, L32R, L32I, TT + 7)
        a('v_mov_b32 v%d, v%d' % (L256R, L32R))
        a('v_mov_b32 v%d, v%d' % (L256I, L32I))
        for _ in range(3):
            cmul(a, L256R, L256I, L256R, L256I, L256R, L256I, TT + 7)
        a('s_lshl_b32 s5, %s, 2' % S_NT)
        a('s_add_u32 s5, s5, 64')
        a('v_mov_b32 v%d, s5' % V_OFF)
        a('s_lshl_b32 s5, 1, %s' % S_MT)
        a('v_mov_b32 v%d, s5' % V_BIT)
        a('v_and_b32 v%d, 1, v%d' % (T0, V_LANE))
        a('v_mov_b32 v%d, 0x05040100' % V_SEL)
        a('v_mov_b32 v%d, 0x03020706' % T1)
        a('v_cmp_eq_u32 vcc, 1, v%d' % T0)
        a('v_cndmask_b32 v%d, v%d, v%d, vcc' % (V_SEL, V_SEL, T1))
        a('s_lshl_b32 s5, %s, 14' % S_WM)
        a('s_lshl_b32 s6, %s, 6' % S_WN)
        a('s_add_u32 s5, s5, s6')
        a('v_lshl_add_u32 v%d, v%d, 13, s5' % (V_HW, V_HH))
        a('v_lshl_add_u32 v%d, v%d, 7, v%d' % (V_HW, T0, V_HW))
        a('v_and_b32 v%d, 30, v%d' % (T1, V_L31))
        a('v_lshl_add_u32 v%d, v%d, 1, v%d' % (V_HW, T1, V_HW))
        a('s_lshl_b32 s5, %s, 8' % S_MT)
        a('s_lshl_b32 s6, %s, 5' % S_WAVE)
        a('s_add_u32 s5, s5, s6')
        a('v_lshrrev_b32 v%d, 4, v%d' % (T1, V_LANE))
        a('v_add_u32 v%d, s5, v%d' % (T1, T1))
        a('v_lshlrev_b32 v%d, 12, v%d' % (V_H, T1))
        a('v_bfe_u32 v%d, v%d, 3, 1' % (T1, V_LANE))
        a('v_lshl_add_u32 v%d, v%d, 11, v%d' % (V_H, T1, V_H))
        a('v_and_b32 v%d, 7, v%d' % (T1, V_LANE))
        a('v_lshl_add_u32 v%d, v%d, 4, v%d' % (V_H, T1, V_H))
        a('s_lshl_b32 s5, %s, 7' % S_NT)
        a('v_add_u32 v%d, s5, v%d' % (V_H, V_H))
        a('s_lshl_b32 s5, %s, 1' % S_WM)
        a('v_add_u32 v%d, s5, v%d' % (V_Q, V_HH))

    def acc(tm, tn):
        return vr(ACC + 32 * tm + 16 * tn, 16)

    stamp(a, 1)
    wgt(a, 1)
    ringA = Ring(32768, 3, ['s67', 's68', 's79'], S_TMP)
    ringB = Ring(16384, 3, ['s12', 's13', 's14'], S_TMP)
    sbg = [(S_MB, [(VW[j], 's[52:55]', S_O2, j * 1024) for j in range(4)])]
    run_roles(a, 'k1b', ringA, ringB, sbg, TM=2, TN=2, PD=PDB, NS=2 * PDB, FR=FR, vA=VA, offA=[0, 4096],
              bmode='kc', vB=VB, offB=[0, 8192], acc=acc, swap=lambda tm, tn: False,
              s_cnt=S_CNT, mid=mid)
    stamp(a, 2)
    wgt(a, 2)
    if FUSE and not os.environ.get('NO_PF3'):
        prefetch_tail(a, [('Cre', 2 << 20), ('Cim', 2 << 20), ('wo', 2 << 20)], 255, T0)

    def ure(i):
        return ACC + 32 * (i >> 4) + (i & 15)

    def uim(i):
        return ure(i) + 16

    ER, EI = 112, 113
    t = 114
    for i in range(32):
        r, m = ure(i), uim(i)
        a('v_mul_f32 v%d, v%d, v%d' % (t, CI, m))
        a('v_mul_f32 v%d, v%d, v%d' % (t + 1, CI, r))
        a('v_fma_f32 v%d, v%d, v%d, -v%d' % (r, CR, r, t))
        a('v_fma_f32 v%d, v%d, v%d, v%d' % (m, CR, m, t + 1))
        if i == 0:
            a('v_mov_b32 v%d, v%d' % (ER, r))
            a('v_mov_b32 v%d, v%d' % (EI, m))
        else:
            cfma(a, ER, EI, LR, LI, r, m, t + 2)
    a('s_barrier')
    a('s_lshl_b32 s5, %s, 8' % S_WN)
    a('v_lshl_add_u32 v%d, v%d, 3, s5' % (T0, V_L31))
    a('v_lshl_add_u32 v%d, v%d, 9, v%d' % (T1, V_Q, T0))
    a('ds_write_b64 v%d, %s' % (T1, vr(ER, 2)))
    a('s_waitcnt lgkmcnt(0)')
    a('s_barrier')
    E = 120
    for q in range(8):
        a('ds_read_b64 %s, v%d offset:%d' % (vr(E + 2 * q, 2), T0, q * 512))
    PR, PI, WR, WI, SPR, SPI, SWR, SWI = 136, 137, 138, 139, 140, 141, 142, 143
    a('v_mov_b32 v%d, 0' % PR)
    a('v_mov_b32 v%d, 0' % PI)
    a('v_mov_b32 v%d, 1.0' % WR)
    a('v_mov_b32 v%d, 0' % WI)
    a('v_mov_b32 v%d, 0' % SPR)
    a('v_mov_b32 v%d, 0' % SPI)
    a('v_mov_b32 v%d, 1.0' % SWR)
    a('v_mov_b32 v%d, 0' % SWI)
    a('s_waitcnt lgkmcnt(0)')
    for q in range(8):
        cfma(a, PR, PI, L32R, L32I, E + 2 * q, E + 2 * q + 1, t)
        if q < 7:
            cmul(a, WR, WI, WR, WI, L32R, L32I, t + 2)
            a('v_cmp_eq_u32 vcc, %d, v%d' % (q + 1, V_Q))
            a('v_cndmask_b32 v%d, v%d, v%d, vcc' % (SPR, SPR, PR))
            a('v_cndmask_b32 v%d, v%d, v%d, vcc' % (SPI, SPI, PI))
            a('v_cndmask_b32 v%d, v%d, v%d, vcc' % (SWR, SWR, WR))
            a('v_cndmask_b32 v%d, v%d, v%d, vcc' % (SWI, SWI, WI))
    srd(a, 60, 'ws', 65536, WS_AGG)
    a('v_lshlrev_b32 v%d, 3, v%d' % (T2, V_P2))
    a('s_lshl_b32 s5, %s, 13' % S_MT)
    a('s_cmp_lg_u32 %s, 0' % S_WM)
    a('s_cbranch_scc1 k1b_nopub')
    a('buffer_store_dwordx2 %s, v%d, s[60:63], s5 offen sc1' % (vr(PR, 2), T2))
    a('s_waitcnt vmcnt(0)')
    a.label('k1b_nopub')
    a('s_barrier')
    a('s_cmp_lg_u32 %s, 0' % S_WAVE)
    a('s_cbranch_scc1 k1b_nosig')
    a('s_mov_b64 exec, 1')
    a('global_atomic_or v%d, v%d, s[44:45] sc1' % (V_OFF, V_BIT))
    a('s_mov_b64 exec, -1')
    a.label('k1b_nosig')
    stamp(a, 3)
    if (not FUSE) or WGTA:
        wgt(a, 3)
    a('s_lshl_b32 s7, 1, %s' % S_MT)
    a('s_sub_u32 s7, s7, 1')
    stamp(a, 4)
    if (not FUSE) or WGTA:
        wgt(a, 4)
    poll(a, 'k1b_poll', V_OFF, T0, 's7', 'and')
    stamp(a, 5)
    if (not FUSE) or WGTA:
        wgt(a, 5)
    for m in range(7):
        a('buffer_load_dwordx2 %s, v%d, s[60:63], %s offen sc1' % (vr(E + 2 * m, 2), T2, '0' if m == 0 else 's6'))
        a('s_mov_b32 s6, 0x%x' % ((m + 1) * 8192))
    HR, HI = 112, 113
    a('v_mov_b32 v%d, 0' % HR)
    a('v_mov_b32 v%d, 0' % HI)
    a('s_waitcnt vmcnt(0)')
    for m in range(7):
        a('s_cmp_le_u32 %s, %d' % (S_MT, m))
        a('s_cbranch_scc1 k1b_hdone')
        cfma(a, HR, HI, L256R, L256I, E + 2 * m, E + 2 * m + 1, t)
    a.label('k1b_hdone')
    cfma(a, HR, HI, SWR, SWI, SPR, SPI, t)
    srd(a, 60, 'ws', 8 << 20, WS_H)
    for i in range(32):
        r, m = ure(i), uim(i)
        cfma(a, HR, HI, LR, LI, r, m, t)
        w = 120 + (i & 3) * 3
        a('v_cvt_pk_bf16_f32 v%d, v%d, -v%d' % (w, HR, HI))
        a('v_mov_b32_dpp v%d, v%d quad_perm:[1,0,3,2] row_mask:0xf bank_mask:0xf' % (w + 1, w))
        a('v_perm_b32 v%d, v%d, v%d, v%d' % (w + 2, w + 1, w, V_SEL))
        a('ds_write_b32 v%d, v%d offset:%d' % (V_HW, w + 2, i * 256))
    a('s_waitcnt lgkmcnt(0)')
    a('s_barrier')
    a('s_lshl_b32 s5, %s, 13' % S_WAVE)
    a('v_lshl_add_u32 v%d, v%d, 4, s5' % (T0, V_LANE))
    for i in range(8):
        a('ds_read_b128 %s, v%d offset:%d' % (vr(144 + 4 * i, 4), T0, i * 1024))
    for i in range(8):
        a('s_mov_b32 s5, 0x%x' % (i * 4 * 4096))
        a('s_waitcnt lgkmcnt(%d)' % (7 - i))
        a('buffer_store_dwordx4 %s, v%d, s[60:63], s5 offen%s' % (vr(144 + 4 * i, 4), V_H,
                                                                  os.environ.get('STH', ' sc1' if FUSE else '')))
    if FUSE:
        handoff_phase2(a, 'b')
        return
    if not os.environ.get('NO_PF3'):
        prefetch_tail(a, [('Cre', 2 << 20), ('Cim', 2 << 20), ('wo', 2 << 20)], 255, T0)
    stamp(a, 6)
    wgt(a, 6)
    stamp_flush(a, 7, 128, 44)
    wgt_flush(a, 7, 0)
    a('s_endpgm')
```

```python
from asmlib import interleave
import os
NO_DMA = os.environ.get('NO_DMA'); NO_MFMA = os.environ.get('NO_MFMA'); NO_READS = os.environ.get('NO_READS')


class Ring:
    def __init__(self, ST, NB, sregs, s_tmp):
        self.ST, self.NB, self.d, self.s_tmp = ST, NB, sregs, s_tmp
        assert len(sregs) >= NB

    def init(self):
        out = []
        for i in range(self.NB):
            v = self.ST if i < self.NB - 1 else -(self.NB - 1) * self.ST
            out.append('s_mov_b32 %s, 0x%x' % (self.d[i], v & 0xffffffff))
        return out

    def rotate(self):
        if self.NB == 2:
            return ['s_sub_u32 %s, 0, %s' % (self.d[0], self.d[0]), 's_sub_u32 %s, 0, %s' % (self.d[1], self.d[1])]
        out = ['s_mov_b32 %s, %s' % (self.s_tmp, self.d[0])]
        for i in range(self.NB - 1):
            out.append('s_mov_b32 %s, %s' % (self.d[i], self.d[i + 1]))
        out.append('s_mov_b32 %s, %s' % (self.d[self.NB - 1], self.s_tmp))
        return out


class Stream:
    def __init__(self, ring, groups, adv, mod=''):
        self.ring, self.groups, self.adv, self.mod = ring, groups, adv, mod
        self.n = sum(len(g[1]) for g in groups)

    def batch(self, delta):
        out = []
        for (sm0, lst) in self.groups:
            for i, (vo, srd, so, io) in enumerate(lst):
                ins = 'buffer_load_dwordx4 v%d, %s, %s offen offset:%d%s lds' % (vo, srd, so, io, self.mod)
                if NO_DMA:
                    ins = 's_nop 0'
                if i == 0:
                    out.append(['s_mov_b32 m0, %s' % sm0, 's_add_u32 %s, %s, %s' % (sm0, sm0, delta), ins])
                else:
                    out.append([ins])
        for x in self.adv:
            out[-1].extend(x if isinstance(x, (list, tuple)) else [x])
        return out


class Gemm:
    def __init__(self, a, **cfg):
        self.a = a
        self.mid = None
        self.streams = []
        self.pro_first = None
        self.pro_between = None
        self.post_bar = None
        self.n_extra_post = 0
        self.__dict__.update(cfg)
        self.SETSZ = 4 * (self.TM + self.TN)
        self.R = self.TM + (self.TN if self.bmode == 'kc' else 2 * self.TN)
        self.nloop = 0
        self.rings = [self.ringA] + ([self.ringB] if self.ringB is not self.ringA else [])
        self.NP = int(os.environ.get('NP' + self.pfx[:2], cfg.get('NP', 4)))

    def fragA(self, st, tm):
        return self.FR + st * self.SETSZ + 4 * tm

    def fragB(self, st, tn):
        return self.FR + st * self.SETSZ + 4 * self.TM + 4 * tn

    def reads(self, j, st):
        ra = []
        for tm in range(self.TM):
            b = self.fragA(st, tm)
            ra.append('ds_read_b128 v[%d:%d], v%d offset:%d' % (b, b + 3, self.vA[j], self.offA[tm]))
        rb = []
        for tn in range(self.TN):
            b = self.fragB(st, tn)
            if self.bmode == 'kc':
                rb.append('ds_read_b128 v[%d:%d], v%d offset:%d' % (b, b + 3, self.vB[j], self.offB[tn]))
            else:
                ri, off = self.offB[tn]
                for u in range(2):
                    rb.append('ds_read_b64_tr_b16 v[%d:%d], v%d offset:%d' %
                              (b + 2 * u, b + 2 * u + 1, self.vB[ri], off + j * 2048 + u * 512))
        out = [ra[0]] + rb + ra[1:]
        if NO_READS:
            return ['s_nop 0'] * len(out)
        return out

    def mfmas(self, st, zero=False):
        out = []
        for tm in range(self.TM):
            for tn in range(self.TN):
                fa = self.fragA(st, tm); fb = self.fragB(st, tn)
                A = 'v[%d:%d]' % (fa, fa + 3); B = 'v[%d:%d]' % (fb, fb + 3)
                if self.swap(tm, tn):
                    A, B = B, A
                acc = self.acc(tm, tn)
                if NO_MFMA and not zero:
                    out.append('s_nop 0')
                else:
                    out.append('v_mfma_f32_32x32x16_bf16 %s, %s, %s, %s' % (acc, A, B, '0' if zero else acc))
        return out

    def emit(self, lst):
        for f in lst:
            if isinstance(f, (list, tuple)):
                for x in f:
                    self.a(x)
            else:
                self.a(f)

    def active(self, sig):
        return [i for i, s in enumerate(self.streams) if sig + s.ring.NB < self.KS]

    def parts(self, act):
        if not act:
            return []
        items = []
        for i in act:
            n = self.streams[i].n
            items += [(i, k) for k in range(n)]
        NP = self.NP
        n = len(items)
        cuts = [(p * n) // NP for p in range(NP + 1)]
        out = []
        for p in range(NP):
            late = p >= self.PD
            lst = []
            for (i, k) in items[cuts[p]:cuts[p + 1]]:
                st = self.streams[i]
                d = st.ring.d[st.ring.NB - 1] if late else st.ring.d[0]
                lst.append(st.batch(d)[k])
            out.append(lst)
        return out

    def simulate(self):
        order = []
        maxnb = max([s.ring.NB for s in self.streams] + [0])
        self.pro = []
        if self.pro_first is not None:
            for st in range(self.streams[self.pro_first].ring.NB):
                self.pro.append((self.pro_first, st))
            self.pro.append(None)
        for st in range(maxnb):
            for i, s in enumerate(self.streams):
                if st < s.ring.NB and i != self.pro_first:
                    self.pro.append((i, st))
        for p in self.pro:
            if p is not None:
                order += [p] * self.streams[p[0]].n
        self.npro = len(order)
        order += [(-1, 1 << 30)] * getattr(self, 'n_extra_vm', 0)

        def allowed(stage, upto):
            last = -1
            for idx in range(upto):
                if order[idx][1] <= stage:
                    last = idx
            return upto - 1 - last
        self.vm_first = allowed(0, len(order))
        vm = []
        for sig in range(self.KS - 1):
            vm.append(allowed(sig + 1, len(order)))
            for i in self.active(sig):
                order += [(i, sig + self.streams[i].ring.NB)] * self.streams[i].n
        return vm

    def prologue(self):
        a = self.a
        for p in self.pro:
            if p is None:
                self.pro_between()
                continue
            s, st = self.streams[p[0]], p[1]
            d = s.ring.ST if st < s.ring.NB - 1 else -(s.ring.NB - 1) * s.ring.ST
            self.emit(s.batch('0x%x' % (d & 0xffffffff)))
        for r in self.rings:
            self.emit(r.init())
        if self.mid:
            self.mid(self.npro)
        if self.streams:
            a('s_waitcnt vmcnt(%d)' % self.vm_first)
        a('s_barrier')
        if self.post_bar:
            self.post_bar()
        for j in range(self.PD):
            self.emit(self.reads(j, j % self.NS))
            a('v_add_u32 v%d, %s, v%d' % (self.vA[j], self.ringA.d[0], self.vA[j]))
            if self.bmode == 'kc':
                a('v_add_u32 v%d, %s, v%d' % (self.vB[j], self.ringB.d[0], self.vB[j]))

    def stage(self, act, pend, last, vm, first=False, extra=None, pre_dma=None):
        a = self.a
        PD, NS = self.PD, self.NS
        pnew = self.parts(act)
        pold = self.parts(pend)
        for s in range(4):
            if s == 4 - PD and not last:
                if self.streams:
                    a('s_waitcnt vmcnt(%d) lgkmcnt(0)' % vm)
                else:
                    a('s_waitcnt lgkmcnt(0)')
                a('s_barrier')
            else:
                ahead = PD - 1
                if last:
                    ahead = min(ahead, 3 - s)
                a('s_waitcnt lgkmcnt(%d)' % (ahead * self.R))
            fill = []
            dpart = []
            if s >= 4 - PD:
                k = s - (4 - PD)
                if k < len(pnew):
                    dpart = pnew[k]
            else:
                k = s + PD
                if k < len(pold):
                    dpart = pold[k]
            j = s + PD
            if j < 4 or not last:
                jj = j % 4
                fill += self.reads(jj, j % NS)
                di = 0 if j < 4 else 1
                fill.append('v_add_u32 v%d, %s, v%d' % (self.vA[jj], self.ringA.d[di], self.vA[jj]))
                if self.bmode == 'kc':
                    fill.append('v_add_u32 v%d, %s, v%d' % (self.vB[jj], self.ringB.d[di], self.vB[jj]))
                elif j == 3:
                    for r in self.vB:
                        fill.append('v_add_u32 v%d, %s, v%d' % (r, self.ringB.d[0], r))
            if pre_dma and s == 4 - PD:
                fill.append(list(pre_dma))
            fill += dpart
            if extra and s in extra:
                fill += extra[s]
            if s == 3 and not last:
                for r in self.rings:
                    fill += r.rotate()
            for l in interleave(self.mfmas(s % NS, zero=(first and s == 0)), fill):
                a(l)

    def run(self, KS, switch=None, tail_extra=None):
        a = self.a
        self.KS = KS
        vm = self.simulate()
        self.prologue()
        allst = list(range(len(self.streams)))
        desc = []
        for sig in range(KS):
            act = self.active(sig) if sig < KS - 1 else []
            pend = self.active(sig - 1) if sig > 0 else []
            special = (sig == 0) or (sig == KS - 1) or (switch and switch[0] == sig) or \
                      (tail_extra and sig in tail_extra)
            desc.append((tuple(act), tuple(pend), bool(special), vm[sig] if (sig < KS - 1 and sig >= 3) else -1))
        sig = 0
        while sig < KS:
            act, pend, special = desc[sig][:3]
            n = 1
            if not special:
                while sig + n < KS and desc[sig + n][:3] == desc[sig][:3] and \
                        (desc[sig + n][3] == desc[sig + n - 1][3] or desc[sig + n - 1][3] == -1):
                    n += 1
            if n >= 2:
                lab = '%s_L%d' % (self.pfx, self.nloop); self.nloop += 1
                a('s_mov_b32 %s, %d' % (self.s_cnt, n))
                a.label(lab)
                self.stage(act, pend, False, min(vm[sig:sig + n]))
                a('s_sub_u32 %s, %s, 1' % (self.s_cnt, self.s_cnt))
                a('s_cmp_lg_u32 %s, 0' % self.s_cnt)
                a('s_cbranch_scc1 %s' % lab)
            else:
                last = sig == KS - 1
                self.stage(act, pend, last, None if last else vm[sig], first=(sig == 0),
                           extra=(tail_extra.get(sig) if tail_extra else None),
                           pre_dma=(switch[1] if switch and switch[0] == sig else None))
            sig += n
```

```python
import os
from gemm import Gemm, Ring, Stream
from gen import srd, kernel_head, lane_consts, kc_read_addrs, kn_read_addr, stamp, stamp_flush, wgt, wgt_flush
from gen import WS_O, WS_H, WS_KVP, WS_ZP, WS_AGG

LDS_BYTES = 147456
LOG2E = 0x3fb8aa3b

V_LANE, V_L31, V_HH, T0, T1, T2, T3 = 1, 2, 3, 4, 5, 6, 7
S_WAVE, S_CNT, S_WROFF, S_D0, S_D1, S_TMP, S_ST = 's64', 's65', 's66', 's67', 's68', 's69', 's79'
S_OA, S_MA, S_MT, S_NT, S_WM, S_WN, S_T2 = 's70', 's72', 's74', 's75', 's76', 's77', 's78'
S_L2E, S_HD = 's8', 's10'
SPIN_MAX = 1 << 21
FUSE = not os.environ.get('NO_FUSE')
TWOPASS = bool(os.environ.get('TWOPASS'))
PKB = not os.environ.get('NO_PKB')
XMAP = bool(os.environ.get('XMAP'))
WGTA = bool(os.environ.get('WGTA'))
PDA = int(os.environ.get('PDA', '1')); PDB = int(os.environ.get('PDB', '1'))
ROT = not os.environ.get('NO_ROT')
PFD = int(os.environ.get('PFD', '4'))
EARLYPOLL = bool(os.environ.get('EARLYPOLL'))
S_MA2 = 's73'
S_O2, S_ADV2, S_END2 = 's71', 's11', 's15'
VD = [13, 14, 15, 16, 17, 18, 19, 20]
V_PFD = 47


def vr(b, n):
    return 'v[%d:%d]' % (b, b + n - 1)


def wrap_adv(so, adv, end):
    return ['s_add_u32 %s, %s, %s' % (so, so, adv),
            ['s_cmp_eq_u32 %s, %s' % (so, end), 's_cselect_b32 %s, 0, %s' % (so, so)]]


def set_stream(a, so, adv, end, step, nsteps, lead):
    a('s_add_u32 s5, s7, %d' % lead)
    a('s_and_b32 s5, s5, %d' % (nsteps - 1))
    a('s_mul_i32 %s, s5, 0x%x' % (so, step))
    a('s_mov_b32 %s, 0x%x' % (adv, step))
    a('s_mov_b32 %s, 0x%x' % (end, step * nsteps))


def kc_dma_voffs(a, s_row0, permute):
    if not permute:
        a('v_lshrrev_b32 v%d, 3, v%d' % (T0, V_LANE))
    else:
        a('v_bfe_u32 v%d, v%d, 3, 2' % (T0, V_LANE))
        a('v_lshl_add_u32 v%d, v%d, 5, v%d' % (T0, V_HH, T0))
    a('v_add_u32 v%d, %s, v%d' % (T0, s_row0, T0))
    a('v_lshlrev_b32 v%d, 11, v%d' % (T0, T0))
    a('v_lshrrev_b32 v%d, 4, v%d' % (T1, V_LANE))
    a('v_and_b32 v%d, 7, v%d' % (T2, V_LANE))
    a('v_xor_b32 v%d, v%d, v%d' % (T1, T1, T2))
    for j in range(8):
        a('v_xor_b32 v%d, %d, v%d' % (T2, (j & 1) * 4, T1))
        a('v_lshl_add_u32 v%d, v%d, 4, v%d' % (VD[j], T2, T0))
        rows = (8 * j) if not permute else (16 * (j >> 2) + 4 * (j & 3))
        c = rows * 2048 - (j & 3) * 1024
        if c:
            a('v_add_u32 v%d, 0x%x, v%d' % (VD[j], c, VD[j]))


def poll(a, tag, v_off, v_tmp, s_mask_or_count, mode):
    a('s_cmp_lg_u32 %s, 0' % S_WAVE)
    a('s_cbranch_scc1 %s_done' % tag)
    a('s_mov_b32 s5, 0')
    a.label('%s_loop' % tag)
    a('global_load_dword v%d, v%d, s[44:45] sc1' % (v_tmp, v_off))
    a('s_waitcnt vmcnt(0)')
    a('v_readfirstlane_b32 s6, v%d' % v_tmp)
    a('s_nop 3')
    if mode == 'ge':
        a('s_cmp_ge_u32 s6, %s' % s_mask_or_count)
    else:
        a('s_and_b32 s6, s6, %s' % s_mask_or_count)
        a('s_cmp_eq_u32 s6, %s' % s_mask_or_count)
    a('s_cbranch_scc1 %s_ok' % tag)
    a('s_sleep %s' % os.environ.get('SLEEP', '1'))
    a('s_add_u32 s5, s5, 1')
    a('s_cmp_lt_u32 s5, %d' % SPIN_MAX)
    a('s_cbranch_scc1 %s_loop' % tag)
    a.label('%s_ok' % tag)
    if os.environ.get('INV'):
        a('buffer_inv sc1')
        a('s_waitcnt vmcnt(0)')
    a.label('%s_done' % tag)
    a('s_barrier')


def softmax_pm(a, PP, EP, EN, OUTP, OUTN, t):
    mx, mn, t1, t2 = t, t + 2, t + 4, t + 6
    a('v_max3_f32 v%d, v%d, v%d, v%d' % (mx, PP, PP + 1, PP + 2))
    a('v_min3_f32 v%d, v%d, v%d, v%d' % (mn, PP, PP + 1, PP + 2))
    for i in range(3, 15, 2):
        a('v_max3_f32 v%d, v%d, v%d, v%d' % (mx, mx, PP + i, PP + i + 1))
        a('v_min3_f32 v%d, v%d, v%d, v%d' % (mn, mn, PP + i, PP + i + 1))
    a('v_max_f32 v%d, v%d, v%d' % (mx, mx, PP + 15))
    a('v_min_f32 v%d, v%d, v%d' % (mn, mn, PP + 15))
    a('v_mov_b32 v%d, v%d' % (t1, mx))
    a('v_mov_b32 v%d, v%d' % (t2, mn))
    a('v_permlane32_swap_b32 v%d, v%d' % (mx, t1))
    a('v_permlane32_swap_b32 v%d, v%d' % (mn, t2))
    a('v_max_f32 v%d, v%d, v%d' % (mx, mx, t1))
    a('v_min_f32 v%d, v%d, v%d' % (mn, mn, t2))
    a('v_mul_f32 v%d, %s, v%d' % (mx, S_L2E, mx))
    a('v_mul_f32 v%d, %s, v%d' % (mn, S_L2E, mn))
    for i in range(0, 16, 2):
        a('v_pk_fma_f32 %s, %s, s[8:9], %s op_sel_hi:[1,1,0] neg_lo:[0,0,1] neg_hi:[0,0,1]' %
          (vr(EP + i, 2), vr(PP + i, 2), vr(mx, 2)))
        a('v_pk_fma_f32 %s, %s, s[8:9], %s op_sel_hi:[1,1,0] neg_lo:[1,0,0] neg_hi:[1,0,0]' %
          (vr(EN + i, 2), vr(PP + i, 2), vr(mn, 2)))
    for i in range(16):
        a('v_exp_f32 v%d, v%d' % (EP + i, EP + i))
        a('v_exp_f32 v%d, v%d' % (EN + i, EN + i))
    a('v_pk_add_f32 %s, %s, %s' % (vr(mx, 2), vr(EP, 2), vr(EP + 2, 2)))
    a('v_pk_add_f32 %s, %s, %s' % (vr(mn, 2), vr(EN, 2), vr(EN + 2, 2)))
    a('v_pk_add_f32 %s, %s, %s' % (vr(t1, 2), vr(EP + 4, 2), vr(EP + 6, 2)))
    a('v_pk_add_f32 %s, %s, %s' % (vr(t2, 2), vr(EN + 4, 2), vr(EN + 6, 2)))
    for i in (8, 12):
        a('v_pk_add_f32 %s, %s, %s' % (vr(mx, 2), vr(mx, 2), vr(EP + i, 2)))
        a('v_pk_add_f32 %s, %s, %s' % (vr(mn, 2), vr(mn, 2), vr(EN + i, 2)))
        a('v_pk_add_f32 %s, %s, %s' % (vr(t1, 2), vr(t1, 2), vr(EP + i + 2, 2)))
        a('v_pk_add_f32 %s, %s, %s' % (vr(t2, 2), vr(t2, 2), vr(EN + i + 2, 2)))
    a('v_pk_add_f32 %s, %s, %s' % (vr(mx, 2), vr(mx, 2), vr(t1, 2)))
    a('v_pk_add_f32 %s, %s, %s' % (vr(mn, 2), vr(mn, 2), vr(t2, 2)))
    a('v_add_f32 v%d, v%d, v%d' % (mx, mx, mx + 1))
    a('v_add_f32 v%d, v%d, v%d' % (mn, mn, mn + 1))
    a('v_mov_b32 v%d, v%d' % (t1, mx))
    a('v_mov_b32 v%d, v%d' % (t2, mn))
    a('v_permlane32_swap_b32 v%d, v%d' % (mx, t1))
    a('v_permlane32_swap_b32 v%d, v%d' % (mn, t2))
    a('v_add_f32 v%d, v%d, v%d' % (mx, mx, t1))
    a('v_add_f32 v%d, v%d, v%d' % (mn, mn, t2))
    a('v_rcp_f32 v%d, v%d' % (mx, mx))
    a('v_rcp_f32 v%d, v%d' % (mn, mn))
    for i in range(0, 16, 2):
        a('v_pk_mul_f32 %s, %s, %s op_sel_hi:[1,0]' % (vr(EP + i, 2), vr(EP + i, 2), vr(mx, 2)))
        a('v_pk_mul_f32 %s, %s, %s op_sel_hi:[1,0]' % (vr(EN + i, 2), vr(EN + i, 2), vr(mn, 2)))
    for k in range(8):
        a('v_cvt_pk_bf16_f32 v%d, v%d, v%d' % (OUTP + k, EP + 2 * k, EP + 2 * k + 1))
        a('v_cvt_pk_bf16_f32 v%d, v%d, v%d' % (OUTN + k, EN + 2 * k, EN + 2 * k + 1))


def prefetch_tail(a, items, vdst, vt):
    a('s_cmp_lt_u32 %s, 4' % S_WAVE)
    a('s_cbranch_scc1 pft_skip')
    a('s_lshl_b32 s5, %s, 4' % S_MT)
    a('s_add_u32 s5, s5, %s' % S_NT)
    a('s_lshl_b32 s5, s5, 2')
    a('s_add_u32 s5, s5, %s' % S_WAVE)
    a('s_sub_u32 s5, s5, 4')
    for (ptr, nbytes) in items:
        per = nbytes // 512
        srd(a, 96, ptr, nbytes)
        a('s_mul_i32 s6, s5, %d' % per)
        a('v_min_u32 v%d, %d, v%d' % (vt, per // 128 - 1, V_LANE))
        a('v_lshlrev_b32 v%d, 7, v%d' % (vt, vt))
        a('buffer_load_dword v%d, v%d, s[96:99], s6 offen' % (vdst, vt))
    a.label('pft_skip')


def handoff_phase2(a, which):
    import p2
    tag = 'ho' + which
    base = 32 if which == 'b' else 40
    a('s_lshl_b32 s5, %s, 2' % S_MT)
    a('s_add_u32 s5, s5, %d' % (4 * base))
    a('v_mov_b32 v34, s5')
    a('v_mov_b32 v35, 1')
    a('s_waitcnt vmcnt(0) lgkmcnt(0)')
    a('s_barrier')
    a('s_cmp_lt_u32 %s, 4' % S_WAVE)
    a('s_cbranch_scc1 %s_go' % tag)
    a('s_endpgm')
    a.label('%s_go' % tag)
    a('s_cmp_lg_u32 %s, 0' % S_WAVE)
    a('s_cbranch_scc1 %s_nosig' % tag)
    a('s_mov_b64 exec, 1')
    a('global_atomic_add v34, v35, s[44:45] sc1')
    a('s_mov_b64 exec, -1')
    a.label('%s_nosig' % tag)
    wgt(a, 6 if WGTA else 3)
    a('s_lshl_b32 %s, %s, 1' % (S_MT, S_MT))
    a('s_and_b32 s5, %s, 1' % S_NT)
    a('s_add_u32 %s, %s, s5' % (S_MT, S_MT))
    a('s_lshr_b32 %s, %s, 1' % (S_NT, S_NT))
    if XMAP:
        a('s_and_b32 s5, s2, 3')
        a('s_lshl_b32 s11, s5, 2')
    else:
        a('s_and_b32 s5, s2, 7')
        a('s_lshl_b32 s11, s5, 1')
    if which == 'b':
        a('s_add_u32 s11, s11, 1')

    def wait_fn():
        poll(a, tag + '_poll', 34, T0, '16', 'ge')
        if not WGTA:
            wgt(a, 4)
    p2.phase2(a, which, wait_fn)


def gen_k1(a):
    name = 'k1_kernel'
    kernel_head(a, name, 256)
    lane_consts(a, V_LANE, V_L31, V_HH, S_WAVE, T0)
    a('s_and_b32 s3, s2, 7')
    a('s_lshr_b32 s4, s2, 3')
    a('s_and_b32 s5, s4, 3')
    a('s_and_b32 s6, s3, 1')
    a('s_lshl_b32 s6, s6, 2')
    a('s_add_u32 %s, s6, s5' % S_MT)
    if XMAP:
        a('s_lshr_b32 s5, s4, 2')
        a('s_bfe_u32 s6, s3, 0x10001')
        a('s_lshl_b32 s6, s6, 3')
        a('s_add_u32 %s, s6, s5' % S_NT)
        a('s_lshr_b32 s4, s3, 2')
        a('s_lshl_b32 s4, s4, 4')
    else:
        a('s_bfe_u32 s5, s4, 0x20002')
        a('s_lshr_b32 s6, s3, 1')
        a('s_lshl_b32 s6, s6, 2')
        a('s_add_u32 %s, s6, s5' % S_NT)
    a('s_lshr_b32 %s, %s, 1' % (S_WM, S_WAVE))
    a('s_and_b32 %s, %s, 1' % (S_WN, S_WAVE))
    a('s_lshl_b32 %s, %s, 13' % (S_MA, S_WAVE))
    a('s_add_u32 %s, %s, 4096' % (S_MA2, S_MA))
    if ROT and XMAP:
        a('s_and_b32 s5, s3, 3')
        a('s_lshl_b32 s5, s5, 2')
        a('s_bfe_u32 s6, s4, 0x10004')
        a('s_lshl_b32 s6, s6, 1')
        a('s_add_u32 s7, s5, s6')
    elif ROT:
        a('s_lshl_b32 s5, s3, 1')
        a('s_bfe_u32 s6, s4, 0x10004')
        a('s_add_u32 s7, s5, s6')
    else:
        a('s_mov_b32 s7, 0')
    a('s_mov_b32 s3, s7')
    a('s_mov_b32 s8, 0x%x' % LOG2E)
    a('s_mov_b32 s9, 0x%x' % LOG2E)
    VA = [8, 9, 10, 11]
    a('s_lshl_b32 %s, %s, 13' % (S_TMP, S_WM))
    kc_read_addrs(a, VA, V_L31, V_HH, S_TMP, 0, T0, T1)
    a('s_waitcnt lgkmcnt(0)')
    a('s_bitcmp1_b32 s4, 4')
    a('s_cbranch_scc1 k1_B')
    gen_A(a, VA)
    a.label('k1_B')
    gen_B(a, VA)
    a.label(name + '_exit')
    a('s_endpgm')


S_MB, S_MB2 = 's66', 's78'


def run_roles(a, tag, ringA, ringB, streamB_groups, **cfg):
    a('s_cmp_ge_u32 %s, 4' % S_WAVE)
    a('s_cbranch_scc1 %s_r1' % tag)
    sa = Stream(ringA, [(S_MA, [(VD[j], 's[48:51]', S_OA, j * 1024) for j in range(4)]),
                        (S_MA2, [(VD[4 + j], 's[48:51]', S_OA, j * 1024) for j in range(4)])],
                ['s_add_u32 %s, %s, 128' % (S_OA, S_OA), 's_and_b32 %s, %s, 0x7ff' % (S_OA, S_OA)])
    sb = Stream(ringB, streamB_groups, wrap_adv(S_O2, S_ADV2, S_END2))
    g = Gemm(a, pfx=tag + 'd', streams=[sa, sb], ringA=ringA, ringB=ringB, **cfg)
    g.run(16)
    a('s_branch %s_join' % tag)
    a.label('%s_r1' % tag)
    g = Gemm(a, pfx=tag + 'n', streams=[], ringA=ringA, ringB=ringB, **cfg)
    g.run(16)
    a.label('%s_join' % tag)


BBASE = 98304
BBASE_A = 65536 if not os.environ.get('NO_SWAPRING') else 98304


def gen_A(a, VA):
    a.comment('==== A: qkv gemm')
    VB0 = 12
    WPH = 24
    VWR = 32
    VTR = 40
    V_OFF, V_ONE, V_O = 44, 45, 46
    V_OW, V_OR = 13, 47
    OBASE = 16384
    ACC = 48
    FR = 144
    AQ, AK, AV = ACC, ACC + 32, ACC + 64
    NB, ST = 2, 57344
    srd(a, 56, 'wphi', 65536)
    a('s_lshl_b32 %s, %s, 1' % (S_HD, S_NT))
    a('s_add_u32 %s, %s, %s' % (S_HD, S_HD, S_WN))
    a('v_lshlrev_b32 v%d, 8, v%d' % (T0, V_HH))
    a('v_lshl_add_u32 v%d, v%d, 1, v%d' % (T0, V_L31, T0))
    a('s_lshl_b32 s5, %s, 11' % S_HD)
    for s in range(2):
        for i in range(8):
            d = 16 * s + 8 * (i >> 2) + (i & 3)
            a('buffer_load_ushort v%d, v%d, s[56:59], s5 offen offset:%d' % (ACC + 8 * s + i, T0, d * 64))
    VW = [184, 185, 186, 187, 188, 189]
    srd(a, 48, 'Ax', 4 << 20)
    srd(a, 52, 'wqkv', 6 << 20)
    a('s_and_b32 s4, %s, 3' % S_WAVE)
    a('s_lshl_b32 s5, %s, 8' % S_MT)
    a('s_lshl_b32 s6, s4, 6')
    a('s_add_u32 s6, s5, s6')
    kc_dma_voffs(a, 's6', False)
    a('s_lshl_b32 %s, s7, 7' % S_OA)
    def w_setup(nper, seg0, base):
        a('s_and_b32 s4, %s, 3' % S_WAVE)
        a('v_lshrrev_b32 v%d, 3, v%d' % (T0, V_LANE))
        a('v_mul_u32_u24 v%d, 6144, v%d' % (T0, T0))
        a('v_bfe_u32 v%d, v%d, 4, 1' % (T1, V_LANE))
        a('v_lshlrev_b32 v%d, 2, v%d' % (T1, T1))
        a('v_and_b32 v%d, 7, v%d' % (T2, V_LANE))
        a('v_xor_b32 v%d, v%d, v%d' % (T1, T1, T2))
        a('v_lshl_add_u32 v%d, v%d, 4, v%d' % (T0, T1, T0))
        a('s_mul_i32 s4, s4, %d' % nper)
        a('s_lshl_b32 %s, s4, 10' % S_MB)
        a('s_add_u32 %s, %s, %d' % (S_MB, S_MB, base))
        a('s_add_u32 %s, %s, 4096' % (S_MB2, S_MB))
        for j in range(nper):
            a('s_add_u32 s5, s4, %d' % j)
            a('s_lshr_b32 s6, s5, 3')
            a('s_and_b32 s5, s5, 7')
            a('s_mul_i32 s5, s5, 49152')
            a('s_lshl_b32 s6, s6, 11')
            a('s_add_u32 s5, s5, s6')
            a('s_lshl_b32 s6, %s, 7' % S_NT)
            a('s_add_u32 s5, s5, s6')
            c = seg0 * 2048 - (j & 3) * 1024
            if c > 0:
                a('s_add_u32 s5, s5, %d' % c)
            elif c < 0:
                a('s_sub_u32 s5, s5, %d' % (-c))
            a('v_add_u32 v%d, s5, v%d' % (VW[j], T0))
        a('s_mov_b32 s7, s3')
        set_stream(a, S_O2, S_ADV2, S_END2, 0x60000, 16, 0)
        a('s_mov_b32 %s, 0' % S_TMP)
        kn_read_addr(a, VB0, None, V_LANE, S_TMP, base, T0, T1)
        a('s_lshl_b32 s5, %s, 6' % S_WN)
        a('v_xor_b32 v%d, s5, v%d' % (VB0, VB0))

    if TWOPASS:
        w_setup(4, 1, BBASE)
    else:
        w_setup(6, 0, BBASE_A)

    def mid(nvm):
        a('s_lshl_b32 s5, %s, 13' % S_WAVE)
        a('v_and_b32 v%d, 5, v%d' % (T0, V_L31))
        a('v_bfe_u32 v%d, v%d, 1, 1' % (T1, V_L31))
        a('v_lshl_or_b32 v%d, v%d, 3, v%d' % (T0, T1, T0))
        a('v_bfe_u32 v%d, v%d, 3, 1' % (T1, V_L31))
        a('v_lshl_or_b32 v%d, v%d, 1, v%d' % (T0, T1, T0))
        a('v_xor_b32 v%d, v%d, v%d' % (T0, T0, V_HH))
        a('v_lshlrev_b32 v%d, 3, v%d' % (T0, T0))
        a('v_lshl_add_u32 v%d, v%d, 7, v%d' % (T0, V_L31, T0))
        a('v_add_u32 v%d, s5, v%d' % (T0, T0))
        for k in range(8):
            a('v_xor_b32 v%d, %d, v%d' % (VWR + k, ((k & 3) * 2 + (k >> 2) * 8) * 8, T0))
        a('v_bfe_u32 v%d, v%d, 2, 2' % (T0, V_LANE))
        a('v_lshl_add_u32 v%d, v%d, 2, v%d' % (T0, V_HH, T0))
        a('v_and_b32 v%d, 5, v%d' % (T1, T0))
        a('v_bfe_u32 v%d, v%d, 1, 1' % (T2, T0))
        a('v_lshl_or_b32 v%d, v%d, 3, v%d' % (T1, T2, T1))
        a('v_and_b32 v%d, 3, v%d' % (T2, V_LANE))
        a('v_bfe_u32 v%d, v%d, 4, 1' % (T3, V_LANE))
        a('v_lshl_or_b32 v%d, v%d, 2, v%d' % (T2, T3, T2))
        a('v_xor_b32 v%d, v%d, v%d' % (T1, T1, T2))
        a('v_lshlrev_b32 v%d, 3, v%d' % (T1, T1))
        a('v_lshl_add_u32 v%d, v%d, 7, v%d' % (T1, T0, T1))
        a('v_add_u32 v%d, s5, v%d' % (T1, T1))
        for ft in range(2):
            for u in range(2):
                a('v_xor_b32 v%d, %d, v%d' % (VTR + 2 * ft + u, ft * 64 + u * 16, T1))
        a('s_lshl_b32 s5, %s, 2' % S_NT)
        if os.environ.get('DBGT'):
            a('s_add_u32 s5, s5, 192')
        a('v_mov_b32 v%d, s5' % V_OFF)
        a('v_mov_b32 v%d, 1' % V_ONE)
        a('s_lshl_b32 s5, %s, 12' % S_WAVE)
        a('v_lshrrev_b32 v%d, 3, v%d' % (T0, V_LANE))
        a('v_and_b32 v%d, 7, v%d' % (T1, V_LANE))
        a('v_xor_b32 v%d, v%d, v%d' % (T2, T0, T1))
        a('v_lshlrev_b32 v%d, 4, v%d' % (T2, T2))
        a('v_lshl_add_u32 v%d, v%d, 7, v%d' % (T2, T0, T2))
        a('v_add_u32 v%d, s5, v%d' % (V_OR, T2))
        a('s_lshl_b32 s5, %s, 8' % S_MT)
        a('s_lshl_b32 s6, %s, 5' % S_WAVE)
        a('s_add_u32 s5, s5, s6')
        a('v_add_u32 v%d, s5, v%d' % (T0, T0))
        a('v_lshlrev_b32 v%d, 11, v%d' % (T0, T0))
        a('v_lshl_add_u32 v%d, v%d, 4, v%d' % (T0, T1, T0))
        a('s_lshl_b32 s5, %s, 7' % S_NT)
        a('v_add_u32 v%d, s5, v%d' % (V_O, T0))
        a('s_waitcnt vmcnt(%d)' % nvm)
        for r in range(8):
            a('v_lshl_or_b32 v%d, v%d, 16, v%d' % (WPH + r, ACC + 2 * r + 1, ACC + 2 * r))

    def acc(tm, tn):
        return vr(ACC + 32 * tn + 16 * tm, 16)

    stamp(a, 1)
    wgt(a, 1)
    if TWOPASS:
        ringA = Ring(32768, 3, ['s67', 's68', 's79'], S_TMP)
        ringB = Ring(16384, 3, ['s12', 's13', 's14'], S_TMP)
        sbg = [(S_MB, [(VW[j], 's[52:55]', S_O2, j * 1024) for j in range(4)])]
        run_roles(a, 'k1a', ringA, ringB, sbg, TM=2, TN=2, PD=PDA, NS=2 * PDA, FR=FR, vA=VA, offA=[0, 4096],
                  bmode='kn', vB=[VB0], offB=[(0, 0), (0, 8192)], acc=lambda tm, tn: acc(tm, tn + 1),
                  swap=lambda tm, tn: tn < 1, s_cnt=S_CNT, mid=mid)
    else:
        if not os.environ.get('NO_SWAPRING'):
            ringA = Ring(32768, 2, ['s67', 's68', 's79'], S_TMP)
            ringB = Ring(24576, 3, ['s12', 's13', 's14'], S_TMP)
        else:
            ringA = Ring(32768, 3, ['s67', 's68', 's79'], S_TMP)
            ringB = Ring(24576, 2, ['s12', 's13'], S_TMP)
        sbg = [(S_MB, [(VW[j], 's[52:55]', S_O2, j * 1024) for j in range(4)]),
               (S_MB2, [(VW[4 + j], 's[52:55]', S_O2, j * 1024) for j in range(2)])]
        run_roles(a, 'k1a', ringA, ringB, sbg, TM=2, TN=3, PD=PDA, NS=2 * PDA, FR=FR, vA=VA, offA=[0, 4096],
                  bmode='kn', vB=[VB0], offB=[(0, 0), (0, 8192), (0, 16384)], acc=acc,
                  swap=lambda tm, tn: tn < 2,
                  s_cnt=S_CNT, mid=mid)
    stamp(a, 2)
    wgt(a, 2)
    PK = 144
    PP = 152
    EP = 168
    EN = 184
    OP = 200
    ON = 208
    KV = 216
    TS = 248
    ZA = 22
    V_ONES = 21
    AF = 168
    a('v_mov_b32 v%d, 0x3f803f80' % V_ONES)
    a('v_mov_b32 v%d, 0' % ZA)
    a('v_mov_b32 v%d, 0' % (ZA + 1))
    srd(a, 56, 'ws', 4 << 20, WS_KVP)
    srd(a, 60, 'ws', 4 << 20, WS_O)

    def featmap(src, outp, outn):
        for k in range(8):
            a('v_cvt_pk_bf16_f32 v%d, v%d, v%d' % (PK + k, src + 2 * k, src + 2 * k + 1))
        a('v_mfma_f32_32x32x16_bf16 %s, %s, %s, 0' % (vr(PP, 16), vr(WPH, 4), vr(PK, 4)))
        a('v_mfma_f32_32x32x16_bf16 %s, %s, %s, %s' % (vr(PP, 16), vr(WPH + 4, 4), vr(PK + 4, 4), vr(PP, 16)))
        softmax_pm(a, PP, EP, EN, outp, outn, TS)

    for tm in range(2):
        featmap(AK + 16 * tm, OP, ON)
        if tm == 0:
            a('s_barrier')
        for g4 in range(4):
            a('ds_write_b64 v%d, %s offset:%d' % (VWR + g4, vr(OP + 2 * g4, 2), tm * 4096))
            a('ds_write_b64 v%d, %s offset:%d' % (VWR + 4 + g4, vr(ON + 2 * g4, 2), tm * 4096))
        for k in range(8):
            a('v_cvt_pk_bf16_f32 v%d, v%d, v%d' % (PK + k, AV + 16 * tm + 2 * k, AV + 16 * tm + 2 * k + 1))
        a('s_waitcnt lgkmcnt(0)')
        for ft in range(2):
            for s in range(2):
                f = AF + 4 * (2 * ft + s)
                for u in range(2):
                    a('ds_read_b64_tr_b16 %s, v%d offset:%d' % (vr(f + 2 * u, 2), VTR + 2 * ft + u,
                                                                 tm * 4096 + s * 2048 + u * 1024))
        for ft in range(2):
            for s in range(2):
                f = AF + 4 * (2 * ft + s)
                a('s_waitcnt lgkmcnt(%d)' % (6 - 2 * (2 * ft + s)))
                c = '0' if (tm == 0 and s == 0) else vr(KV + 16 * ft, 16)
                a('v_mfma_f32_32x32x16_bf16 %s, %s, %s, %s' % (vr(KV + 16 * ft, 16), vr(f, 4), vr(PK + 4 * s, 4), c))
                for k in range(4):
                    a('v_dot2c_f32_bf16 v%d, v%d, v%d' % (ZA + ft, f + k, V_ONES))
    a('v_mov_b32 v%d, v%d' % (TS, ZA))
    a('v_mov_b32 v%d, v%d' % (TS + 1, ZA + 1))
    a('v_permlane32_swap_b32 v%d, v%d' % (ZA, TS))
    a('v_permlane32_swap_b32 v%d, v%d' % (ZA + 1, TS + 1))
    a('v_add_f32 v%d, v%d, v%d' % (ZA, ZA, TS))
    a('v_add_f32 v%d, v%d, v%d' % (ZA + 1, ZA + 1, TS + 1))
    a('v_cmp_eq_u32 vcc, 1, v%d' % V_HH)
    a('v_cndmask_b32 v%d, v%d, v%d, vcc' % (ZA, ZA, ZA + 1))
    a('s_lshl_b32 s5, %s, 13' % S_WAVE)
    a('v_lshl_add_u32 v%d, v%d, 4, s5' % (T0, V_LANE))
    a('s_lshl_b32 s5, %s, 8' % S_WAVE)
    a('s_add_u32 s5, s5, 65536')
    a('v_lshl_add_u32 v%d, v%d, 2, s5' % (T1, V_LANE))
    a('ds_write_b32 v%d, v%d' % (T1, ZA))
    for q in range(8):
        a('ds_write_b128 v%d, %s offset:%d' % (T0, vr(KV + 4 * q, 4), q * 1024))
    a('s_lshl_b32 s5, %s, 13' % S_WN)
    a('s_lshl_b32 s6, %s, 11' % S_WM)
    a('s_add_u32 s5, s5, s6')
    a('v_lshl_add_u32 v%d, v%d, 4, s5' % (T0, V_LANE))
    a('s_lshl_b32 s5, %s, 8' % S_WN)
    a('s_add_u32 s5, s5, 65536')
    a('v_lshl_add_u32 v%d, v%d, 2, s5' % (T1, V_LANE))
    a('s_lshl_b32 s5, %s, 5' % S_MT)
    a('s_add_u32 s5, s5, %s' % S_HD)
    a('s_lshl_b32 s6, s5, 13')
    a('s_lshl_b32 s7, %s, 11' % S_WM)
    a('s_add_u32 s6, s6, s7')
    a('v_lshlrev_b32 v%d, 4, v%d' % (T2, V_LANE))
    a('s_lshl_b32 s7, s5, 8')
    a('s_add_u32 s7, s7, 0x%x' % (WS_ZP - WS_KVP))
    a('v_lshlrev_b32 v%d, 2, v%d' % (T3, V_LANE))
    a('s_waitcnt lgkmcnt(0)')
    a('s_barrier')
    R = 216
    for w in range(4):
        for q in range(2):
            a('ds_read_b128 %s, v%d offset:%d' % (vr(R + 8 * w + 4 * q, 4), T0, w * 16384 + q * 1024))
    for w in range(4):
        a('ds_read_b32 v%d, v%d offset:%d' % (OP + w, T1, w * 512))
    a('s_waitcnt lgkmcnt(4)')
    for k in range(0, 8, 2):
        a('v_pk_add_f32 %s, %s, %s' % (vr(R + k, 2), vr(R + k, 2), vr(R + 8 + k, 2)))
        a('v_pk_add_f32 %s, %s, %s' % (vr(R + 16 + k, 2), vr(R + 16 + k, 2), vr(R + 24 + k, 2)))
    for k in range(0, 8, 2):
        a('v_pk_add_f32 %s, %s, %s' % (vr(R + k, 2), vr(R + k, 2), vr(R + 16 + k, 2)))
    a('buffer_store_dwordx4 %s, v%d, s[56:59], s6 offen sc1' % (vr(R, 4), T2))
    a('buffer_store_dwordx4 %s, v%d, s[56:59], s6 offen offset:1024 sc1' % (vr(R + 4, 4), T2))
    a('s_waitcnt lgkmcnt(0)')
    a('v_add_f32 v%d, v%d, v%d' % (OP, OP, OP + 1))
    a('v_add_f32 v%d, v%d, v%d' % (OP + 2, OP + 2, OP + 3))
    a('v_add_f32 v%d, v%d, v%d' % (ZA, OP, OP + 2))
    a('s_cmp_lg_u32 %s, 0' % S_WM)
    a('s_cbranch_scc1 k1a_noz')
    a('buffer_store_dword v%d, v%d, s[56:59], s7 offen sc1' % (ZA, T3))
    a.label('k1a_noz')
    stamp(a, 3)
    if (not FUSE) or WGTA:
        wgt(a, 3)
    nsig = [0]

    def signal():
        nsig[0] += 1
        lab = 'k1a_nosig%d' % nsig[0]
        a('s_cmp_lg_u32 %s, 0' % S_WAVE)
        a('s_cbranch_scc1 %s' % lab)
        a('s_mov_b64 exec, 1')
        a('global_atomic_add v%d, v%d, s[44:45] sc1' % (V_OFF, V_ONE))
        a('s_mov_b64 exec, -1')
        a.label(lab)

    if TWOPASS:
        PQ = 216
        a('s_lshl_b32 %s, %s, 13' % (S_MA, S_WAVE))
        a('s_add_u32 %s, %s, 4096' % (S_MA2, S_MA))
        a('s_lshl_b32 %s, s3, 7' % S_OA)
        a('s_lshl_b32 %s, %s, 13' % (S_TMP, S_WM))
        kc_read_addrs(a, VA, V_L31, V_HH, S_TMP, 0, T0, T1)
        w_setup(2, 0, BBASE)
        a('s_barrier')
        ringB = Ring(8192, 3, ['s12', 's13', 's14'], S_TMP)
        sbg = [(S_MB, [(VW[j], 's[52:55]', S_O2, j * 1024) for j in range(2)])]

        def mid2(nvm):
            a('s_waitcnt vmcnt(%d)' % nvm)
        run_roles(a, 'k1q', ringA, ringB, sbg, TM=2, TN=1, PD=PDA, NS=2 * PDA, FR=FR, vA=VA, offA=[0, 4096],
                  bmode='kn', vB=[VB0], offB=[(0, 0)], acc=lambda tm, tn: acc(tm, 0),
                  swap=lambda tm, tn: True, s_cnt=S_CNT, mid=mid2, post_bar=signal, n_extra_post=1)
        a('v_lshlrev_b32 v%d, 4, v%d' % (T2, V_LANE))
        a('v_lshlrev_b32 v%d, 2, v%d' % (T3, V_LANE))
    else:
        PQ = AK
        featmap(AQ, PQ, PQ + 8)
        a('s_waitcnt vmcnt(0)')
        a('s_barrier')
        signal()
        if not EARLYPOLL:
            featmap(AQ + 16, PQ + 16, PQ + 24)
    stamp(a, 4)
    if (not FUSE) or WGTA:
        wgt(a, 4)
    poll(a, 'k1a_poll', V_OFF, T0, '8', 'ge')
    stamp(a, 5)
    if (not FUSE) or WGTA:
        wgt(a, 5)
    a('s_lshl_b32 s6, %s, 13' % S_HD)
    a('s_lshl_b32 s7, %s, 11' % S_WM)
    a('s_add_u32 s6, s6, s7')
    if TWOPASS:
        LM = [AK + 8 * m for m in range(8)]
        ZL = 200
    elif EARLYPOLL:
        L = AV
        LM = [AV, AV + 8, AV + 16, AV + 24, 216, 224, 232, 240]
        ZL = AQ
    else:
        LM = [144 + 8 * m for m in range(8)]
        ZL = 208
    for m in range(8):
        a('buffer_load_dwordx4 %s, v%d, s[56:59], s6 offen sc1' % (vr(LM[m], 4), T2))
        a('buffer_load_dwordx4 %s, v%d, s[56:59], s6 offen offset:1024 sc1' % (vr(LM[m] + 4, 4), T2))
        if m < 7:
            a('s_add_u32 s6, s6, 0x40000')
    a('s_lshl_b32 s7, %s, 8' % S_HD)
    a('s_add_u32 s7, s7, 0x%x' % (WS_ZP - WS_KVP))
    for m in range(8):
        a('buffer_load_dword v%d, v%d, s[56:59], s7 offen sc1' % (ZL + m, T3))
        if m < 7:
            a('s_add_u32 s7, s7, 0x2000')
    if TWOPASS:
        featmap(AQ, PQ, PQ + 8)
        featmap(AQ + 16, PQ + 16, PQ + 24)
    elif EARLYPOLL:
        featmap(AQ + 16, PQ + 16, PQ + 24)
    a('s_lshl_b32 s5, %s, 12' % S_WN)
    a('v_lshl_add_u32 v%d, v%d, 4, s5' % (T0, V_LANE))
    a('s_lshl_b32 s6, %s, 10' % S_WM)
    a('v_add_u32 v%d, s6, v%d' % (T1, T0))
    a('s_lshl_b32 s5, %s, 13' % S_WM)
    a('s_lshl_b32 s6, %s, 2' % S_WN)
    a('v_or_b32 v%d, s6, v%d' % (TS, V_HH))
    a('v_and_b32 v%d, 7, v%d' % ((TS + 1), V_L31))
    a('v_xor_b32 v%d, v%d, v%d' % (TS, TS, (TS + 1)))
    a('v_lshlrev_b32 v%d, 4, v%d' % (TS, TS))
    a('v_lshl_add_u32 v%d, v%d, 7, v%d' % (TS, V_L31, TS))
    a('v_add_u32 v%d, s5, v%d' % (V_OW, TS))
    a('v_xor_b32 v%d, 32, v%d' % (V_OW + 1, V_OW))
    a('s_waitcnt vmcnt(8)')
    for k in range(0, 8, 2):
        for m in range(0, 8, 2):
            a('v_pk_add_f32 %s, %s, %s' % (vr(LM[m] + k, 2), vr(LM[m] + k, 2), vr(LM[m + 1] + k, 2)))
    for k in range(0, 8, 2):
        a('v_pk_add_f32 %s, %s, %s' % (vr(LM[0] + k, 2), vr(LM[0] + k, 2), vr(LM[2] + k, 2)))
        a('v_pk_add_f32 %s, %s, %s' % (vr(LM[4] + k, 2), vr(LM[4] + k, 2), vr(LM[6] + k, 2)))
    for k in range(0, 8, 2):
        a('v_pk_add_f32 %s, %s, %s' % (vr(LM[0] + k, 2), vr(LM[0] + k, 2), vr(LM[4] + k, 2)))
    for k in range(4):
        a('v_cvt_pk_bf16_f32 v%d, v%d, v%d' % (LM[1] + k, LM[0] + 2 * k, LM[0] + 2 * k + 1))
    a('ds_write_b128 v%d, %s' % (T1, vr(LM[1], 4)))
    a('s_waitcnt vmcnt(0)')
    for m in range(0, 8, 4):
        a('v_pk_add_f32 %s, %s, %s' % (vr(ZL + m, 2), vr(ZL + m, 2), vr(ZL + m + 2, 2)))
    a('v_pk_add_f32 %s, %s, %s' % (vr(ZL, 2), vr(ZL, 2), vr(ZL + 4, 2)))
    a('v_add_f32 v%d, v%d, v%d' % (ZL, ZL, ZL + 1))
    a('v_cvt_pk_bf16_f32 v%d, v%d, v%d' % (ZL, ZL, ZL))
    a('s_lshl_b32 s5, %s, 7' % S_WN)
    a('s_add_u32 s5, s5, 8192')
    a('v_lshl_add_u32 v%d, v%d, 1, s5' % (T1, V_LANE))
    a('ds_write_b16 v%d, v%d' % (T1, ZL))
    a('v_lshl_add_u32 v%d, v%d, 3, s5' % (T1, V_HH))
    a('s_lshl_b32 s5, %s, 6' % S_HD)
    a('s_add_u32 s6, s5, 0x10000')
    a('s_waitcnt lgkmcnt(0)')
    a('s_barrier')
    KF = 144
    ZF = 160
    for f in range(4):
        a('ds_read_b128 %s, v%d offset:%d' % (vr(KF + 4 * f, 4), T0, f * 1024))
        a('ds_read_b64 %s, v%d offset:%d' % (vr(ZF + 4 * f, 2), T1, f * 32))
        a('ds_read_b64 %s, v%d offset:%d' % (vr(ZF + 4 * f + 2, 2), T1, f * 32 + 16))
    NUM = 176
    DEN = 208
    if TWOPASS:
        NUM, DEN = AK, AV
    for f in range(4):
        a('s_waitcnt lgkmcnt(%d)' % (9 - 3 * f))
        for tm in range(2):
            b = PQ + 16 * tm + 4 * f
            a('v_mfma_f32_32x32x16_bf16 %s, %s, %s, %s' % (vr(DEN + 16 * tm, 16), vr(ZF + 4 * f, 4), vr(b, 4),
                                                           '0' if f == 0 else vr(DEN + 16 * tm, 16)))
            a('v_mfma_f32_32x32x16_bf16 %s, %s, %s, %s' % (vr(NUM + 16 * tm, 16), vr(KF + 4 * f, 4), vr(b, 4),
                                                           '0' if f == 0 else vr(NUM + 16 * tm, 16)))
    for tm in range(2):
        d = DEN + 16 * tm
        n = NUM + 16 * tm
        a('v_add_f32 v%d, 0x358637bd, v%d' % (d, d))
        a('v_rcp_f32 v%d, v%d' % (d, d))
        for k in range(0, 16, 2):
            a('v_pk_mul_f32 %s, %s, %s op_sel_hi:[1,0]' % (vr(n + k, 2), vr(n + k, 2), vr(d, 2)))
        o = d + 4
        for k in range(8):
            a('v_cvt_pk_bf16_f32 v%d, v%d, v%d' % (o + k, n + 2 * k, n + 2 * k + 1))
        for p in range(2):
            a('v_permlane32_swap_b32 v%d, v%d' % (o + 4 * p, o + 4 * p + 2))
            a('v_permlane32_swap_b32 v%d, v%d' % (o + 4 * p + 1, o + 4 * p + 3))
            a('ds_write_b128 v%d, %s offset:%d' % (V_OW + p, vr(o + 4 * p, 4), OBASE + tm * 4096))
    a('s_waitcnt lgkmcnt(0)')
    a('s_barrier')
    for i in range(4):
        a('ds_read_b128 %s, v%d offset:%d' % (vr(144 + 4 * i, 4), V_OR, OBASE + i * 1024))
    for i in range(4):
        a('s_mov_b32 s5, 0x%x' % (i * 8 * 2048))
        a('s_waitcnt lgkmcnt(%d)' % (3 - i))
        a('buffer_store_dwordx4 %s, v%d, s[60:63], s5 offen%s' % (vr(144 + 4 * i, 4), V_O,
                                                                  os.environ.get('STO', ' sc1' if FUSE else '')))
    if FUSE:
        handoff_phase2(a, 'a')
        return
    stamp(a, 6)
    wgt(a, 6)
    stamp_flush(a, 7, 0)
    wgt_flush(a, 7, 0)
    a('s_endpgm')


def cmul(a, dr, di, ar, ai, br, bi, t):
    a('v_mul_f32 v%d, v%d, v%d' % (t, ai, bi))
    a('v_mul_f32 v%d, v%d, v%d' % (t + 1, ar, bi))
    a('v_fma_f32 v%d, v%d, v%d, -v%d' % (t, ar, br, t))
    a('v_fma_f32 v%d, v%d, v%d, v%d' % (di, ai, br, t + 1))
    a('v_mov_b32 v%d, v%d' % (dr, t))


def cfma(a, hr, hi, lr, li, ur, ui, t):
    a('v_fma_f32 v%d, -v%d, v%d, v%d' % (t, li, hi, ur))
    a('v_fma_f32 v%d, v%d, v%d, v%d' % (t + 1, li, hr, ui))
    a('v_fma_f32 v%d, v%d, v%d, v%d' % (hr, lr, hr, t))
    a('v_fma_f32 v%d, v%d, v%d, v%d' % (hi, lr, hi, t + 1))


def gen_B(a, VA):
    a.comment('==== B: input projection gemm')
    VB = [12, 21, 22, 23]
    LR, LI, CR, CI, L32R, L32I, L256R, L256I = 24, 25, 26, 27, 28, 29, 30, 31
    V_P2, V_OFF, V_BIT, V_SEL, V_H, V_Q = 32, 33, 34, 35, 36, 37
    TT = 38
    V_HW = 47
    ACC = 48
    FR = 112
    NB, ST = 3, 49152
    a('s_lshl_b32 s5, %s, 6' % S_NT)
    a('s_lshl_b32 s6, %s, 5' % S_WN)
    a('s_add_u32 s5, s5, s6')
    a('v_add_u32 v%d, s5, v%d' % (V_P2, V_L31))
    a('v_lshlrev_b32 v%d, 1, v%d' % (T0, V_P2))
    a('global_load_ushort v%d, v%d, s[26:27]' % (TT, T0))
    a('global_load_ushort v%d, v%d, s[28:29]' % (TT + 1, T0))
    a('global_load_ushort v%d, v%d, s[38:39]' % (TT + 2, T0))
    VW = [176, 177, 178, 179]
    srd(a, 48, 'Bx', 4 << 20)
    srd(a, 52, 'Bre', 2 << 20)
    srd(a, 56, 'Bim', 2 << 20)
    a('s_and_b32 s4, %s, 3' % S_WAVE)
    a('s_cmp_ge_u32 s4, 2')
    a('s_cselect_b32 s52, s56, s52')
    a('s_cselect_b32 s53, s57, s53')
    a('s_lshl_b32 s5, %s, 8' % S_MT)
    a('s_lshl_b32 s6, s4, 6')
    a('s_add_u32 s6, s5, s6')
    kc_dma_voffs(a, 's6', True)
    a('s_lshl_b32 %s, s7, 7' % S_OA)
    a('s_lshl_b32 s5, %s, 6' % S_NT)
    a('s_and_b32 s6, s4, 1')
    a('s_lshl_b32 s6, s6, 5')
    a('s_add_u32 s5, s5, s6')
    a('v_lshrrev_b32 v%d, 3, v%d' % (T0, V_LANE))
    a('v_add_u32 v%d, s5, v%d' % (T0, T0))
    a('v_lshlrev_b32 v%d, 11, v%d' % (T0, T0))
    for j in range(4):
        a('v_xor_b32 v%d, %d, v%d' % (T2, (j & 1) * 4, T1))
        a('v_lshl_add_u32 v%d, v%d, 4, v%d' % (VW[j], T2, T0))
        if j:
            a('v_add_u32 v%d, 0x%x, v%d' % (VW[j], 8 * j * 2048 - j * 1024, VW[j]))
    a('s_lshl_b32 %s, s4, 12' % S_MB)
    a('s_add_u32 %s, %s, %d' % (S_MB, S_MB, BBASE))
    set_stream(a, S_O2, S_ADV2, S_END2, 128, 16, 0)
    a('s_lshl_b32 %s, %s, 12' % (S_TMP, S_WN))
    kc_read_addrs(a, VB, V_L31, V_HH, S_TMP, BBASE, T0, T1)

    def mid(nvm):
        a('s_waitcnt vmcnt(%d)' % nvm)
        lre, lim, dt = TT, TT + 1, TT + 2
        a('v_lshlrev_b32 v%d, 16, v%d' % (lre, lre))
        a('v_lshlrev_b32 v%d, 16, v%d' % (lim, lim))
        a('v_lshlrev_b32 v%d, 16, v%d' % (dt, dt))
        a('v_mul_f32 v%d, %s, v%d' % (dt, S_L2E, dt))
        a('v_exp_f32 v%d, v%d' % (dt, dt))
        a('v_cvt_pk_bf16_f32 v%d, v%d, v%d' % (dt, dt, dt))
        a('v_lshlrev_b32 v%d, 16, v%d' % (dt, dt))
        a('v_mul_f32 v%d, v%d, v%d' % (TT + 3, dt, lre))
        a('v_mul_f32 v%d, v%d, v%d' % (TT + 4, dt, lim))
        a('v_mul_f32 v%d, %s, v%d' % (TT + 3, S_L2E, TT + 3))
        a('v_exp_f32 v%d, v%d' % (TT + 3, TT + 3))
        a('v_mul_f32 v%d, 0.15915494, v%d' % (TT + 4, TT + 4))
        a('v_rndne_f32 v%d, v%d' % (TT + 5, TT + 4))
        a('v_sub_f32 v%d, v%d, v%d' % (TT + 4, TT + 4, TT + 5))
        a('v_cos_f32 v%d, v%d' % (LR, TT + 4))
        a('v_sin_f32 v%d, v%d' % (LI, TT + 4))
        a('v_mul_f32 v%d, v%d, v%d' % (LR, LR, TT + 3))
        a('v_mul_f32 v%d, v%d, v%d' % (LI, LI, TT + 3))
        a('v_add_f32 v%d, -1.0, v%d' % (TT + 5, LR))
        a('v_mul_f32 v%d, v%d, v%d' % (TT + 6, lre, lre))
        a('v_fma_f32 v%d, v%d, v%d, v%d' % (TT + 6, lim, lim, TT + 6))
        a('v_rcp_f32 v%d, v%d' % (TT + 6, TT + 6))
        a('v_mul_f32 v%d, v%d, v%d' % (CR, TT + 5, lre))
        a('v_fma_f32 v%d, v%d, v%d, v%d' % (CR, LI, lim, CR))
        a('v_mul_f32 v%d, v%d, v%d' % (CI, TT + 5, lim))
        a('v_fma_f32 v%d, v%d, v%d, -v%d' % (CI, LI, lre, CI))
        a('v_add_f32 v%d, v%d, v%d' % (TT + 6, TT + 6, TT + 6))
        a('v_mul_f32 v%d, v%d, v%d' % (CR, CR, TT + 6))
        a('v_mul_f32 v%d, v%d, v%d' % (CI, CI, TT + 6))
        a('v_mov_b32 v%d, v%d' % (L32R, LR))
        a('v_mov_b32 v%d, v%d' % (L32I, LI))
        for _ in range(5):
            cmul(a, L32R, L32I, L32R, L32I, L32R, L32I, TT + 7)
        a('v_mov_b32 v%d, v%d' % (L256R, L32R))
        a('v_mov_b32 v%d, v%d' % (L256I, L32I))
        for _ in range(3):
            cmul(a, L256R, L256I, L256R, L256I, L256R, L256I, TT + 7)
        a('s_lshl_b32 s5, %s, 2' % S_NT)
        a('s_add_u32 s5, s5, 64')
        a('v_mov_b32 v%d, s5' % V_OFF)
        a('s_lshl_b32 s5, 1, %s' % S_MT)
        a('v_mov_b32 v%d, s5' % V_BIT)
        a('v_and_b32 v%d, 1, v%d' % (T0, V_LANE))
        a('v_mov_b32 v%d, 0x05040100' % V_SEL)
        a('v_mov_b32 v%d, 0x03020706' % T1)
        a('v_cmp_eq_u32 vcc, 1, v%d' % T0)
        a('v_cndmask_b32 v%d, v%d, v%d, vcc' % (V_SEL, V_SEL, T1))
        a('s_lshl_b32 s5, %s, 14' % S_WM)
        a('s_lshl_b32 s6, %s, 6' % S_WN)
        a('s_add_u32 s5, s5, s6')
        a('v_lshl_add_u32 v%d, v%d, 13, s5' % (V_HW, V_HH))
        a('v_lshl_add_u32 v%d, v%d, 7, v%d' % (V_HW, T0, V_HW))
        a('v_and_b32 v%d, 30, v%d' % (T1, V_L31))
        a('v_lshl_add_u32 v%d, v%d, 1, v%d' % (V_HW, T1, V_HW))
        a('s_lshl_b32 s5, %s, 8' % S_MT)
        a('s_lshl_b32 s6, %s, 5' % S_WAVE)
        a('s_add_u32 s5, s5, s6')
        a('v_lshrrev_b32 v%d, 4, v%d' % (T1, V_LANE))
        a('v_add_u32 v%d, s5, v%d' % (T1, T1))
        a('v_lshlrev_b32 v%d, 12, v%d' % (V_H, T1))
        a('v_bfe_u32 v%d, v%d, 3, 1' % (T1, V_LANE))
        a('v_lshl_add_u32 v%d, v%d, 11, v%d' % (V_H, T1, V_H))
        a('v_and_b32 v%d, 7, v%d' % (T1, V_LANE))
        a('v_lshl_add_u32 v%d, v%d, 4, v%d' % (V_H, T1, V_H))
        a('s_lshl_b32 s5, %s, 7' % S_NT)
        a('v_add_u32 v%d, s5, v%d' % (V_H, V_H))
        a('s_lshl_b32 s5, %s, 1' % S_WM)
        a('v_add_u32 v%d, s5, v%d' % (V_Q, V_HH))

    def acc(tm, tn):
        return vr(ACC + 32 * tm + 16 * tn, 16)

    stamp(a, 1)
    wgt(a, 1)
    ringA = Ring(32768, 3, ['s67', 's68', 's79'], S_TMP)
    ringB = Ring(16384, 3, ['s12', 's13', 's14'], S_TMP)
    sbg = [(S_MB, [(VW[j], 's[52:55]', S_O2, j * 1024) for j in range(4)])]
    run_roles(a, 'k1b', ringA, ringB, sbg, TM=2, TN=2, PD=PDB, NS=2 * PDB, FR=FR, vA=VA, offA=[0, 4096],
              bmode='kc', vB=VB, offB=[0, 8192], acc=acc, swap=lambda tm, tn: False,
              s_cnt=S_CNT, mid=mid)
    stamp(a, 2)
    wgt(a, 2)
    if FUSE and not os.environ.get('NO_PF3'):
        prefetch_tail(a, [('Cre', 2 << 20), ('Cim', 2 << 20), ('wo', 2 << 20)], 255, T0)

    def ure(i):
        return ACC + 32 * (i >> 4) + (i & 15)

    def uim(i):
        return ure(i) + 16

    ER, EI = 112, 113
    t = 114
    BU = 144
    CP1, CP2, LP1, LP2 = 208, 210, 212, 214

    def pk_step(h, i, tt):
        a('v_pk_fma_f32 %s, %s, %s, %s op_sel:[1,0,0] op_sel_hi:[0,1,1]' % (vr(tt, 2), vr(h, 2), vr(LP2, 2), vr(BU + 2 * i, 2)))
        a('v_pk_fma_f32 %s, %s, %s, %s' % (vr(h, 2), vr(h, 2), vr(LP1, 2), vr(tt, 2)))

    if PKB:
        a('v_mov_b32 v%d, v%d' % (CP1, CR))
        a('v_mov_b32 v%d, v%d' % (CP1 + 1, CI))
        a('v_xor_b32 v%d, 0x80000000, v%d' % (CP2, CI))
        a('v_mov_b32 v%d, v%d' % (CP2 + 1, CR))
        a('v_mov_b32 v%d, v%d' % (LP1, LR))
        a('v_mov_b32 v%d, v%d' % (LP1 + 1, LR))
        a('v_xor_b32 v%d, 0x80000000, v%d' % (LP2, LI))
        a('v_mov_b32 v%d, v%d' % (LP2 + 1, LI))
        for i in range(32):
            h = i & 1
            r, m = ure(i & ~1), uim(i & ~1)
            tt = t + 2 * (i & 1)
            a('v_pk_mul_f32 %s, %s, %s op_sel:[%d,0] op_sel_hi:[%d,1]' % (vr(tt, 2), vr(r, 2), vr(CP1, 2), h, h))
            a('v_pk_fma_f32 %s, %s, %s, %s op_sel:[%d,0,0] op_sel_hi:[%d,1,1]' %
              (vr(BU + 2 * i, 2), vr(m, 2), vr(CP2, 2), vr(tt, 2), h, h))
            if i == 1:
                a('v_mov_b32 v%d, v%d' % (ER, BU))
                a('v_mov_b32 v%d, v%d' % (EI, BU + 1))
            if i >= 1:
                pk_step(ER, i, t + 4)
    else:
      for i in range(32):
        r, m = ure(i), uim(i)
        a('v_mul_f32 v%d, v%d, v%d' % (t, CI, m))
        a('v_mul_f32 v%d, v%d, v%d' % (t + 1, CI, r))
        a('v_fma_f32 v%d, v%d, v%d, -v%d' % (r, CR, r, t))
        a('v_fma_f32 v%d, v%d, v%d, v%d' % (m, CR, m, t + 1))
        if i == 0:
            a('v_mov_b32 v%d, v%d' % (ER, r))
            a('v_mov_b32 v%d, v%d' % (EI, m))
        else:
            cfma(a, ER, EI, LR, LI, r, m, t + 2)
    a('s_barrier')
    a('s_lshl_b32 s5, %s, 8' % S_WN)
    a('v_lshl_add_u32 v%d, v%d, 3, s5' % (T0, V_L31))
    a('v_lshl_add_u32 v%d, v%d, 9, v%d' % (T1, V_Q, T0))
    a('ds_write_b64 v%d, %s' % (T1, vr(ER, 2)))
    a('s_waitcnt lgkmcnt(0)')
    a('s_barrier')
    E = 120
    for q in range(8):
        a('ds_read_b64 %s, v%d offset:%d' % (vr(E + 2 * q, 2), T0, q * 512))
    PR, PI, WR, WI, SPR, SPI, SWR, SWI = 136, 137, 138, 139, 140, 141, 142, 143
    a('v_mov_b32 v%d, 0' % PR)
    a('v_mov_b32 v%d, 0' % PI)
    a('v_mov_b32 v%d, 1.0' % WR)
    a('v_mov_b32 v%d, 0' % WI)
    a('v_mov_b32 v%d, 0' % SPR)
    a('v_mov_b32 v%d, 0' % SPI)
    a('v_mov_b32 v%d, 1.0' % SWR)
    a('v_mov_b32 v%d, 0' % SWI)
    a('s_waitcnt lgkmcnt(0)')
    for q in range(8):
        cfma(a, PR, PI, L32R, L32I, E + 2 * q, E + 2 * q + 1, t)
        if q < 7:
            cmul(a, WR, WI, WR, WI, L32R, L32I, t + 2)
            a('v_cmp_eq_u32 vcc, %d, v%d' % (q + 1, V_Q))
            a('v_cndmask_b32 v%d, v%d, v%d, vcc' % (SPR, SPR, PR))
            a('v_cndmask_b32 v%d, v%d, v%d, vcc' % (SPI, SPI, PI))
            a('v_cndmask_b32 v%d, v%d, v%d, vcc' % (SWR, SWR, WR))
            a('v_cndmask_b32 v%d, v%d, v%d, vcc' % (SWI, SWI, WI))
    srd(a, 60, 'ws', 65536, WS_AGG)
    a('v_lshlrev_b32 v%d, 3, v%d' % (T2, V_P2))
    a('s_lshl_b32 s5, %s, 13' % S_MT)
    a('s_cmp_lg_u32 %s, 0' % S_WM)
    a('s_cbranch_scc1 k1b_nopub')
    a('buffer_store_dwordx2 %s, v%d, s[60:63], s5 offen sc1' % (vr(PR, 2), T2))
    a('s_waitcnt vmcnt(0)')
    a.label('k1b_nopub')
    a('s_barrier')
    a('s_cmp_lg_u32 %s, 0' % S_WAVE)
    a('s_cbranch_scc1 k1b_nosig')
    a('s_mov_b64 exec, 1')
    a('global_atomic_or v%d, v%d, s[44:45] sc1' % (V_OFF, V_BIT))
    a('s_mov_b64 exec, -1')
    a.label('k1b_nosig')
    stamp(a, 3)
    if (not FUSE) or WGTA:
        wgt(a, 3)
    a('s_lshl_b32 s7, 1, %s' % S_MT)
    a('s_sub_u32 s7, s7, 1')
    stamp(a, 4)
    if (not FUSE) or WGTA:
        wgt(a, 4)
    poll(a, 'k1b_poll', V_OFF, T0, 's7', 'and')
    stamp(a, 5)
    if (not FUSE) or WGTA:
        wgt(a, 5)
    for m in range(7):
        a('buffer_load_dwordx2 %s, v%d, s[60:63], %s offen sc1' % (vr(E + 2 * m, 2), T2, '0' if m == 0 else 's6'))
        a('s_mov_b32 s6, 0x%x' % ((m + 1) * 8192))
    HR, HI = 112, 113
    a('v_mov_b32 v%d, 0' % HR)
    a('v_mov_b32 v%d, 0' % HI)
    a('s_waitcnt vmcnt(0)')
    for m in range(7):
        a('s_cmp_le_u32 %s, %d' % (S_MT, m))
        a('s_cbranch_scc1 k1b_hdone')
        cfma(a, HR, HI, L256R, L256I, E + 2 * m, E + 2 * m + 1, t)
    a.label('k1b_hdone')
    cfma(a, HR, HI, SWR, SWI, SPR, SPI, t)
    srd(a, 60, 'ws', 8 << 20, WS_H)
    for i in range(32):
        r, m = ure(i), uim(i)
        if PKB:
            pk_step(HR, i, t)
        else:
            cfma(a, HR, HI, LR, LI, r, m, t)
        w = 120 + (i & 3) * 3
        a('v_cvt_pk_bf16_f32 v%d, v%d, -v%d' % (w, HR, HI))
        a('v_mov_b32_dpp v%d, v%d quad_perm:[1,0,3,2] row_mask:0xf bank_mask:0xf' % (w + 1, w))
        a('v_perm_b32 v%d, v%d, v%d, v%d' % (w + 2, w + 1, w, V_SEL))
        a('ds_write_b32 v%d, v%d offset:%d' % (V_HW, w + 2, i * 256))
    a('s_waitcnt lgkmcnt(0)')
    a('s_barrier')
    a('s_lshl_b32 s5, %s, 13' % S_WAVE)
    a('v_lshl_add_u32 v%d, v%d, 4, s5' % (T0, V_LANE))
    for i in range(8):
        a('ds_read_b128 %s, v%d offset:%d' % (vr(144 + 4 * i, 4), T0, i * 1024))
    for i in range(8):
        a('s_mov_b32 s5, 0x%x' % (i * 4 * 4096))
        a('s_waitcnt lgkmcnt(%d)' % (7 - i))
        a('buffer_store_dwordx4 %s, v%d, s[60:63], s5 offen%s' % (vr(144 + 4 * i, 4), V_H,
                                                                  os.environ.get('STH', ' sc1' if FUSE else '')))
    if FUSE:
        handoff_phase2(a, 'b')
        return
    if not os.environ.get('NO_PF3'):
        prefetch_tail(a, [('Cre', 2 << 20), ('Cim', 2 << 20), ('wo', 2 << 20)], 255, T0)
    stamp(a, 6)
    wgt(a, 6)
    stamp_flush(a, 7, 128, 44)
    wgt_flush(a, 7, 0)
    a('s_endpgm')
```

```python
import os
from gemm import Gemm, Ring, Stream
from gen import srd, kernel_head, lane_consts, kc_read_addrs, kn_read_addr, stamp, stamp_flush, wgt, wgt_flush
from gen import WS_O, WS_H, WS_KVP, WS_ZP, WS_AGG

LDS_BYTES = 147456
LOG2E = 0x3fb8aa3b

V_LANE, V_L31, V_HH, T0, T1, T2, T3 = 1, 2, 3, 4, 5, 6, 7
S_WAVE, S_CNT, S_WROFF, S_D0, S_D1, S_TMP, S_ST = 's64', 's65', 's66', 's67', 's68', 's69', 's79'
S_OA, S_MA, S_MT, S_NT, S_WM, S_WN, S_T2 = 's70', 's72', 's74', 's75', 's76', 's77', 's78'
S_L2E, S_HD = 's8', 's10'
SPIN_MAX = 1 << 21
FUSE = not os.environ.get('NO_FUSE')
TWOPASS = bool(os.environ.get('TWOPASS'))
PKB = not os.environ.get('NO_PKB')
XMAP = bool(os.environ.get('XMAP'))
WGTA = bool(os.environ.get('WGTA'))
PDA = int(os.environ.get('PDA', '1')); PDB = int(os.environ.get('PDB', '1'))
ROT = not os.environ.get('NO_ROT')
PFD = int(os.environ.get('PFD', '4'))
EARLYPOLL = bool(os.environ.get('EARLYPOLL'))
S_MA2 = 's73'
S_O2, S_ADV2, S_END2 = 's71', 's11', 's15'
VD = [13, 14, 15, 16, 17, 18, 19, 20]
V_PFD = 47


def vr(b, n):
    return 'v[%d:%d]' % (b, b + n - 1)


def wrap_adv(so, adv, end):
    return ['s_add_u32 %s, %s, %s' % (so, so, adv),
            ['s_cmp_eq_u32 %s, %s' % (so, end), 's_cselect_b32 %s, 0, %s' % (so, so)]]


def set_stream(a, so, adv, end, step, nsteps, lead):
    a('s_add_u32 s5, s7, %d' % lead)
    a('s_and_b32 s5, s5, %d' % (nsteps - 1))
    a('s_mul_i32 %s, s5, 0x%x' % (so, step))
    a('s_mov_b32 %s, 0x%x' % (adv, step))
    a('s_mov_b32 %s, 0x%x' % (end, step * nsteps))


def kc_dma_voffs(a, s_row0, permute):
    if not permute:
        a('v_lshrrev_b32 v%d, 3, v%d' % (T0, V_LANE))
    else:
        a('v_bfe_u32 v%d, v%d, 3, 2' % (T0, V_LANE))
        a('v_lshl_add_u32 v%d, v%d, 5, v%d' % (T0, V_HH, T0))
    a('v_add_u32 v%d, %s, v%d' % (T0, s_row0, T0))
    a('v_lshlrev_b32 v%d, 11, v%d' % (T0, T0))
    a('v_lshrrev_b32 v%d, 4, v%d' % (T1, V_LANE))
    a('v_and_b32 v%d, 7, v%d' % (T2, V_LANE))
    a('v_xor_b32 v%d, v%d, v%d' % (T1, T1, T2))
    for j in range(8):
        a('v_xor_b32 v%d, %d, v%d' % (T2, (j & 1) * 4, T1))
        a('v_lshl_add_u32 v%d, v%d, 4, v%d' % (VD[j], T2, T0))
        rows = (8 * j) if not permute else (16 * (j >> 2) + 4 * (j & 3))
        c = rows * 2048 - (j & 3) * 1024
        if c:
            a('v_add_u32 v%d, 0x%x, v%d' % (VD[j], c, VD[j]))


def poll(a, tag, v_off, v_tmp, s_mask_or_count, mode):
    a('s_cmp_lg_u32 %s, 0' % S_WAVE)
    a('s_cbranch_scc1 %s_done' % tag)
    a('s_mov_b32 s5, 0')
    a.label('%s_loop' % tag)
    a('global_load_dword v%d, v%d, s[44:45] sc1' % (v_tmp, v_off))
    a('s_waitcnt vmcnt(0)')
    a('v_readfirstlane_b32 s6, v%d' % v_tmp)
    a('s_nop 3')
    if mode == 'ge':
        a('s_cmp_ge_u32 s6, %s' % s_mask_or_count)
    else:
        a('s_and_b32 s6, s6, %s' % s_mask_or_count)
        a('s_cmp_eq_u32 s6, %s' % s_mask_or_count)
    a('s_cbranch_scc1 %s_ok' % tag)
    a('s_sleep %s' % os.environ.get('SLEEP', '1'))
    a('s_add_u32 s5, s5, 1')
    a('s_cmp_lt_u32 s5, %d' % SPIN_MAX)
    a('s_cbranch_scc1 %s_loop' % tag)
    a.label('%s_ok' % tag)
    if os.environ.get('INV'):
        a('buffer_inv sc1')
        a('s_waitcnt vmcnt(0)')
    a.label('%s_done' % tag)
    a('s_barrier')


def softmax_pm(a, PP, EP, EN, OUTP, OUTN, t):
    mx, mn, t1, t2 = t, t + 2, t + 4, t + 6
    a('v_max3_f32 v%d, v%d, v%d, v%d' % (mx, PP, PP + 1, PP + 2))
    a('v_min3_f32 v%d, v%d, v%d, v%d' % (mn, PP, PP + 1, PP + 2))
    for i in range(3, 15, 2):
        a('v_max3_f32 v%d, v%d, v%d, v%d' % (mx, mx, PP + i, PP + i + 1))
        a('v_min3_f32 v%d, v%d, v%d, v%d' % (mn, mn, PP + i, PP + i + 1))
    a('v_max_f32 v%d, v%d, v%d' % (mx, mx, PP + 15))
    a('v_min_f32 v%d, v%d, v%d' % (mn, mn, PP + 15))
    a('v_mov_b32 v%d, v%d' % (t1, mx))
    a('v_mov_b32 v%d, v%d' % (t2, mn))
    a('v_permlane32_swap_b32 v%d, v%d' % (mx, t1))
    a('v_permlane32_swap_b32 v%d, v%d' % (mn, t2))
    a('v_max_f32 v%d, v%d, v%d' % (mx, mx, t1))
    a('v_min_f32 v%d, v%d, v%d' % (mn, mn, t2))
    a('v_mul_f32 v%d, %s, v%d' % (mx, S_L2E, mx))
    a('v_mul_f32 v%d, %s, v%d' % (mn, S_L2E, mn))
    for i in range(0, 16, 2):
        a('v_pk_fma_f32 %s, %s, s[8:9], %s op_sel_hi:[1,1,0] neg_lo:[0,0,1] neg_hi:[0,0,1]' %
          (vr(EP + i, 2), vr(PP + i, 2), vr(mx, 2)))
        a('v_pk_fma_f32 %s, %s, s[8:9], %s op_sel_hi:[1,1,0] neg_lo:[1,0,0] neg_hi:[1,0,0]' %
          (vr(EN + i, 2), vr(PP + i, 2), vr(mn, 2)))
    for i in range(16):
        a('v_exp_f32 v%d, v%d' % (EP + i, EP + i))
        a('v_exp_f32 v%d, v%d' % (EN + i, EN + i))
    a('v_pk_add_f32 %s, %s, %s' % (vr(mx, 2), vr(EP, 2), vr(EP + 2, 2)))
    a('v_pk_add_f32 %s, %s, %s' % (vr(mn, 2), vr(EN, 2), vr(EN + 2, 2)))
    a('v_pk_add_f32 %s, %s, %s' % (vr(t1, 2), vr(EP + 4, 2), vr(EP + 6, 2)))
    a('v_pk_add_f32 %s, %s, %s' % (vr(t2, 2), vr(EN + 4, 2), vr(EN + 6, 2)))
    for i in (8, 12):
        a('v_pk_add_f32 %s, %s, %s' % (vr(mx, 2), vr(mx, 2), vr(EP + i, 2)))
        a('v_pk_add_f32 %s, %s, %s' % (vr(mn, 2), vr(mn, 2), vr(EN + i, 2)))
        a('v_pk_add_f32 %s, %s, %s' % (vr(t1, 2), vr(t1, 2), vr(EP + i + 2, 2)))
        a('v_pk_add_f32 %s, %s, %s' % (vr(t2, 2), vr(t2, 2), vr(EN + i + 2, 2)))
    a('v_pk_add_f32 %s, %s, %s' % (vr(mx, 2), vr(mx, 2), vr(t1, 2)))
    a('v_pk_add_f32 %s, %s, %s' % (vr(mn, 2), vr(mn, 2), vr(t2, 2)))
    a('v_add_f32 v%d, v%d, v%d' % (mx, mx, mx + 1))
    a('v_add_f32 v%d, v%d, v%d' % (mn, mn, mn + 1))
    a('v_mov_b32 v%d, v%d' % (t1, mx))
    a('v_mov_b32 v%d, v%d' % (t2, mn))
    a('v_permlane32_swap_b32 v%d, v%d' % (mx, t1))
    a('v_permlane32_swap_b32 v%d, v%d' % (mn, t2))
    a('v_add_f32 v%d, v%d, v%d' % (mx, mx, t1))
    a('v_add_f32 v%d, v%d, v%d' % (mn, mn, t2))
    a('v_rcp_f32 v%d, v%d' % (mx, mx))
    a('v_rcp_f32 v%d, v%d' % (mn, mn))
    for i in range(0, 16, 2):
        a('v_pk_mul_f32 %s, %s, %s op_sel_hi:[1,0]' % (vr(EP + i, 2), vr(EP + i, 2), vr(mx, 2)))
        a('v_pk_mul_f32 %s, %s, %s op_sel_hi:[1,0]' % (vr(EN + i, 2), vr(EN + i, 2), vr(mn, 2)))
    for k in range(8):
        a('v_cvt_pk_bf16_f32 v%d, v%d, v%d' % (OUTP + k, EP + 2 * k, EP + 2 * k + 1))
        a('v_cvt_pk_bf16_f32 v%d, v%d, v%d' % (OUTN + k, EN + 2 * k, EN + 2 * k + 1))


def prefetch_tail(a, items, vdst, vt):
    nw = int(os.environ.get('PFT', '8'))
    if nw == 4:
        a('s_nop 7')
        a('s_nop 3')
        a('s_cmp_lt_u32 %s, 4' % S_WAVE)
        a('s_cbranch_scc1 pft_skip')
    a('s_lshl_b32 s5, %s, 4' % S_MT)
    a('s_add_u32 s5, s5, %s' % S_NT)
    a('s_lshl_b32 s5, s5, %d' % (2 if nw == 4 else 3))
    a('s_add_u32 s5, s5, %s' % S_WAVE)
    if nw == 4:
        a('s_sub_u32 s5, s5, 4')
    for (ptr, nbytes) in items:
        per = nbytes // (128 * nw)
        srd(a, 96, ptr, nbytes)
        a('s_mul_i32 s6, s5, %d' % per)
        a('v_min_u32 v%d, %d, v%d' % (vt, per // 128 - 1, V_LANE))
        a('v_lshlrev_b32 v%d, 7, v%d' % (vt, vt))
        a('buffer_load_dword v%d, v%d, s[96:99], s6 offen' % (vdst, vt))
    a.label('pft_skip')


def handoff_phase2(a, which):
    import p2
    tag = 'ho' + which
    base = 32 if which == 'b' else 40
    a('s_lshl_b32 s5, %s, 2' % S_MT)
    a('s_add_u32 s5, s5, %d' % (4 * base))
    a('v_mov_b32 v34, s5')
    a('v_mov_b32 v35, 1')
    a('s_waitcnt vmcnt(0) lgkmcnt(0)')
    a('s_barrier')
    a('s_cmp_lt_u32 %s, 4' % S_WAVE)
    a('s_cbranch_scc1 %s_go' % tag)
    a('s_endpgm')
    a.label('%s_go' % tag)
    a('s_cmp_lg_u32 %s, 0' % S_WAVE)
    a('s_cbranch_scc1 %s_nosig' % tag)
    a('s_mov_b64 exec, 1')
    a('global_atomic_add v34, v35, s[44:45] sc1')
    a('s_mov_b64 exec, -1')
    a.label('%s_nosig' % tag)
    wgt(a, 6 if WGTA else 3)
    a('s_lshl_b32 %s, %s, 1' % (S_MT, S_MT))
    a('s_and_b32 s5, %s, 1' % S_NT)
    a('s_add_u32 %s, %s, s5' % (S_MT, S_MT))
    a('s_lshr_b32 %s, %s, 1' % (S_NT, S_NT))
    if XMAP:
        a('s_and_b32 s5, s2, 3')
        a('s_lshl_b32 s11, s5, 2')
    else:
        a('s_and_b32 s5, s2, 7')
        a('s_lshl_b32 s11, s5, 1')
    if which == 'b':
        a('s_add_u32 s11, s11, 1')

    def wait_fn():
        poll(a, tag + '_poll', 34, T0, '16', 'ge')
        if not WGTA:
            wgt(a, 4)
    p2.phase2(a, which, wait_fn)


def gen_k1(a):
    name = 'k1_kernel'
    kernel_head(a, name, 256)
    lane_consts(a, V_LANE, V_L31, V_HH, S_WAVE, T0)
    a('s_and_b32 s3, s2, 7')
    a('s_lshr_b32 s4, s2, 3')
    a('s_and_b32 s5, s4, 3')
    a('s_and_b32 s6, s3, 1')
    a('s_lshl_b32 s6, s6, 2')
    a('s_add_u32 %s, s6, s5' % S_MT)
    if XMAP:
        a('s_lshr_b32 s5, s4, 2')
        a('s_bfe_u32 s6, s3, 0x10001')
        a('s_lshl_b32 s6, s6, 3')
        a('s_add_u32 %s, s6, s5' % S_NT)
        a('s_lshr_b32 s4, s3, 2')
        a('s_lshl_b32 s4, s4, 4')
    else:
        a('s_bfe_u32 s5, s4, 0x20002')
        a('s_lshr_b32 s6, s3, 1')
        a('s_lshl_b32 s6, s6, 2')
        a('s_add_u32 %s, s6, s5' % S_NT)
    a('s_lshr_b32 %s, %s, 1' % (S_WM, S_WAVE))
    a('s_and_b32 %s, %s, 1' % (S_WN, S_WAVE))
    a('s_lshl_b32 %s, %s, 13' % (S_MA, S_WAVE))
    a('s_add_u32 %s, %s, 4096' % (S_MA2, S_MA))
    if ROT and XMAP:
        a('s_and_b32 s5, s3, 3')
        a('s_lshl_b32 s5, s5, 2')
        a('s_bfe_u32 s6, s4, 0x10004')
        a('s_lshl_b32 s6, s6, 1')
        a('s_add_u32 s7, s5, s6')
    elif ROT:
        a('s_lshl_b32 s5, s3, 1')
        a('s_bfe_u32 s6, s4, 0x10004')
        a('s_add_u32 s7, s5, s6')
    else:
        a('s_mov_b32 s7, 0')
    a('s_mov_b32 s3, s7')
    a('s_mov_b32 s8, 0x%x' % LOG2E)
    a('s_mov_b32 s9, 0x%x' % LOG2E)
    VA = [8, 9, 10, 11]
    a('s_lshl_b32 %s, %s, 13' % (S_TMP, S_WM))
    kc_read_addrs(a, VA, V_L31, V_HH, S_TMP, 0, T0, T1)
    a('s_waitcnt lgkmcnt(0)')
    a('s_bitcmp1_b32 s4, 4')
    a('s_cbranch_scc1 k1_B')
    gen_A(a, VA)
    a.label('k1_B')
    gen_B(a, VA)
    a.label(name + '_exit')
    a('s_endpgm')


S_MB, S_MB2 = 's66', 's78'


def run_roles(a, tag, ringA, ringB, streamB_groups, extra_none=None, **cfg):
    a('s_cmp_ge_u32 %s, 4' % S_WAVE)
    a('s_cbranch_scc1 %s_r1' % tag)
    sa = Stream(ringA, [(S_MA, [(VD[j], 's[48:51]', S_OA, j * 1024) for j in range(4)]),
                        (S_MA2, [(VD[4 + j], 's[48:51]', S_OA, j * 1024) for j in range(4)])],
                ['s_add_u32 %s, %s, 128' % (S_OA, S_OA), 's_and_b32 %s, %s, 0x7ff' % (S_OA, S_OA)])
    sb = Stream(ringB, streamB_groups, wrap_adv(S_O2, S_ADV2, S_END2))
    g = Gemm(a, pfx=tag + 'd', streams=[sa, sb], ringA=ringA, ringB=ringB, **cfg)
    g.run(16)
    a('s_branch %s_join' % tag)
    a.label('%s_r1' % tag)
    g = Gemm(a, pfx=tag + 'n', streams=[], ringA=ringA, ringB=ringB, **cfg)
    g.run(16, tail_extra=extra_none)
    a.label('%s_join' % tag)


BBASE = 98304
BBASE_A = 65536 if not os.environ.get('NO_SWAPRING') else 98304


def gen_A(a, VA):
    a.comment('==== A: qkv gemm')
    VB0 = 12
    WPH = 24
    VWR = 32
    VTR = 40
    V_OFF, V_ONE, V_O = 44, 45, 46
    V_OW, V_OR = 13, 47
    OBASE = 16384
    ACC = 48
    FR = 144
    AQ, AK, AV = ACC, ACC + 32, ACC + 64
    NB, ST = 2, 57344
    srd(a, 56, 'wphi', 65536)
    a('s_lshl_b32 %s, %s, 1' % (S_HD, S_NT))
    a('s_add_u32 %s, %s, %s' % (S_HD, S_HD, S_WN))
    a('v_lshlrev_b32 v%d, 8, v%d' % (T0, V_HH))
    a('v_lshl_add_u32 v%d, v%d, 1, v%d' % (T0, V_L31, T0))
    a('s_lshl_b32 s5, %s, 11' % S_HD)
    for s in range(2):
        for i in range(8):
            d = 16 * s + 8 * (i >> 2) + (i & 3)
            a('buffer_load_ushort v%d, v%d, s[56:59], s5 offen offset:%d' % (ACC + 8 * s + i, T0, d * 64))
    VW = [184, 185, 186, 187, 188, 189]
    srd(a, 48, 'Ax', 4 << 20)
    srd(a, 52, 'wqkv', 6 << 20)
    a('s_and_b32 s4, %s, 3' % S_WAVE)
    a('s_lshl_b32 s5, %s, 8' % S_MT)
    a('s_lshl_b32 s6, s4, 6')
    a('s_add_u32 s6, s5, s6')
    kc_dma_voffs(a, 's6', False)
    a('s_lshl_b32 %s, s7, 7' % S_OA)
    def w_setup(nper, seg0, base):
        a('s_and_b32 s4, %s, 3' % S_WAVE)
        a('v_lshrrev_b32 v%d, 3, v%d' % (T0, V_LANE))
        a('v_mul_u32_u24 v%d, 6144, v%d' % (T0, T0))
        a('v_bfe_u32 v%d, v%d, 4, 1' % (T1, V_LANE))
        a('v_lshlrev_b32 v%d, 2, v%d' % (T1, T1))
        a('v_and_b32 v%d, 7, v%d' % (T2, V_LANE))
        a('v_xor_b32 v%d, v%d, v%d' % (T1, T1, T2))
        a('v_lshl_add_u32 v%d, v%d, 4, v%d' % (T0, T1, T0))
        a('s_mul_i32 s4, s4, %d' % nper)
        a('s_lshl_b32 %s, s4, 10' % S_MB)
        a('s_add_u32 %s, %s, %d' % (S_MB, S_MB, base))
        a('s_add_u32 %s, %s, 4096' % (S_MB2, S_MB))
        for j in range(nper):
            a('s_add_u32 s5, s4, %d' % j)
            a('s_lshr_b32 s6, s5, 3')
            a('s_and_b32 s5, s5, 7')
            a('s_mul_i32 s5, s5, 49152')
            a('s_lshl_b32 s6, s6, 11')
            a('s_add_u32 s5, s5, s6')
            a('s_lshl_b32 s6, %s, 7' % S_NT)
            a('s_add_u32 s5, s5, s6')
            c = seg0 * 2048 - (j & 3) * 1024
            if c > 0:
                a('s_add_u32 s5, s5, %d' % c)
            elif c < 0:
                a('s_sub_u32 s5, s5, %d' % (-c))
            a('v_add_u32 v%d, s5, v%d' % (VW[j], T0))
        a('s_mov_b32 s7, s3')
        set_stream(a, S_O2, S_ADV2, S_END2, 0x60000, 16, 0)
        a('s_mov_b32 %s, 0' % S_TMP)
        kn_read_addr(a, VB0, None, V_LANE, S_TMP, base, T0, T1)
        a('s_lshl_b32 s5, %s, 6' % S_WN)
        a('v_xor_b32 v%d, s5, v%d' % (VB0, VB0))

    if TWOPASS:
        w_setup(4, 1, BBASE)
    else:
        w_setup(6, 0, BBASE_A)

    def mid(nvm):
        a('s_lshl_b32 s5, %s, 13' % S_WAVE)
        a('v_and_b32 v%d, 5, v%d' % (T0, V_L31))
        a('v_bfe_u32 v%d, v%d, 1, 1' % (T1, V_L31))
        a('v_lshl_or_b32 v%d, v%d, 3, v%d' % (T0, T1, T0))
        a('v_bfe_u32 v%d, v%d, 3, 1' % (T1, V_L31))
        a('v_lshl_or_b32 v%d, v%d, 1, v%d' % (T0, T1, T0))
        a('v_xor_b32 v%d, v%d, v%d' % (T0, T0, V_HH))
        a('v_lshlrev_b32 v%d, 3, v%d' % (T0, T0))
        a('v_lshl_add_u32 v%d, v%d, 7, v%d' % (T0, V_L31, T0))
        a('v_add_u32 v%d, s5, v%d' % (T0, T0))
        for k in range(8):
            a('v_xor_b32 v%d, %d, v%d' % (VWR + k, ((k & 3) * 2 + (k >> 2) * 8) * 8, T0))
        a('v_bfe_u32 v%d, v%d, 2, 2' % (T0, V_LANE))
        a('v_lshl_add_u32 v%d, v%d, 2, v%d' % (T0, V_HH, T0))
        a('v_and_b32 v%d, 5, v%d' % (T1, T0))
        a('v_bfe_u32 v%d, v%d, 1, 1' % (T2, T0))
        a('v_lshl_or_b32 v%d, v%d, 3, v%d' % (T1, T2, T1))
        a('v_and_b32 v%d, 3, v%d' % (T2, V_LANE))
        a('v_bfe_u32 v%d, v%d, 4, 1' % (T3, V_LANE))
        a('v_lshl_or_b32 v%d, v%d, 2, v%d' % (T2, T3, T2))
        a('v_xor_b32 v%d, v%d, v%d' % (T1, T1, T2))
        a('v_lshlrev_b32 v%d, 3, v%d' % (T1, T1))
        a('v_lshl_add_u32 v%d, v%d, 7, v%d' % (T1, T0, T1))
        a('v_add_u32 v%d, s5, v%d' % (T1, T1))
        for ft in range(2):
            for u in range(2):
                a('v_xor_b32 v%d, %d, v%d' % (VTR + 2 * ft + u, ft * 64 + u * 16, T1))
        a('s_lshl_b32 s5, %s, 2' % S_NT)
        if os.environ.get('DBGT'):
            a('s_add_u32 s5, s5, 192')
        a('v_mov_b32 v%d, s5' % V_OFF)
        a('v_mov_b32 v%d, 1' % V_ONE)
        a('s_lshl_b32 s5, %s, 12' % S_WAVE)
        a('v_lshrrev_b32 v%d, 3, v%d' % (T0, V_LANE))
        a('v_and_b32 v%d, 7, v%d' % (T1, V_LANE))
        a('v_xor_b32 v%d, v%d, v%d' % (T2, T0, T1))
        a('v_lshlrev_b32 v%d, 4, v%d' % (T2, T2))
        a('v_lshl_add_u32 v%d, v%d, 7, v%d' % (T2, T0, T2))
        a('v_add_u32 v%d, s5, v%d' % (V_OR, T2))
        a('s_lshl_b32 s5, %s, 8' % S_MT)
        a('s_lshl_b32 s6, %s, 5' % S_WAVE)
        a('s_add_u32 s5, s5, s6')
        a('v_add_u32 v%d, s5, v%d' % (T0, T0))
        a('v_lshlrev_b32 v%d, 11, v%d' % (T0, T0))
        a('v_lshl_add_u32 v%d, v%d, 4, v%d' % (T0, T1, T0))
        a('s_lshl_b32 s5, %s, 7' % S_NT)
        a('v_add_u32 v%d, s5, v%d' % (V_O, T0))
        a('s_waitcnt vmcnt(%d)' % nvm)
        for r in range(8):
            a('v_lshl_or_b32 v%d, v%d, 16, v%d' % (WPH + r, ACC + 2 * r + 1, ACC + 2 * r))

    def acc(tm, tn):
        return vr(ACC + 32 * tn + 16 * tm, 16)

    stamp(a, 1)
    wgt(a, 1)
    if TWOPASS:
        ringA = Ring(32768, 3, ['s67', 's68', 's79'], S_TMP)
        ringB = Ring(16384, 3, ['s12', 's13', 's14'], S_TMP)
        sbg = [(S_MB, [(VW[j], 's[52:55]', S_O2, j * 1024) for j in range(4)])]
        run_roles(a, 'k1a', ringA, ringB, sbg, TM=2, TN=2, PD=PDA, NS=2 * PDA, FR=FR, vA=VA, offA=[0, 4096],
                  bmode='kn', vB=[VB0], offB=[(0, 0), (0, 8192)], acc=lambda tm, tn: acc(tm, tn + 1),
                  swap=lambda tm, tn: tn < 1, s_cnt=S_CNT, mid=mid)
    else:
        if not os.environ.get('NO_SWAPRING'):
            ringA = Ring(32768, 2, ['s67', 's68', 's79'], S_TMP)
            ringB = Ring(24576, 3, ['s12', 's13', 's14'], S_TMP)
        else:
            ringA = Ring(32768, 3, ['s67', 's68', 's79'], S_TMP)
            ringB = Ring(24576, 2, ['s12', 's13'], S_TMP)
        sbg = [(S_MB, [(VW[j], 's[52:55]', S_O2, j * 1024) for j in range(4)]),
               (S_MB2, [(VW[4 + j], 's[52:55]', S_O2, j * 1024) for j in range(2)])]
        run_roles(a, 'k1a', ringA, ringB, sbg, TM=2, TN=3, PD=PDA, NS=2 * PDA, FR=FR, vA=VA, offA=[0, 4096],
                  bmode='kn', vB=[VB0], offB=[(0, 0), (0, 8192), (0, 16384)], acc=acc,
                  swap=lambda tm, tn: tn < 2,
                  s_cnt=S_CNT, mid=mid)
    stamp(a, 2)
    wgt(a, 2)
    PK = 144
    PP = 152
    EP = 168
    EN = 184
    OP = 200
    ON = 208
    KV = 216
    TS = 248
    ZA = 22
    V_ONES = 21
    AF = 168
    a('v_mov_b32 v%d, 0x3f803f80' % V_ONES)
    a('v_mov_b32 v%d, 0' % ZA)
    a('v_mov_b32 v%d, 0' % (ZA + 1))
    srd(a, 56, 'ws', 4 << 20, WS_KVP)
    srd(a, 60, 'ws', 4 << 20, WS_O)

    def featmap(src, outp, outn):
        for k in range(8):
            a('v_cvt_pk_bf16_f32 v%d, v%d, v%d' % (PK + k, src + 2 * k, src + 2 * k + 1))
        a('v_mfma_f32_32x32x16_bf16 %s, %s, %s, 0' % (vr(PP, 16), vr(WPH, 4), vr(PK, 4)))
        a('v_mfma_f32_32x32x16_bf16 %s, %s, %s, %s' % (vr(PP, 16), vr(WPH + 4, 4), vr(PK + 4, 4), vr(PP, 16)))
        softmax_pm(a, PP, EP, EN, outp, outn, TS)

    for tm in range(2):
        featmap(AK + 16 * tm, OP, ON)
        if tm == 0:
            a('s_barrier')
        for g4 in range(4):
            a('ds_write_b64 v%d, %s offset:%d' % (VWR + g4, vr(OP + 2 * g4, 2), tm * 4096))
            a('ds_write_b64 v%d, %s offset:%d' % (VWR + 4 + g4, vr(ON + 2 * g4, 2), tm * 4096))
        for k in range(8):
            a('v_cvt_pk_bf16_f32 v%d, v%d, v%d' % (PK + k, AV + 16 * tm + 2 * k, AV + 16 * tm + 2 * k + 1))
        a('s_waitcnt lgkmcnt(0)')
        for ft in range(2):
            for s in range(2):
                f = AF + 4 * (2 * ft + s)
                for u in range(2):
                    a('ds_read_b64_tr_b16 %s, v%d offset:%d' % (vr(f + 2 * u, 2), VTR + 2 * ft + u,
                                                                 tm * 4096 + s * 2048 + u * 1024))
        for ft in range(2):
            for s in range(2):
                f = AF + 4 * (2 * ft + s)
                a('s_waitcnt lgkmcnt(%d)' % (6 - 2 * (2 * ft + s)))
                c = '0' if (tm == 0 and s == 0) else vr(KV + 16 * ft, 16)
                a('v_mfma_f32_32x32x16_bf16 %s, %s, %s, %s' % (vr(KV + 16 * ft, 16), vr(f, 4), vr(PK + 4 * s, 4), c))
                for k in range(4):
                    a('v_dot2c_f32_bf16 v%d, v%d, v%d' % (ZA + ft, f + k, V_ONES))
    a('v_mov_b32 v%d, v%d' % (TS, ZA))
    a('v_mov_b32 v%d, v%d' % (TS + 1, ZA + 1))
    a('v_permlane32_swap_b32 v%d, v%d' % (ZA, TS))
    a('v_permlane32_swap_b32 v%d, v%d' % (ZA + 1, TS + 1))
    a('v_add_f32 v%d, v%d, v%d' % (ZA, ZA, TS))
    a('v_add_f32 v%d, v%d, v%d' % (ZA + 1, ZA + 1, TS + 1))
    a('v_cmp_eq_u32 vcc, 1, v%d' % V_HH)
    a('v_cndmask_b32 v%d, v%d, v%d, vcc' % (ZA, ZA, ZA + 1))
    a('s_lshl_b32 s5, %s, 13' % S_WAVE)
    a('v_lshl_add_u32 v%d, v%d, 4, s5' % (T0, V_LANE))
    a('s_lshl_b32 s5, %s, 8' % S_WAVE)
    a('s_add_u32 s5, s5, 65536')
    a('v_lshl_add_u32 v%d, v%d, 2, s5' % (T1, V_LANE))
    a('ds_write_b32 v%d, v%d' % (T1, ZA))
    for q in range(8):
        a('ds_write_b128 v%d, %s offset:%d' % (T0, vr(KV + 4 * q, 4), q * 1024))
    a('s_lshl_b32 s5, %s, 13' % S_WN)
    a('s_lshl_b32 s6, %s, 11' % S_WM)
    a('s_add_u32 s5, s5, s6')
    a('v_lshl_add_u32 v%d, v%d, 4, s5' % (T0, V_LANE))
    a('s_lshl_b32 s5, %s, 8' % S_WN)
    a('s_add_u32 s5, s5, 65536')
    a('v_lshl_add_u32 v%d, v%d, 2, s5' % (T1, V_LANE))
    a('s_lshl_b32 s5, %s, 5' % S_MT)
    a('s_add_u32 s5, s5, %s' % S_HD)
    a('s_lshl_b32 s6, s5, 13')
    a('s_lshl_b32 s7, %s, 11' % S_WM)
    a('s_add_u32 s6, s6, s7')
    a('v_lshlrev_b32 v%d, 4, v%d' % (T2, V_LANE))
    a('s_lshl_b32 s7, s5, 8')
    a('s_add_u32 s7, s7, 0x%x' % (WS_ZP - WS_KVP))
    a('v_lshlrev_b32 v%d, 2, v%d' % (T3, V_LANE))
    a('s_waitcnt lgkmcnt(0)')
    a('s_barrier')
    R = 216
    for w in range(4):
        for q in range(2):
            a('ds_read_b128 %s, v%d offset:%d' % (vr(R + 8 * w + 4 * q, 4), T0, w * 16384 + q * 1024))
    for w in range(4):
        a('ds_read_b32 v%d, v%d offset:%d' % (OP + w, T1, w * 512))
    a('s_waitcnt lgkmcnt(4)')
    for k in range(0, 8, 2):
        a('v_pk_add_f32 %s, %s, %s' % (vr(R + k, 2), vr(R + k, 2), vr(R + 8 + k, 2)))
        a('v_pk_add_f32 %s, %s, %s' % (vr(R + 16 + k, 2), vr(R + 16 + k, 2), vr(R + 24 + k, 2)))
    for k in range(0, 8, 2):
        a('v_pk_add_f32 %s, %s, %s' % (vr(R + k, 2), vr(R + k, 2), vr(R + 16 + k, 2)))
    a('buffer_store_dwordx4 %s, v%d, s[56:59], s6 offen sc1' % (vr(R, 4), T2))
    a('buffer_store_dwordx4 %s, v%d, s[56:59], s6 offen offset:1024 sc1' % (vr(R + 4, 4), T2))
    a('s_waitcnt lgkmcnt(0)')
    a('v_add_f32 v%d, v%d, v%d' % (OP, OP, OP + 1))
    a('v_add_f32 v%d, v%d, v%d' % (OP + 2, OP + 2, OP + 3))
    a('v_add_f32 v%d, v%d, v%d' % (ZA, OP, OP + 2))
    a('s_cmp_lg_u32 %s, 0' % S_WM)
    a('s_cbranch_scc1 k1a_noz')
    a('buffer_store_dword v%d, v%d, s[56:59], s7 offen sc1' % (ZA, T3))
    a.label('k1a_noz')
    stamp(a, 3)
    if (not FUSE) or WGTA:
        wgt(a, 3)
    nsig = [0]

    def signal():
        nsig[0] += 1
        lab = 'k1a_nosig%d' % nsig[0]
        a('s_cmp_lg_u32 %s, 0' % S_WAVE)
        a('s_cbranch_scc1 %s' % lab)
        a('s_mov_b64 exec, 1')
        a('global_atomic_add v%d, v%d, s[44:45] sc1' % (V_OFF, V_ONE))
        a('s_mov_b64 exec, -1')
        a.label(lab)

    if TWOPASS:
        PQ = 216
        a('s_lshl_b32 %s, %s, 13' % (S_MA, S_WAVE))
        a('s_add_u32 %s, %s, 4096' % (S_MA2, S_MA))
        a('s_lshl_b32 %s, s3, 7' % S_OA)
        a('s_lshl_b32 %s, %s, 13' % (S_TMP, S_WM))
        kc_read_addrs(a, VA, V_L31, V_HH, S_TMP, 0, T0, T1)
        w_setup(2, 0, BBASE)
        a('s_barrier')
        ringB = Ring(8192, 3, ['s12', 's13', 's14'], S_TMP)
        sbg = [(S_MB, [(VW[j], 's[52:55]', S_O2, j * 1024) for j in range(2)])]

        def mid2(nvm):
            a('s_waitcnt vmcnt(%d)' % nvm)
        run_roles(a, 'k1q', ringA, ringB, sbg, TM=2, TN=1, PD=PDA, NS=2 * PDA, FR=FR, vA=VA, offA=[0, 4096],
                  bmode='kn', vB=[VB0], offB=[(0, 0)], acc=lambda tm, tn: acc(tm, 0),
                  swap=lambda tm, tn: True, s_cnt=S_CNT, mid=mid2, post_bar=signal, n_extra_post=1)
        a('v_lshlrev_b32 v%d, 4, v%d' % (T2, V_LANE))
        a('v_lshlrev_b32 v%d, 2, v%d' % (T3, V_LANE))
    else:
        PQ = AK
        featmap(AQ, PQ, PQ + 8)
        a('s_waitcnt vmcnt(0)')
        a('s_barrier')
        signal()
        if not EARLYPOLL:
            featmap(AQ + 16, PQ + 16, PQ + 24)
    stamp(a, 4)
    if (not FUSE) or WGTA:
        wgt(a, 4)
    poll(a, 'k1a_poll', V_OFF, T0, '8', 'ge')
    stamp(a, 5)
    if (not FUSE) or WGTA:
        wgt(a, 5)
    a('s_lshl_b32 s6, %s, 13' % S_HD)
    a('s_lshl_b32 s7, %s, 11' % S_WM)
    a('s_add_u32 s6, s6, s7')
    if TWOPASS:
        LM = [AK + 8 * m for m in range(8)]
        ZL = 200
    elif EARLYPOLL:
        L = AV
        LM = [AV, AV + 8, AV + 16, AV + 24, 216, 224, 232, 240]
        ZL = AQ
    else:
        LM = [144 + 8 * m for m in range(8)]
        ZL = 208
    for m in range(8):
        a('buffer_load_dwordx4 %s, v%d, s[56:59], s6 offen sc1' % (vr(LM[m], 4), T2))
        a('buffer_load_dwordx4 %s, v%d, s[56:59], s6 offen offset:1024 sc1' % (vr(LM[m] + 4, 4), T2))
        if m < 7:
            a('s_add_u32 s6, s6, 0x40000')
    a('s_lshl_b32 s7, %s, 8' % S_HD)
    a('s_add_u32 s7, s7, 0x%x' % (WS_ZP - WS_KVP))
    for m in range(8):
        a('buffer_load_dword v%d, v%d, s[56:59], s7 offen sc1' % (ZL + m, T3))
        if m < 7:
            a('s_add_u32 s7, s7, 0x2000')
    if TWOPASS:
        featmap(AQ, PQ, PQ + 8)
        featmap(AQ + 16, PQ + 16, PQ + 24)
    elif EARLYPOLL:
        featmap(AQ + 16, PQ + 16, PQ + 24)
    a('s_lshl_b32 s5, %s, 12' % S_WN)
    a('v_lshl_add_u32 v%d, v%d, 4, s5' % (T0, V_LANE))
    a('s_lshl_b32 s6, %s, 10' % S_WM)
    a('v_add_u32 v%d, s6, v%d' % (T1, T0))
    a('s_lshl_b32 s5, %s, 13' % S_WM)
    a('s_lshl_b32 s6, %s, 2' % S_WN)
    a('v_or_b32 v%d, s6, v%d' % (TS, V_HH))
    a('v_and_b32 v%d, 7, v%d' % ((TS + 1), V_L31))
    a('v_xor_b32 v%d, v%d, v%d' % (TS, TS, (TS + 1)))
    a('v_lshlrev_b32 v%d, 4, v%d' % (TS, TS))
    a('v_lshl_add_u32 v%d, v%d, 7, v%d' % (TS, V_L31, TS))
    a('v_add_u32 v%d, s5, v%d' % (V_OW, TS))
    a('v_xor_b32 v%d, 32, v%d' % (V_OW + 1, V_OW))
    a('s_waitcnt vmcnt(8)')
    for k in range(0, 8, 2):
        for m in range(0, 8, 2):
            a('v_pk_add_f32 %s, %s, %s' % (vr(LM[m] + k, 2), vr(LM[m] + k, 2), vr(LM[m + 1] + k, 2)))
    for k in range(0, 8, 2):
        a('v_pk_add_f32 %s, %s, %s' % (vr(LM[0] + k, 2), vr(LM[0] + k, 2), vr(LM[2] + k, 2)))
        a('v_pk_add_f32 %s, %s, %s' % (vr(LM[4] + k, 2), vr(LM[4] + k, 2), vr(LM[6] + k, 2)))
    for k in range(0, 8, 2):
        a('v_pk_add_f32 %s, %s, %s' % (vr(LM[0] + k, 2), vr(LM[0] + k, 2), vr(LM[4] + k, 2)))
    for k in range(4):
        a('v_cvt_pk_bf16_f32 v%d, v%d, v%d' % (LM[1] + k, LM[0] + 2 * k, LM[0] + 2 * k + 1))
    a('ds_write_b128 v%d, %s' % (T1, vr(LM[1], 4)))
    a('s_waitcnt vmcnt(0)')
    for m in range(0, 8, 4):
        a('v_pk_add_f32 %s, %s, %s' % (vr(ZL + m, 2), vr(ZL + m, 2), vr(ZL + m + 2, 2)))
    a('v_pk_add_f32 %s, %s, %s' % (vr(ZL, 2), vr(ZL, 2), vr(ZL + 4, 2)))
    a('v_add_f32 v%d, v%d, v%d' % (ZL, ZL, ZL + 1))
    a('v_cvt_pk_bf16_f32 v%d, v%d, v%d' % (ZL, ZL, ZL))
    a('s_lshl_b32 s5, %s, 7' % S_WN)
    a('s_add_u32 s5, s5, 8192')
    a('v_lshl_add_u32 v%d, v%d, 1, s5' % (T1, V_LANE))
    a('ds_write_b16 v%d, v%d' % (T1, ZL))
    a('v_lshl_add_u32 v%d, v%d, 3, s5' % (T1, V_HH))
    a('s_lshl_b32 s5, %s, 6' % S_HD)
    a('s_add_u32 s6, s5, 0x10000')
    a('s_waitcnt lgkmcnt(0)')
    a('s_barrier')
    KF = 144
    ZF = 160
    for f in range(4):
        a('ds_read_b128 %s, v%d offset:%d' % (vr(KF + 4 * f, 4), T0, f * 1024))
        a('ds_read_b64 %s, v%d offset:%d' % (vr(ZF + 4 * f, 2), T1, f * 32))
        a('ds_read_b64 %s, v%d offset:%d' % (vr(ZF + 4 * f + 2, 2), T1, f * 32 + 16))
    NUM = 176
    DEN = 208
    if TWOPASS:
        NUM, DEN = AK, AV
    for f in range(4):
        a('s_waitcnt lgkmcnt(%d)' % (9 - 3 * f))
        for tm in range(2):
            b = PQ + 16 * tm + 4 * f
            a('v_mfma_f32_32x32x16_bf16 %s, %s, %s, %s' % (vr(DEN + 16 * tm, 16), vr(ZF + 4 * f, 4), vr(b, 4),
                                                           '0' if f == 0 else vr(DEN + 16 * tm, 16)))
            a('v_mfma_f32_32x32x16_bf16 %s, %s, %s, %s' % (vr(NUM + 16 * tm, 16), vr(KF + 4 * f, 4), vr(b, 4),
                                                           '0' if f == 0 else vr(NUM + 16 * tm, 16)))
    for tm in range(2):
        d = DEN + 16 * tm
        n = NUM + 16 * tm
        a('v_add_f32 v%d, 0x358637bd, v%d' % (d, d))
        a('v_rcp_f32 v%d, v%d' % (d, d))
        for k in range(0, 16, 2):
            a('v_pk_mul_f32 %s, %s, %s op_sel_hi:[1,0]' % (vr(n + k, 2), vr(n + k, 2), vr(d, 2)))
        o = d + 4
        for k in range(8):
            a('v_cvt_pk_bf16_f32 v%d, v%d, v%d' % (o + k, n + 2 * k, n + 2 * k + 1))
        for p in range(2):
            a('v_permlane32_swap_b32 v%d, v%d' % (o + 4 * p, o + 4 * p + 2))
            a('v_permlane32_swap_b32 v%d, v%d' % (o + 4 * p + 1, o + 4 * p + 3))
            a('ds_write_b128 v%d, %s offset:%d' % (V_OW + p, vr(o + 4 * p, 4), OBASE + tm * 4096))
    a('s_waitcnt lgkmcnt(0)')
    a('s_barrier')
    for i in range(4):
        a('ds_read_b128 %s, v%d offset:%d' % (vr(144 + 4 * i, 4), V_OR, OBASE + i * 1024))
    for i in range(4):
        a('s_mov_b32 s5, 0x%x' % (i * 8 * 2048))
        a('s_waitcnt lgkmcnt(%d)' % (3 - i))
        a('buffer_store_dwordx4 %s, v%d, s[60:63], s5 offen%s' % (vr(144 + 4 * i, 4), V_O,
                                                                  os.environ.get('STO', ' sc1' if FUSE else '')))
    if FUSE:
        handoff_phase2(a, 'a')
        return
    stamp(a, 6)
    wgt(a, 6)
    stamp_flush(a, 7, 0)
    wgt_flush(a, 7, 0)
    a('s_endpgm')


def cmul(a, dr, di, ar, ai, br, bi, t):
    a('v_mul_f32 v%d, v%d, v%d' % (t, ai, bi))
    a('v_mul_f32 v%d, v%d, v%d' % (t + 1, ar, bi))
    a('v_fma_f32 v%d, v%d, v%d, -v%d' % (t, ar, br, t))
    a('v_fma_f32 v%d, v%d, v%d, v%d' % (di, ai, br, t + 1))
    a('v_mov_b32 v%d, v%d' % (dr, t))


def cfma(a, hr, hi, lr, li, ur, ui, t):
    a('v_fma_f32 v%d, -v%d, v%d, v%d' % (t, li, hi, ur))
    a('v_fma_f32 v%d, v%d, v%d, v%d' % (t + 1, li, hr, ui))
    a('v_fma_f32 v%d, v%d, v%d, v%d' % (hr, lr, hr, t))
    a('v_fma_f32 v%d, v%d, v%d, v%d' % (hi, lr, hi, t + 1))


def gen_B(a, VA):
    a.comment('==== B: input projection gemm')
    VB = [12, 21, 22, 23]
    LR, LI, CR, CI, L32R, L32I, L256R, L256I = 24, 25, 26, 27, 28, 29, 30, 31
    V_P2, V_OFF, V_BIT, V_SEL, V_H, V_Q = 32, 33, 34, 35, 36, 37
    TT = 38
    V_HW = 47
    ACC = 48
    FR = 112
    NB, ST = 3, 49152
    a('s_lshl_b32 s5, %s, 6' % S_NT)
    a('s_lshl_b32 s6, %s, 5' % S_WN)
    a('s_add_u32 s5, s5, s6')
    a('v_add_u32 v%d, s5, v%d' % (V_P2, V_L31))
    a('v_lshlrev_b32 v%d, 1, v%d' % (T0, V_P2))
    a('global_load_ushort v%d, v%d, s[26:27]' % (TT, T0))
    a('global_load_ushort v%d, v%d, s[28:29]' % (TT + 1, T0))
    a('global_load_ushort v%d, v%d, s[38:39]' % (TT + 2, T0))
    VW = [176, 177, 178, 179]
    srd(a, 48, 'Bx', 4 << 20)
    srd(a, 52, 'Bre', 2 << 20)
    srd(a, 56, 'Bim', 2 << 20)
    a('s_and_b32 s4, %s, 3' % S_WAVE)
    a('s_cmp_ge_u32 s4, 2')
    a('s_cselect_b32 s52, s56, s52')
    a('s_cselect_b32 s53, s57, s53')
    a('s_lshl_b32 s5, %s, 8' % S_MT)
    a('s_lshl_b32 s6, s4, 6')
    a('s_add_u32 s6, s5, s6')
    kc_dma_voffs(a, 's6', True)
    a('s_lshl_b32 %s, s7, 7' % S_OA)
    a('s_lshl_b32 s5, %s, 6' % S_NT)
    a('s_and_b32 s6, s4, 1')
    a('s_lshl_b32 s6, s6, 5')
    a('s_add_u32 s5, s5, s6')
    a('v_lshrrev_b32 v%d, 3, v%d' % (T0, V_LANE))
    a('v_add_u32 v%d, s5, v%d' % (T0, T0))
    a('v_lshlrev_b32 v%d, 11, v%d' % (T0, T0))
    for j in range(4):
        a('v_xor_b32 v%d, %d, v%d' % (T2, (j & 1) * 4, T1))
        a('v_lshl_add_u32 v%d, v%d, 4, v%d' % (VW[j], T2, T0))
        if j:
            a('v_add_u32 v%d, 0x%x, v%d' % (VW[j], 8 * j * 2048 - j * 1024, VW[j]))
    a('s_lshl_b32 %s, s4, 12' % S_MB)
    a('s_add_u32 %s, %s, %d' % (S_MB, S_MB, BBASE))
    set_stream(a, S_O2, S_ADV2, S_END2, 128, 16, 0)
    a('s_lshl_b32 %s, %s, 12' % (S_TMP, S_WN))
    kc_read_addrs(a, VB, V_L31, V_HH, S_TMP, BBASE, T0, T1)

    def mid(nvm):
        a('s_waitcnt vmcnt(%d)' % nvm)
        lre, lim, dt = TT, TT + 1, TT + 2
        a('v_lshlrev_b32 v%d, 16, v%d' % (lre, lre))
        a('v_lshlrev_b32 v%d, 16, v%d' % (lim, lim))
        a('v_lshlrev_b32 v%d, 16, v%d' % (dt, dt))
        a('v_mul_f32 v%d, %s, v%d' % (dt, S_L2E, dt))
        a('v_exp_f32 v%d, v%d' % (dt, dt))
        a('v_cvt_pk_bf16_f32 v%d, v%d, v%d' % (dt, dt, dt))
        a('v_lshlrev_b32 v%d, 16, v%d' % (dt, dt))
        a('v_mul_f32 v%d, v%d, v%d' % (TT + 3, dt, lre))
        a('v_mul_f32 v%d, v%d, v%d' % (TT + 4, dt, lim))
        a('v_mul_f32 v%d, %s, v%d' % (TT + 3, S_L2E, TT + 3))
        a('v_exp_f32 v%d, v%d' % (TT + 3, TT + 3))
        a('v_mul_f32 v%d, 0.15915494, v%d' % (TT + 4, TT + 4))
        a('v_rndne_f32 v%d, v%d' % (TT + 5, TT + 4))
        a('v_sub_f32 v%d, v%d, v%d' % (TT + 4, TT + 4, TT + 5))
        a('v_cos_f32 v%d, v%d' % (LR, TT + 4))
        a('v_sin_f32 v%d, v%d' % (LI, TT + 4))
        a('v_mul_f32 v%d, v%d, v%d' % (LR, LR, TT + 3))
        a('v_mul_f32 v%d, v%d, v%d' % (LI, LI, TT + 3))
        a('v_add_f32 v%d, -1.0, v%d' % (TT + 5, LR))
        a('v_mul_f32 v%d, v%d, v%d' % (TT + 6, lre, lre))
        a('v_fma_f32 v%d, v%d, v%d, v%d' % (TT + 6, lim, lim, TT + 6))
        a('v_rcp_f32 v%d, v%d' % (TT + 6, TT + 6))
        a('v_mul_f32 v%d, v%d, v%d' % (CR, TT + 5, lre))
        a('v_fma_f32 v%d, v%d, v%d, v%d' % (CR, LI, lim, CR))
        a('v_mul_f32 v%d, v%d, v%d' % (CI, TT + 5, lim))
        a('v_fma_f32 v%d, v%d, v%d, -v%d' % (CI, LI, lre, CI))
        a('v_add_f32 v%d, v%d, v%d' % (TT + 6, TT + 6, TT + 6))
        a('v_mul_f32 v%d, v%d, v%d' % (CR, CR, TT + 6))
        a('v_mul_f32 v%d, v%d, v%d' % (CI, CI, TT + 6))
        a('v_mov_b32 v%d, v%d' % (L32R, LR))
        a('v_mov_b32 v%d, v%d' % (L32I, LI))
        for _ in range(5):
            cmul(a, L32R, L32I, L32R, L32I, L32R, L32I, TT + 7)
        a('v_mov_b32 v%d, v%d' % (L256R, L32R))
        a('v_mov_b32 v%d, v%d' % (L256I, L32I))
        for _ in range(3):
            cmul(a, L256R, L256I, L256R, L256I, L256R, L256I, TT + 7)
        a('s_lshl_b32 s5, %s, 2' % S_NT)
        a('s_add_u32 s5, s5, 64')
        a('v_mov_b32 v%d, s5' % V_OFF)
        a('s_lshl_b32 s5, 1, %s' % S_MT)
        a('v_mov_b32 v%d, s5' % V_BIT)
        a('v_and_b32 v%d, 1, v%d' % (T0, V_LANE))
        a('v_mov_b32 v%d, 0x05040100' % V_SEL)
        a('v_mov_b32 v%d, 0x03020706' % T1)
        a('v_cmp_eq_u32 vcc, 1, v%d' % T0)
        a('v_cndmask_b32 v%d, v%d, v%d, vcc' % (V_SEL, V_SEL, T1))
        a('s_lshl_b32 s5, %s, 14' % S_WM)
        a('s_lshl_b32 s6, %s, 6' % S_WN)
        a('s_add_u32 s5, s5, s6')
        a('v_lshl_add_u32 v%d, v%d, 13, s5' % (V_HW, V_HH))
        a('v_lshl_add_u32 v%d, v%d, 7, v%d' % (V_HW, T0, V_HW))
        a('v_and_b32 v%d, 30, v%d' % (T1, V_L31))
        a('v_lshl_add_u32 v%d, v%d, 1, v%d' % (V_HW, T1, V_HW))
        a('s_lshl_b32 s5, %s, 8' % S_MT)
        a('s_lshl_b32 s6, %s, 5' % S_WAVE)
        a('s_add_u32 s5, s5, s6')
        a('v_lshrrev_b32 v%d, 4, v%d' % (T1, V_LANE))
        a('v_add_u32 v%d, s5, v%d' % (T1, T1))
        a('v_lshlrev_b32 v%d, 12, v%d' % (V_H, T1))
        a('v_bfe_u32 v%d, v%d, 3, 1' % (T1, V_LANE))
        a('v_lshl_add_u32 v%d, v%d, 11, v%d' % (V_H, T1, V_H))
        a('v_and_b32 v%d, 7, v%d' % (T1, V_LANE))
        a('v_lshl_add_u32 v%d, v%d, 4, v%d' % (V_H, T1, V_H))
        a('s_lshl_b32 s5, %s, 7' % S_NT)
        a('v_add_u32 v%d, s5, v%d' % (V_H, V_H))
        a('s_lshl_b32 s5, %s, 1' % S_WM)
        a('v_add_u32 v%d, s5, v%d' % (V_Q, V_HH))

    def acc(tm, tn):
        return vr(ACC + 32 * tm + 16 * tn, 16)

    stamp(a, 1)
    wgt(a, 1)
    ringA = Ring(32768, 3, ['s67', 's68', 's79'], S_TMP)
    ringB = Ring(16384, 3, ['s12', 's13', 's14'], S_TMP)
    sbg = [(S_MB, [(VW[j], 's[52:55]', S_O2, j * 1024) for j in range(4)])]
    PFS = int(os.environ.get('PFS', '0'))
    exn = None
    if PFS:
        from asmlib import Asm
        exn = {}
        for n, (ptr, nbytes) in enumerate([('Cre', 2 << 20), ('Cim', 2 << 20), ('wo', 2 << 20)]):
            t = Asm()
            t('s_lshl_b32 s5, %s, 4' % S_MT)
            t('s_add_u32 s5, s5, %s' % S_NT)
            t('s_lshl_b32 s5, s5, 2')
            t('s_add_u32 s5, s5, %s' % S_WAVE)
            t('s_sub_u32 s5, s5, 4')
            srd(t, 96, ptr, nbytes)
            t('s_mul_i32 s6, s5, 4096')
            t('v_min_u32 v%d, 31, v%d' % (T0, V_LANE))
            t('v_lshlrev_b32 v%d, 7, v%d' % (T0, T0))
            t('buffer_load_dword v255, v%d, s[96:99], s6 offen' % T0)
            exn[PFS + 2 * n] = {1: [list(t.lines)]}
    run_roles(a, 'k1b', ringA, ringB, sbg, extra_none=exn, TM=2, TN=2, PD=PDB, NS=2 * PDB, FR=FR, vA=VA, offA=[0, 4096],
              bmode='kc', vB=VB, offB=[0, 8192], acc=acc, swap=lambda tm, tn: False,
              s_cnt=S_CNT, mid=mid)
    stamp(a, 2)
    wgt(a, 2)
    if FUSE and not os.environ.get('NO_PF3') and not PFS:
        prefetch_tail(a, [('Cre', 2 << 20), ('Cim', 2 << 20), ('wo', 2 << 20)], 255, T0)

    def ure(i):
        return ACC + 32 * (i >> 4) + (i & 15)

    def uim(i):
        return ure(i) + 16

    ER, EI = 112, 113
    t = 114
    BU = 144
    CP1, CP2, LP1, LP2 = 208, 210, 212, 214

    def pk_step(h, i, tt):
        a('v_pk_fma_f32 %s, %s, %s, %s op_sel:[1,0,0] op_sel_hi:[0,1,1]' % (vr(tt, 2), vr(h, 2), vr(LP2, 2), vr(BU + 2 * i, 2)))
        a('v_pk_fma_f32 %s, %s, %s, %s' % (vr(h, 2), vr(h, 2), vr(LP1, 2), vr(tt, 2)))

    if PKB:
        a('v_mov_b32 v%d, v%d' % (CP1, CR))
        a('v_mov_b32 v%d, v%d' % (CP1 + 1, CI))
        a('v_xor_b32 v%d, 0x80000000, v%d' % (CP2, CI))
        a('v_mov_b32 v%d, v%d' % (CP2 + 1, CR))
        a('v_mov_b32 v%d, v%d' % (LP1, LR))
        a('v_mov_b32 v%d, v%d' % (LP1 + 1, LR))
        a('v_xor_b32 v%d, 0x80000000, v%d' % (LP2, LI))
        a('v_mov_b32 v%d, v%d' % (LP2 + 1, LI))
        for i in range(32):
            h = i & 1
            r, m = ure(i & ~1), uim(i & ~1)
            tt = t + 2 * (i & 1)
            a('v_pk_mul_f32 %s, %s, %s op_sel:[%d,0] op_sel_hi:[%d,1]' % (vr(tt, 2), vr(r, 2), vr(CP1, 2), h, h))
            a('v_pk_fma_f32 %s, %s, %s, %s op_sel:[%d,0,0] op_sel_hi:[%d,1,1]' %
              (vr(BU + 2 * i, 2), vr(m, 2), vr(CP2, 2), vr(tt, 2), h, h))
            if i == 1:
                a('v_mov_b32 v%d, v%d' % (ER, BU))
                a('v_mov_b32 v%d, v%d' % (EI, BU + 1))
            if i >= 1:
                pk_step(ER, i, t + 4)
    else:
      for i in range(32):
        r, m = ure(i), uim(i)
        a('v_mul_f32 v%d, v%d, v%d' % (t, CI, m))
        a('v_mul_f32 v%d, v%d, v%d' % (t + 1, CI, r))
        a('v_fma_f32 v%d, v%d, v%d, -v%d' % (r, CR, r, t))
        a('v_fma_f32 v%d, v%d, v%d, v%d' % (m, CR, m, t + 1))
        if i == 0:
            a('v_mov_b32 v%d, v%d' % (ER, r))
            a('v_mov_b32 v%d, v%d' % (EI, m))
        else:
            cfma(a, ER, EI, LR, LI, r, m, t + 2)
    a('s_barrier')
    a('s_lshl_b32 s5, %s, 8' % S_WN)
    a('v_lshl_add_u32 v%d, v%d, 3, s5' % (T0, V_L31))
    a('v_lshl_add_u32 v%d, v%d, 9, v%d' % (T1, V_Q, T0))
    a('ds_write_b64 v%d, %s' % (T1, vr(ER, 2)))
    a('s_waitcnt lgkmcnt(0)')
    a('s_barrier')
    E = 120
    for q in range(8):
        a('ds_read_b64 %s, v%d offset:%d' % (vr(E + 2 * q, 2), T0, q * 512))
    PR, PI, WR, WI, SPR, SPI, SWR, SWI = 136, 137, 138, 139, 140, 141, 142, 143
    a('v_mov_b32 v%d, 0' % PR)
    a('v_mov_b32 v%d, 0' % PI)
    a('v_mov_b32 v%d, 1.0' % WR)
    a('v_mov_b32 v%d, 0' % WI)
    a('v_mov_b32 v%d, 0' % SPR)
    a('v_mov_b32 v%d, 0' % SPI)
    a('v_mov_b32 v%d, 1.0' % SWR)
    a('v_mov_b32 v%d, 0' % SWI)
    a('s_waitcnt lgkmcnt(0)')
    for q in range(8):
        cfma(a, PR, PI, L32R, L32I, E + 2 * q, E + 2 * q + 1, t)
        if q < 7:
            cmul(a, WR, WI, WR, WI, L32R, L32I, t + 2)
            a('v_cmp_eq_u32 vcc, %d, v%d' % (q + 1, V_Q))
            a('v_cndmask_b32 v%d, v%d, v%d, vcc' % (SPR, SPR, PR))
            a('v_cndmask_b32 v%d, v%d, v%d, vcc' % (SPI, SPI, PI))
            a('v_cndmask_b32 v%d, v%d, v%d, vcc' % (SWR, SWR, WR))
            a('v_cndmask_b32 v%d, v%d, v%d, vcc' % (SWI, SWI, WI))
    srd(a, 60, 'ws', 65536, WS_AGG)
    a('v_lshlrev_b32 v%d, 3, v%d' % (T2, V_P2))
    a('s_lshl_b32 s5, %s, 13' % S_MT)
    a('s_cmp_lg_u32 %s, 0' % S_WM)
    a('s_cbranch_scc1 k1b_nopub')
    a('buffer_store_dwordx2 %s, v%d, s[60:63], s5 offen sc1' % (vr(PR, 2), T2))
    a('s_waitcnt vmcnt(0)')
    a.label('k1b_nopub')
    a('s_barrier')
    a('s_cmp_lg_u32 %s, 0' % S_WAVE)
    a('s_cbranch_scc1 k1b_nosig')
    a('s_mov_b64 exec, 1')
    a('global_atomic_or v%d, v%d, s[44:45] sc1' % (V_OFF, V_BIT))
    a('s_mov_b64 exec, -1')
    a.label('k1b_nosig')
    stamp(a, 3)
    if (not FUSE) or WGTA:
        wgt(a, 3)
    a('s_lshl_b32 s7, 1, %s' % S_MT)
    a('s_sub_u32 s7, s7, 1')
    stamp(a, 4)
    if (not FUSE) or WGTA:
        wgt(a, 4)
    poll(a, 'k1b_poll', V_OFF, T0, 's7', 'and')
    stamp(a, 5)
    if (not FUSE) or WGTA:
        wgt(a, 5)
    for m in range(7):
        a('buffer_load_dwordx2 %s, v%d, s[60:63], %s offen sc1' % (vr(E + 2 * m, 2), T2, '0' if m == 0 else 's6'))
        a('s_mov_b32 s6, 0x%x' % ((m + 1) * 8192))
    HR, HI = 112, 113
    a('v_mov_b32 v%d, 0' % HR)
    a('v_mov_b32 v%d, 0' % HI)
    a('s_waitcnt vmcnt(0)')
    for m in range(7):
        a('s_cmp_le_u32 %s, %d' % (S_MT, m))
        a('s_cbranch_scc1 k1b_hdone')
        cfma(a, HR, HI, L256R, L256I, E + 2 * m, E + 2 * m + 1, t)
    a.label('k1b_hdone')
    cfma(a, HR, HI, SWR, SWI, SPR, SPI, t)
    srd(a, 60, 'ws', 8 << 20, WS_H)
    for i in range(32):
        r, m = ure(i), uim(i)
        if PKB:
            pk_step(HR, i, t)
        else:
            cfma(a, HR, HI, LR, LI, r, m, t)
        w = 120 + (i & 3) * 3
        a('v_cvt_pk_bf16_f32 v%d, v%d, -v%d' % (w, HR, HI))
        a('v_mov_b32_dpp v%d, v%d quad_perm:[1,0,3,2] row_mask:0xf bank_mask:0xf' % (w + 1, w))
        a('v_perm_b32 v%d, v%d, v%d, v%d' % (w + 2, w + 1, w, V_SEL))
        a('ds_write_b32 v%d, v%d offset:%d' % (V_HW, w + 2, i * 256))
    a('s_waitcnt lgkmcnt(0)')
    a('s_barrier')
    a('s_lshl_b32 s5, %s, 13' % S_WAVE)
    a('v_lshl_add_u32 v%d, v%d, 4, s5' % (T0, V_LANE))
    for i in range(8):
        a('ds_read_b128 %s, v%d offset:%d' % (vr(144 + 4 * i, 4), T0, i * 1024))
    for i in range(8):
        a('s_mov_b32 s5, 0x%x' % (i * 4 * 4096))
        a('s_waitcnt lgkmcnt(%d)' % (7 - i))
        a('buffer_store_dwordx4 %s, v%d, s[60:63], s5 offen%s' % (vr(144 + 4 * i, 4), V_H,
                                                                  os.environ.get('STH', ' sc1' if FUSE else '')))
    if FUSE:
        handoff_phase2(a, 'b')
        return
    if not os.environ.get('NO_PF3'):
        prefetch_tail(a, [('Cre', 2 << 20), ('Cim', 2 << 20), ('wo', 2 << 20)], 255, T0)
    stamp(a, 6)
    wgt(a, 6)
    stamp_flush(a, 7, 128, 44)
    wgt_flush(a, 7, 0)
    a('s_endpgm')
```

```python
from asmlib import interleave
import os
NO_DMA = os.environ.get('NO_DMA'); NO_MFMA = os.environ.get('NO_MFMA'); NO_READS = os.environ.get('NO_READS')


class Ring:
    def __init__(self, ST, NB, sregs, s_tmp):
        self.ST, self.NB, self.d, self.s_tmp = ST, NB, sregs, s_tmp
        assert len(sregs) >= NB

    def init(self):
        out = []
        for i in range(self.NB):
            v = self.ST if i < self.NB - 1 else -(self.NB - 1) * self.ST
            out.append('s_mov_b32 %s, 0x%x' % (self.d[i], v & 0xffffffff))
        return out

    def rotate(self):
        if self.NB == 2:
            return ['s_sub_u32 %s, 0, %s' % (self.d[0], self.d[0]), 's_sub_u32 %s, 0, %s' % (self.d[1], self.d[1])]
        out = ['s_mov_b32 %s, %s' % (self.s_tmp, self.d[0])]
        for i in range(self.NB - 1):
            out.append('s_mov_b32 %s, %s' % (self.d[i], self.d[i + 1]))
        out.append('s_mov_b32 %s, %s' % (self.d[self.NB - 1], self.s_tmp))
        return out


class Stream:
    def __init__(self, ring, groups, adv, mod=''):
        self.ring, self.groups, self.adv, self.mod = ring, groups, adv, mod
        self.n = sum(len(g[1]) for g in groups)

    def batch(self, delta):
        out = []
        for (sm0, lst) in self.groups:
            for i, (vo, srd, so, io) in enumerate(lst):
                ins = 'buffer_load_dwordx4 v%d, %s, %s offen offset:%d%s lds' % (vo, srd, so, io, self.mod)
                if NO_DMA:
                    ins = 's_nop 0'
                if i == 0:
                    out.append(['s_mov_b32 m0, %s' % sm0, 's_add_u32 %s, %s, %s' % (sm0, sm0, delta), ins])
                else:
                    out.append([ins])
        for x in self.adv:
            out[-1].extend(x if isinstance(x, (list, tuple)) else [x])
        return out


class Gemm:
    def __init__(self, a, **cfg):
        self.a = a
        self.mid = None
        self.streams = []
        self.pro_first = None
        self.pro_between = None
        self.post_bar = None
        self.n_extra_post = 0
        self.s16 = False
        self.__dict__.update(cfg)
        self.NSUB = 2 if self.s16 else 4
        self.SETSZ = 4 * (self.TM + self.TN)
        self.R = self.TM + (self.TN if self.bmode == 'kc' else 2 * self.TN)
        self.nloop = 0
        self.rings = [self.ringA] + ([self.ringB] if self.ringB is not self.ringA else [])
        self.NP = min(self.NSUB, int(os.environ.get('NP' + self.pfx[:2], cfg.get('NP', 4))))

    def fragA(self, st, tm):
        return self.FR + st * self.SETSZ + 4 * tm

    def fragB(self, st, tn):
        return self.FR + st * self.SETSZ + 4 * self.TM + 4 * tn

    def reads(self, j, st):
        ra = []
        for tm in range(self.TM):
            b = self.fragA(st, tm)
            ra.append('ds_read_b128 v[%d:%d], v%d offset:%d' % (b, b + 3, self.vA[j], self.offA[tm]))
        rb = []
        for tn in range(self.TN):
            b = self.fragB(st, tn)
            if self.bmode == 'kc':
                rb.append('ds_read_b128 v[%d:%d], v%d offset:%d' % (b, b + 3, self.vB[j], self.offB[tn]))
            else:
                ri, off = self.offB[tn]
                for u in range(2):
                    rb.append('ds_read_b64_tr_b16 v[%d:%d], v%d offset:%d' %
                              (b + 2 * u, b + 2 * u + 1, self.vB[ri], off + j * (4096 if self.s16 else 2048) + u * 512))
        out = [ra[0]] + rb + ra[1:]
        if NO_READS:
            return ['s_nop 0'] * len(out)
        return out

    def mfmas(self, st, zero=False):
        out = []
        for tm in range(self.TM):
            for tn in range(self.TN):
                fa = self.fragA(st, tm); fb = self.fragB(st, tn)
                A = 'v[%d:%d]' % (fa, fa + 3); B = 'v[%d:%d]' % (fb, fb + 3)
                if self.swap(tm, tn):
                    A, B = B, A
                acc = self.acc(tm, tn)
                if NO_MFMA and not zero:
                    out.append('s_nop 0')
                else:
                    out.append('%s %s, %s, %s, %s' % ('v_mfma_f32_16x16x32_bf16' if self.s16 else 'v_mfma_f32_32x32x16_bf16',
                                                      acc, A, B, '0' if zero else acc))
        return out

    def emit(self, lst):
        for f in lst:
            if isinstance(f, (list, tuple)):
                for x in f:
                    self.a(x)
            else:
                self.a(f)

    def active(self, sig):
        return [i for i, s in enumerate(self.streams) if sig + s.ring.NB < self.KS]

    def parts(self, act):
        if not act:
            return []
        items = []
        for i in act:
            n = self.streams[i].n
            items += [(i, k) for k in range(n)]
        NP = self.NP
        n = len(items)
        cuts = [(p * n) // NP for p in range(NP + 1)]
        if not os.environ.get('NO_URGENT'):
            urgent = sum(1 for (i, k) in items if self.streams[i].ring.NB == 2)
            if urgent > cuts[1]:
                rest = n - urgent
                cuts = [0] + [urgent + ((p - 1) * rest) // (NP - 1) for p in range(1, NP)] + [n]
        out = []
        for p in range(NP):
            late = p >= self.PD
            lst = []
            for (i, k) in items[cuts[p]:cuts[p + 1]]:
                st = self.streams[i]
                d = st.ring.d[st.ring.NB - 1] if late else st.ring.d[0]
                lst.append(st.batch(d)[k])
            out.append(lst)
        return out

    def simulate(self):
        order = []
        maxnb = max([s.ring.NB for s in self.streams] + [0])
        self.pro = []
        if self.pro_first is not None:
            for st in range(self.streams[self.pro_first].ring.NB):
                self.pro.append((self.pro_first, st))
            self.pro.append(None)
        for st in range(maxnb):
            for i, s in enumerate(self.streams):
                if st < s.ring.NB and i != self.pro_first:
                    self.pro.append((i, st))
        for p in self.pro:
            if p is not None:
                order += [p] * self.streams[p[0]].n
        self.npro = len(order)
        order += [(-1, 1 << 30)] * getattr(self, 'n_extra_vm', 0)

        def allowed(stage, upto):
            last = -1
            for idx in range(upto):
                if order[idx][1] <= stage:
                    last = idx
            return upto - 1 - last
        self.vm_first = allowed(0, len(order))
        vm = []
        for sig in range(self.KS - 1):
            vm.append(allowed(sig + 1, len(order)))
            for i in self.active(sig):
                order += [(i, sig + self.streams[i].ring.NB)] * self.streams[i].n
        return vm

    def prologue(self):
        a = self.a
        for p in self.pro:
            if p is None:
                self.pro_between()
                continue
            s, st = self.streams[p[0]], p[1]
            d = s.ring.ST if st < s.ring.NB - 1 else -(s.ring.NB - 1) * s.ring.ST
            self.emit(s.batch('0x%x' % (d & 0xffffffff)))
        for r in self.rings:
            self.emit(r.init())
        if self.mid:
            self.mid(self.npro)
        if self.streams:
            a('s_waitcnt vmcnt(%d)' % self.vm_first)
        a('s_barrier')
        if self.post_bar:
            self.post_bar()
        for j in range(self.PD):
            self.emit(self.reads(j, j % self.NS))
            a('v_add_u32 v%d, %s, v%d' % (self.vA[j], self.ringA.d[0], self.vA[j]))
            if self.bmode == 'kc':
                a('v_add_u32 v%d, %s, v%d' % (self.vB[j], self.ringB.d[0], self.vB[j]))

    def stage(self, act, pend, last, vm, first=False, extra=None, pre_dma=None):
        a = self.a
        PD, NS = self.PD, self.NS
        NS4 = self.NSUB
        pnew = self.parts(act)
        pold = self.parts(pend)
        for s in range(NS4):
            if s == NS4 - PD and not last:
                if self.streams:
                    a('s_waitcnt vmcnt(%d) lgkmcnt(0)' % vm)
                else:
                    a('s_waitcnt lgkmcnt(0)')
                a('s_barrier')
            else:
                ahead = PD - 1
                if last:
                    ahead = min(ahead, NS4 - 1 - s)
                a('s_waitcnt lgkmcnt(%d)' % (ahead * self.R))
            fill = []
            dpart = []
            if s >= NS4 - PD:
                k = s - (NS4 - PD)
                if k < len(pnew):
                    dpart = pnew[k]
            else:
                k = s + PD
                if k < len(pold):
                    dpart = pold[k]
            j = s + PD
            if j < NS4 or not last:
                jj = j % NS4
                fill += self.reads(jj, j % NS)
                di = 0 if j < NS4 else 1
                fill.append('v_add_u32 v%d, %s, v%d' % (self.vA[jj], self.ringA.d[di], self.vA[jj]))
                if self.bmode == 'kc':
                    fill.append('v_add_u32 v%d, %s, v%d' % (self.vB[jj], self.ringB.d[di], self.vB[jj]))
                elif j == NS4 - 1:
                    for r in self.vB:
                        fill.append('v_add_u32 v%d, %s, v%d' % (r, self.ringB.d[0], r))
            if pre_dma and s == NS4 - PD:
                fill.append(list(pre_dma))
            if os.environ.get('DMAFIRST') and s == NS4 - PD:
                fill = dpart + fill
            else:
                fill += dpart
            if extra and s in extra:
                fill += extra[s]
            if s == NS4 - 1 and not last:
                for r in self.rings:
                    fill += r.rotate()
            for l in interleave(self.mfmas(s % NS, zero=(first and s == 0)), fill):
                a(l)

    def run(self, KS, switch=None, tail_extra=None):
        a = self.a
        self.KS = KS
        vm = self.simulate()
        self.prologue()
        allst = list(range(len(self.streams)))
        desc = []
        for sig in range(KS):
            act = self.active(sig) if sig < KS - 1 else []
            pend = self.active(sig - 1) if sig > 0 else []
            special = (sig == 0) or (sig == KS - 1) or (switch and switch[0] == sig) or \
                      (tail_extra and sig in tail_extra)
            desc.append((tuple(act), tuple(pend), bool(special), vm[sig] if (sig < KS - 1 and sig >= 3) else -1))
        sig = 0
        while sig < KS:
            act, pend, special = desc[sig][:3]
            n = 1
            if not special:
                while sig + n < KS and desc[sig + n][:3] == desc[sig][:3] and \
                        (desc[sig + n][3] == desc[sig + n - 1][3] or desc[sig + n - 1][3] == -1):
                    n += 1
            if n >= 2:
                lab = '%s_L%d' % (self.pfx, self.nloop); self.nloop += 1
                a('s_mov_b32 %s, %d' % (self.s_cnt, n))
                if os.environ.get('ALIGN'):
                    a.lines.append('.p2alignl %s, 0xbf800000' % os.environ['ALIGN'])
                    if os.environ.get('ALIGN4'):
                        a('s_nop 0')
                a.label(lab)
                self.stage(act, pend, False, min(vm[sig:sig + n]))
                a('s_sub_u32 %s, %s, 1' % (self.s_cnt, self.s_cnt))
                a('s_cmp_lg_u32 %s, 0' % self.s_cnt)
                a('s_cbranch_scc1 %s' % lab)
            else:
                last = sig == KS - 1
                self.stage(act, pend, last, None if last else vm[sig], first=(sig == 0),
                           extra=(tail_extra.get(sig) if tail_extra else None),
                           pre_dma=(switch[1] if switch and switch[0] == sig else None))
            sig += n
```

```python
import os
from gemm import Gemm, Ring, Stream
from gen import srd, kernel_head, lane_consts, kc_read_addrs, kn_read_addr, stamp, stamp_flush, wgt, wgt_flush
from gen import WS_O, WS_H, WS_KVP, WS_ZP, WS_AGG
from gen import kc_read_addrs16, kn_read_addr16
S16 = not (os.environ.get('NO_S16') or os.environ.get('NO_S16K1'))

LDS_BYTES = 147456
LOG2E = 0x3fb8aa3b

V_LANE, V_L31, V_HH, T0, T1, T2, T3 = 1, 2, 3, 4, 5, 6, 7
S_WAVE, S_CNT, S_WROFF, S_D0, S_D1, S_TMP, S_ST = 's64', 's65', 's66', 's67', 's68', 's69', 's79'
S_OA, S_MA, S_MT, S_NT, S_WM, S_WN, S_T2 = 's70', 's72', 's74', 's75', 's76', 's77', 's78'
S_L2E, S_HD = 's8', 's10'
SPIN_MAX = 1 << 21
FUSE = not os.environ.get('NO_FUSE')
TWOPASS = bool(os.environ.get('TWOPASS'))
PKB = not os.environ.get('NO_PKB')
XMAP = bool(os.environ.get('XMAP'))
WGTA = bool(os.environ.get('WGTA'))
PDA = int(os.environ.get('PDA', '1')); PDB = int(os.environ.get('PDB', '1'))
ROT = not os.environ.get('NO_ROT')
PFD = int(os.environ.get('PFD', '4'))
EARLYPOLL = bool(os.environ.get('EARLYPOLL'))
S_MA2 = 's73'
S_O2, S_ADV2, S_END2 = 's71', 's11', 's15'
VD = [13, 14, 15, 16, 17, 18, 19, 20]
V_PFD = 47


def vr(b, n):
    return 'v[%d:%d]' % (b, b + n - 1)


def wrap_adv(so, adv, end):
    return ['s_add_u32 %s, %s, %s' % (so, so, adv),
            ['s_cmp_eq_u32 %s, %s' % (so, end), 's_cselect_b32 %s, 0, %s' % (so, so)]]


def set_stream(a, so, adv, end, step, nsteps, lead):
    a('s_add_u32 s5, s7, %d' % lead)
    a('s_and_b32 s5, s5, %d' % (nsteps - 1))
    a('s_mul_i32 %s, s5, 0x%x' % (so, step))
    a('s_mov_b32 %s, 0x%x' % (adv, step))
    a('s_mov_b32 %s, 0x%x' % (end, step * nsteps))


def kc_dma_voffs(a, s_row0, permute):
    if not permute or S16:
        a('v_lshrrev_b32 v%d, 3, v%d' % (T0, V_LANE))
    else:
        a('v_bfe_u32 v%d, v%d, 3, 2' % (T0, V_LANE))
        a('v_lshl_add_u32 v%d, v%d, 5, v%d' % (T0, V_HH, T0))
    a('v_add_u32 v%d, %s, v%d' % (T0, s_row0, T0))
    a('v_lshlrev_b32 v%d, 11, v%d' % (T0, T0))
    a('v_lshrrev_b32 v%d, 4, v%d' % (T1, V_LANE))
    a('v_and_b32 v%d, 7, v%d' % (T2, V_LANE))
    a('v_xor_b32 v%d, v%d, v%d' % (T1, T1, T2))
    for j in range(8):
        a('v_xor_b32 v%d, %d, v%d' % (T2, (j & 1) * 4, T1))
        a('v_lshl_add_u32 v%d, v%d, 4, v%d' % (VD[j], T2, T0))
        rows = (8 * j) if not permute else (16 * (j >> 2) + 4 * (j & 3))
        if permute and S16:
            rows = 32 * (j & 1) + 8 * (j >> 1)
        c = rows * 2048 - (j & 3) * 1024
        if c:
            a('v_add_u32 v%d, 0x%x, v%d' % (VD[j], c, VD[j]))


def poll(a, tag, v_off, v_tmp, s_mask_or_count, mode):
    a('s_cmp_lg_u32 %s, 0' % S_WAVE)
    a('s_cbranch_scc1 %s_done' % tag)
    a('s_mov_b32 s5, 0')
    a.label('%s_loop' % tag)
    a('global_load_dword v%d, v%d, s[44:45] sc1' % (v_tmp, v_off))
    a('s_waitcnt vmcnt(0)')
    a('v_readfirstlane_b32 s6, v%d' % v_tmp)
    a('s_nop 3')
    if mode == 'ge':
        a('s_cmp_ge_u32 s6, %s' % s_mask_or_count)
    else:
        a('s_and_b32 s6, s6, %s' % s_mask_or_count)
        a('s_cmp_eq_u32 s6, %s' % s_mask_or_count)
    a('s_cbranch_scc1 %s_ok' % tag)
    a('s_sleep %s' % os.environ.get('SLEEP', '1'))
    a('s_add_u32 s5, s5, 1')
    a('s_cmp_lt_u32 s5, %d' % SPIN_MAX)
    a('s_cbranch_scc1 %s_loop' % tag)
    a.label('%s_ok' % tag)
    if os.environ.get('INV'):
        a('buffer_inv sc1')
        a('s_waitcnt vmcnt(0)')
    a.label('%s_done' % tag)
    a('s_barrier')


def softmax_pm(a, PP, EP, EN, OUTP, OUTN, t):
    mx, mn, t1, t2 = t, t + 2, t + 4, t + 6
    a('v_max3_f32 v%d, v%d, v%d, v%d' % (mx, PP, PP + 1, PP + 2))
    a('v_min3_f32 v%d, v%d, v%d, v%d' % (mn, PP, PP + 1, PP + 2))
    for i in range(3, 15, 2):
        a('v_max3_f32 v%d, v%d, v%d, v%d' % (mx, mx, PP + i, PP + i + 1))
        a('v_min3_f32 v%d, v%d, v%d, v%d' % (mn, mn, PP + i, PP + i + 1))
    a('v_max_f32 v%d, v%d, v%d' % (mx, mx, PP + 15))
    a('v_min_f32 v%d, v%d, v%d' % (mn, mn, PP + 15))
    a('v_mov_b32 v%d, v%d' % (t1, mx))
    a('v_mov_b32 v%d, v%d' % (t2, mn))
    a('v_permlane32_swap_b32 v%d, v%d' % (mx, t1))
    a('v_permlane32_swap_b32 v%d, v%d' % (mn, t2))
    a('v_max_f32 v%d, v%d, v%d' % (mx, mx, t1))
    a('v_min_f32 v%d, v%d, v%d' % (mn, mn, t2))
    a('v_mul_f32 v%d, %s, v%d' % (mx, S_L2E, mx))
    a('v_mul_f32 v%d, %s, v%d' % (mn, S_L2E, mn))
    for i in range(0, 16, 2):
        a('v_pk_fma_f32 %s, %s, s[8:9], %s op_sel_hi:[1,1,0] neg_lo:[0,0,1] neg_hi:[0,0,1]' %
          (vr(EP + i, 2), vr(PP + i, 2), vr(mx, 2)))
        a('v_pk_fma_f32 %s, %s, s[8:9], %s op_sel_hi:[1,1,0] neg_lo:[1,0,0] neg_hi:[1,0,0]' %
          (vr(EN + i, 2), vr(PP + i, 2), vr(mn, 2)))
    for i in range(16):
        a('v_exp_f32 v%d, v%d' % (EP + i, EP + i))
        a('v_exp_f32 v%d, v%d' % (EN + i, EN + i))
    a('v_pk_add_f32 %s, %s, %s' % (vr(mx, 2), vr(EP, 2), vr(EP + 2, 2)))
    a('v_pk_add_f32 %s, %s, %s' % (vr(mn, 2), vr(EN, 2), vr(EN + 2, 2)))
    a('v_pk_add_f32 %s, %s, %s' % (vr(t1, 2), vr(EP + 4, 2), vr(EP + 6, 2)))
    a('v_pk_add_f32 %s, %s, %s' % (vr(t2, 2), vr(EN + 4, 2), vr(EN + 6, 2)))
    for i in (8, 12):
        a('v_pk_add_f32 %s, %s, %s' % (vr(mx, 2), vr(mx, 2), vr(EP + i, 2)))
        a('v_pk_add_f32 %s, %s, %s' % (vr(mn, 2), vr(mn, 2), vr(EN + i, 2)))
        a('v_pk_add_f32 %s, %s, %s' % (vr(t1, 2), vr(t1, 2), vr(EP + i + 2, 2)))
        a('v_pk_add_f32 %s, %s, %s' % (vr(t2, 2), vr(t2, 2), vr(EN + i + 2, 2)))
    a('v_pk_add_f32 %s, %s, %s' % (vr(mx, 2), vr(mx, 2), vr(t1, 2)))
    a('v_pk_add_f32 %s, %s, %s' % (vr(mn, 2), vr(mn, 2), vr(t2, 2)))
    a('v_add_f32 v%d, v%d, v%d' % (mx, mx, mx + 1))
    a('v_add_f32 v%d, v%d, v%d' % (mn, mn, mn + 1))
    a('v_mov_b32 v%d, v%d' % (t1, mx))
    a('v_mov_b32 v%d, v%d' % (t2, mn))
    a('v_permlane32_swap_b32 v%d, v%d' % (mx, t1))
    a('v_permlane32_swap_b32 v%d, v%d' % (mn, t2))
    a('v_add_f32 v%d, v%d, v%d' % (mx, mx, t1))
    a('v_add_f32 v%d, v%d, v%d' % (mn, mn, t2))
    a('v_rcp_f32 v%d, v%d' % (mx, mx))
    a('v_rcp_f32 v%d, v%d' % (mn, mn))
    for i in range(0, 16, 2):
        a('v_pk_mul_f32 %s, %s, %s op_sel_hi:[1,0]' % (vr(EP + i, 2), vr(EP + i, 2), vr(mx, 2)))
        a('v_pk_mul_f32 %s, %s, %s op_sel_hi:[1,0]' % (vr(EN + i, 2), vr(EN + i, 2), vr(mn, 2)))
    for k in range(8):
        a('v_cvt_pk_bf16_f32 v%d, v%d, v%d' % (OUTP + k, EP + 2 * k, EP + 2 * k + 1))
        a('v_cvt_pk_bf16_f32 v%d, v%d, v%d' % (OUTN + k, EN + 2 * k, EN + 2 * k + 1))


def prefetch_tail(a, items, vdst, vt):
    nw = int(os.environ.get('PFT', '8'))
    if nw == 4:
        a('s_nop 7')
        a('s_nop 3')
        a('s_cmp_lt_u32 %s, 4' % S_WAVE)
        a('s_cbranch_scc1 pft_skip')
    a('s_lshl_b32 s5, %s, 4' % S_MT)
    a('s_add_u32 s5, s5, %s' % S_NT)
    a('s_lshl_b32 s5, s5, %d' % (2 if nw == 4 else 3))
    a('s_add_u32 s5, s5, %s' % S_WAVE)
    if nw == 4:
        a('s_sub_u32 s5, s5, 4')
    for (ptr, nbytes) in items:
        per = nbytes // (128 * nw)
        srd(a, 96, ptr, nbytes)
        a('s_mul_i32 s6, s5, %d' % per)
        a('v_min_u32 v%d, %d, v%d' % (vt, per // 128 - 1, V_LANE))
        a('v_lshlrev_b32 v%d, 7, v%d' % (vt, vt))
        a('buffer_load_dword v%d, v%d, s[96:99], s6 offen' % (vdst, vt))
    a.label('pft_skip')


def handoff_phase2(a, which):
    import p2
    tag = 'ho' + which
    base = 32 if which == 'b' else 40
    a('s_lshl_b32 s5, %s, 2' % S_MT)
    a('s_add_u32 s5, s5, %d' % (4 * base))
    a('v_mov_b32 v34, s5')
    a('v_mov_b32 v35, 1')
    a('s_waitcnt vmcnt(0) lgkmcnt(0)')
    a('s_barrier')
    a('s_cmp_lt_u32 %s, 4' % S_WAVE)
    a('s_cbranch_scc1 %s_go' % tag)
    a('s_endpgm')
    a.label('%s_go' % tag)
    a('s_cmp_lg_u32 %s, 0' % S_WAVE)
    a('s_cbranch_scc1 %s_nosig' % tag)
    a('s_mov_b64 exec, 1')
    a('global_atomic_add v34, v35, s[44:45] sc1')
    a('s_mov_b64 exec, -1')
    a.label('%s_nosig' % tag)
    wgt(a, 6 if WGTA else 3)
    a('s_lshl_b32 %s, %s, 1' % (S_MT, S_MT))
    a('s_and_b32 s5, %s, 1' % S_NT)
    a('s_add_u32 %s, %s, s5' % (S_MT, S_MT))
    a('s_lshr_b32 %s, %s, 1' % (S_NT, S_NT))
    if XMAP:
        a('s_and_b32 s5, s2, 3')
        a('s_lshl_b32 s11, s5, 2')
    else:
        a('s_and_b32 s5, s2, 7')
        a('s_lshl_b32 s11, s5, 1')
    if which == 'b':
        a('s_add_u32 s11, s11, 1')

    def wait_fn():
        poll(a, tag + '_poll', 34, T0, '16', 'ge')
        if not WGTA:
            wgt(a, 4)
    p2.phase2(a, which, wait_fn)


def gen_k1(a):
    name = 'k1_kernel'
    kernel_head(a, name, 256)
    lane_consts(a, V_LANE, V_L31, V_HH, S_WAVE, T0)
    a('s_and_b32 s3, s2, 7')
    a('s_lshr_b32 s4, s2, 3')
    a('s_and_b32 s5, s4, 3')
    a('s_and_b32 s6, s3, 1')
    a('s_lshl_b32 s6, s6, 2')
    a('s_add_u32 %s, s6, s5' % S_MT)
    if XMAP:
        a('s_lshr_b32 s5, s4, 2')
        a('s_bfe_u32 s6, s3, 0x10001')
        a('s_lshl_b32 s6, s6, 3')
        a('s_add_u32 %s, s6, s5' % S_NT)
        a('s_lshr_b32 s4, s3, 2')
        a('s_lshl_b32 s4, s4, 4')
    else:
        a('s_bfe_u32 s5, s4, 0x20002')
        a('s_lshr_b32 s6, s3, 1')
        a('s_lshl_b32 s6, s6, 2')
        a('s_add_u32 %s, s6, s5' % S_NT)
    a('s_lshr_b32 %s, %s, 1' % (S_WM, S_WAVE))
    a('s_and_b32 %s, %s, 1' % (S_WN, S_WAVE))
    a('s_lshl_b32 %s, %s, 13' % (S_MA, S_WAVE))
    a('s_add_u32 %s, %s, 4096' % (S_MA2, S_MA))
    if ROT and XMAP:
        a('s_and_b32 s5, s3, 3')
        a('s_lshl_b32 s5, s5, 2')
        a('s_bfe_u32 s6, s4, 0x10004')
        a('s_lshl_b32 s6, s6, 1')
        a('s_add_u32 s7, s5, s6')
    elif ROT:
        a('s_lshl_b32 s5, s3, 1')
        a('s_bfe_u32 s6, s4, 0x10004')
        a('s_add_u32 s7, s5, s6')
    else:
        a('s_mov_b32 s7, 0')
    a('s_mov_b32 s3, s7')
    a('s_mov_b32 s8, 0x%x' % LOG2E)
    a('s_mov_b32 s9, 0x%x' % LOG2E)
    VA = [8, 9, 10, 11]
    a('s_lshl_b32 %s, %s, 13' % (S_TMP, S_WM))
    if S16:
        kc_read_addrs16(a, VA, V_LANE, S_TMP, 0, T0, T1)
    else:
        kc_read_addrs(a, VA, V_L31, V_HH, S_TMP, 0, T0, T1)
    a('s_waitcnt lgkmcnt(0)')
    a('s_bitcmp1_b32 s4, 4')
    a('s_cbranch_scc1 k1_B')
    gen_A(a, VA)
    a.label('k1_B')
    gen_B(a, VA)
    a.label(name + '_exit')
    a('s_endpgm')


S_MB, S_MB2 = 's66', 's78'


def bulk_pf(items, stage0):
    from asmlib import Asm
    exn = {}
    n = 0
    for (ptr, nbytes) in items:
        per = nbytes // 1024
        for off in range(0, per, 8192):
            lines = min(64, (per - off) // 128)
            t = Asm()
            t('s_lshl_b32 s5, s2, 2')
            t('s_add_u32 s5, s5, %s' % S_WAVE)
            t('s_sub_u32 s5, s5, 4')
            srd(t, 96, ptr, nbytes)
            t('s_mul_i32 s6, s5, %d' % per)
            if off:
                t('s_add_u32 s6, s6, %d' % off)
            t('v_min_u32 v%d, %d, v%d' % (T0, lines - 1, V_LANE))
            t('v_lshlrev_b32 v%d, 7, v%d' % (T0, T0))
            t('buffer_load_dword v255, v%d, s[96:99], s6 offen' % T0)
            exn.setdefault(stage0 + n // 4, {}).setdefault(n % 4, []).append(list(t.lines))
            n += 1
    return exn


BULK = os.environ.get('BULK')
BULK_ITEMS = [('wqkv', 6 << 20), ('Ax', 4 << 20), ('Bx', 4 << 20), ('Bre', 2 << 20), ('Bim', 2 << 20)]


def run_roles(a, tag, ringA, ringB, streamB_groups, extra_none=None, **cfg):
    if BULK and tag in ('k1a', 'k1b'):
        e2 = bulk_pf(BULK_ITEMS, int(BULK))
        if extra_none:
            e2.update(extra_none)
        extra_none = e2
    a('s_cmp_ge_u32 %s, 4' % S_WAVE)
    a('s_cbranch_scc1 %s_r1' % tag)
    sa = Stream(ringA, [(S_MA, [(VD[j], 's[48:51]', S_OA, j * 1024) for j in range(4)]),
                        (S_MA2, [(VD[4 + j], 's[48:51]', S_OA, j * 1024) for j in range(4)])],
                ['s_add_u32 %s, %s, 128' % (S_OA, S_OA), 's_and_b32 %s, %s, 0x7ff' % (S_OA, S_OA)])
    sb = Stream(ringB, streamB_groups, wrap_adv(S_O2, S_ADV2, S_END2))
    g = Gemm(a, pfx=tag + 'd', streams=[sa, sb], ringA=ringA, ringB=ringB, **cfg)
    g.run(16)
    a('s_branch %s_join' % tag)
    a.label('%s_r1' % tag)
    g = Gemm(a, pfx=tag + 'n', streams=[], ringA=ringA, ringB=ringB, **cfg)
    g.run(16, tail_extra=extra_none)
    a.label('%s_join' % tag)


BBASE = 98304
BBASE_A = 65536 if not os.environ.get('NO_SWAPRING') else 98304


def gen_A(a, VA):
    a.comment('==== A: qkv gemm')
    VB0 = 12
    WPH = 24
    VWR = 32
    VTR = 40
    V_OFF, V_ONE, V_O = 44, 45, 46
    V_OW, V_OR = 13, 47
    OBASE = 16384
    ACC = 48
    FR = 144
    AQ, AK, AV = ACC, ACC + 32, ACC + 64
    NB, ST = 2, 57344
    srd(a, 56, 'wphi', 65536)
    a('s_lshl_b32 %s, %s, 1' % (S_HD, S_NT))
    a('s_add_u32 %s, %s, %s' % (S_HD, S_HD, S_WN))
    a('v_lshlrev_b32 v%d, %d, v%d' % (T0, 9 if S16 else 8, V_HH))
    a('v_lshl_add_u32 v%d, v%d, 1, v%d' % (T0, V_L31, T0))
    a('s_lshl_b32 s5, %s, 11' % S_HD)
    for s in range(2):
        for i in range(8):
            d = 16 * s + 8 * (i >> 2) + (i & 3)
            if S16:
                d = 16 * s + i
            a('buffer_load_ushort v%d, v%d, s[56:59], s5 offen offset:%d' % (ACC + 8 * s + i, T0, d * 64))
    VW = [184, 185, 186, 187, 188, 189] if not S16 else [224, 225, 226, 227, 228, 229]
    srd(a, 48, 'Ax', 4 << 20)
    srd(a, 52, 'wqkv', 6 << 20)
    a('s_and_b32 s4, %s, 3' % S_WAVE)
    a('s_lshl_b32 s5, %s, 8' % S_MT)
    a('s_lshl_b32 s6, s4, 6')
    a('s_add_u32 s6, s5, s6')
    kc_dma_voffs(a, 's6', False)
    a('s_lshl_b32 %s, s7, 7' % S_OA)
    def w_setup(nper, seg0, base):
        a('s_and_b32 s4, %s, 3' % S_WAVE)
        a('v_lshrrev_b32 v%d, 3, v%d' % (T0, V_LANE))
        a('v_mul_u32_u24 v%d, 6144, v%d' % (T0, T0))
        a('v_bfe_u32 v%d, v%d, 4, 1' % (T1, V_LANE))
        a('v_lshlrev_b32 v%d, %d, v%d' % (T1, 1 if S16 else 2, T1))
        a('v_and_b32 v%d, 7, v%d' % (T2, V_LANE))
        a('v_xor_b32 v%d, v%d, v%d' % (T1, T1, T2))
        a('v_lshl_add_u32 v%d, v%d, 4, v%d' % (T0, T1, T0))
        a('v_xor_b32 v%d, 64, v%d' % (T1, T0))
        a('s_mul_i32 s4, s4, %d' % nper)
        a('s_lshl_b32 %s, s4, 10' % S_MB)
        a('s_add_u32 %s, %s, %d' % (S_MB, S_MB, base))
        a('s_add_u32 %s, %s, 4096' % (S_MB2, S_MB))
        for j in range(nper):
            a('s_add_u32 s5, s4, %d' % j)
            a('s_lshr_b32 s6, s5, 3')
            a('s_and_b32 s5, s5, 7')
            a('s_mul_i32 s5, s5, 49152')
            a('s_lshl_b32 s6, s6, 11')
            a('s_add_u32 s5, s5, s6')
            a('s_lshl_b32 s6, %s, 7' % S_NT)
            a('s_add_u32 s5, s5, s6')
            c = seg0 * 2048 - (j & 3) * 1024
            if c > 0:
                a('s_add_u32 s5, s5, %d' % c)
            elif c < 0:
                a('s_sub_u32 s5, s5, %d' % (-c))
            a('v_add_u32 v%d, s5, v%d' % (VW[j], T1 if (S16 and (j & 1)) else T0))
        a('s_mov_b32 s7, s3')
        set_stream(a, S_O2, S_ADV2, S_END2, 0x60000, 16, 0)
        a('s_mov_b32 %s, 0' % S_TMP)
        a('s_lshl_b32 s5, %s, 6' % S_WN)
        if S16:
            kn_read_addr16(a, [VB0, VA[2]], V_LANE, S_TMP, base, T0, T1, s_xor='s5')
        else:
            kn_read_addr(a, VB0, None, V_LANE, S_TMP, base, T0, T1)
            a('v_xor_b32 v%d, s5, v%d' % (VB0, VB0))

    if TWOPASS:
        w_setup(4, 1, BBASE)
    else:
        w_setup(6, 0, BBASE_A)

    def mid(nvm):
        a('s_lshl_b32 s5, %s, 13' % S_WAVE)
        a('v_and_b32 v%d, 5, v%d' % (T0, V_L31))
        a('v_bfe_u32 v%d, v%d, 1, 1' % (T1, V_L31))
        a('v_lshl_or_b32 v%d, v%d, 3, v%d' % (T0, T1, T0))
        a('v_bfe_u32 v%d, v%d, 3, 1' % (T1, V_L31))
        a('v_lshl_or_b32 v%d, v%d, 1, v%d' % (T0, T1, T0))
        a('v_xor_b32 v%d, v%d, v%d' % (T0, T0, V_HH))
        a('v_lshlrev_b32 v%d, 3, v%d' % (T0, T0))
        a('v_lshl_add_u32 v%d, v%d, 7, v%d' % (T0, V_L31, T0))
        a('v_add_u32 v%d, s5, v%d' % (T0, T0))
        for k in range(8):
            a('v_xor_b32 v%d, %d, v%d' % (VWR + k, ((k & 3) * 2 + (k >> 2) * 8) * 8, T0))
        a('v_bfe_u32 v%d, v%d, 2, 2' % (T0, V_LANE))
        if S16:
            a('v_and_b32 v%d, 1, v%d' % (T1, T0))
            a('v_bfe_u32 v%d, v%d, 1, 1' % (T2, T0))
            a('v_lshl_or_b32 v%d, v%d, 3, v%d' % (T1, T2, T1))
            a('v_lshl_or_b32 v%d, v%d, 1, v%d' % (T1, V_HH, T1))
            a('v_lshl_add_u32 v%d, v%d, 3, v%d' % (T0, V_HH, T0))
        else:
            a('v_lshl_add_u32 v%d, v%d, 2, v%d' % (T0, V_HH, T0))
            a('v_and_b32 v%d, 5, v%d' % (T1, T0))
            a('v_bfe_u32 v%d, v%d, 1, 1' % (T2, T0))
            a('v_lshl_or_b32 v%d, v%d, 3, v%d' % (T1, T2, T1))
        a('v_and_b32 v%d, 3, v%d' % (T2, V_LANE))
        a('v_bfe_u32 v%d, v%d, 4, 1' % (T3, V_LANE))
        a('v_lshl_or_b32 v%d, v%d, 2, v%d' % (T2, T3, T2))
        a('v_xor_b32 v%d, v%d, v%d' % (T1, T1, T2))
        a('v_lshlrev_b32 v%d, 3, v%d' % (T1, T1))
        a('v_lshl_add_u32 v%d, v%d, 7, v%d' % (T1, T0, T1))
        a('v_add_u32 v%d, s5, v%d' % (T1, T1))
        for ft in range(2):
            for u in range(2):
                a('v_xor_b32 v%d, %d, v%d' % (VTR + 2 * ft + u, ft * 64 + u * (32 if S16 else 16), T1))
        a('s_lshl_b32 s5, %s, 2' % S_NT)
        if os.environ.get('DBGT'):
            a('s_add_u32 s5, s5, 192')
        a('v_mov_b32 v%d, s5' % V_OFF)
        a('v_mov_b32 v%d, 1' % V_ONE)
        a('s_lshl_b32 s5, %s, 12' % S_WAVE)
        a('v_lshrrev_b32 v%d, 3, v%d' % (T0, V_LANE))
        a('v_and_b32 v%d, 7, v%d' % (T1, V_LANE))
        a('v_xor_b32 v%d, v%d, v%d' % (T2, T0, T1))
        a('v_lshlrev_b32 v%d, 4, v%d' % (T2, T2))
        a('v_lshl_add_u32 v%d, v%d, 7, v%d' % (T2, T0, T2))
        a('v_add_u32 v%d, s5, v%d' % (V_OR, T2))
        a('s_lshl_b32 s5, %s, 8' % S_MT)
        a('s_lshl_b32 s6, %s, 5' % S_WAVE)
        a('s_add_u32 s5, s5, s6')
        a('v_add_u32 v%d, s5, v%d' % (T0, T0))
        a('v_lshlrev_b32 v%d, 11, v%d' % (T0, T0))
        a('v_lshl_add_u32 v%d, v%d, 4, v%d' % (T0, T1, T0))
        a('s_lshl_b32 s5, %s, 7' % S_NT)
        a('v_add_u32 v%d, s5, v%d' % (V_O, T0))
        a('s_waitcnt vmcnt(%d)' % nvm)
        for r in range(8):
            a('v_lshl_or_b32 v%d, v%d, 16, v%d' % (WPH + r, ACC + 2 * r + 1, ACC + 2 * r))

    def acc(tm, tn):
        return vr(ACC + 32 * tn + 16 * tm, 16)

    stamp(a, 1)
    wgt(a, 1)
    if TWOPASS:
        ringA = Ring(32768, 3, ['s67', 's68', 's79'], S_TMP)
        ringB = Ring(16384, 3, ['s12', 's13', 's14'], S_TMP)
        sbg = [(S_MB, [(VW[j], 's[52:55]', S_O2, j * 1024) for j in range(4)])]
        run_roles(a, 'k1a', ringA, ringB, sbg, TM=2, TN=2, PD=PDA, NS=2 * PDA, FR=FR, vA=VA, offA=[0, 4096],
                  bmode='kn', vB=[VB0], offB=[(0, 0), (0, 8192)], acc=lambda tm, tn: acc(tm, tn + 1),
                  swap=lambda tm, tn: tn < 1, s_cnt=S_CNT, mid=mid)
    else:
        if not os.environ.get('NO_SWAPRING'):
            ringA = Ring(32768, 2, ['s67', 's68', 's79'], S_TMP)
            ringB = Ring(24576, 3, ['s12', 's13', 's14'], S_TMP)
        else:
            ringA = Ring(32768, 3, ['s67', 's68', 's79'], S_TMP)
            ringB = Ring(24576, 2, ['s12', 's13'], S_TMP)
        sbg = [(S_MB, [(VW[j], 's[52:55]', S_O2, j * 1024) for j in range(4)]),
               (S_MB2, [(VW[4 + j], 's[52:55]', S_O2, j * 1024) for j in range(2)])]
        if S16:
            run_roles(a, 'k1a', ringA, ringB, sbg, TM=4, TN=6, PD=1, NS=2, FR=FR, vA=VA, offA=[0, 2048, 4096, 6144],
                      bmode='kn', vB=[VB0, VA[2]], offB=[(tn & 1, (tn >> 1) * 8192) for tn in range(6)],
                      acc=lambda tm, tn: vr(ACC + 32 * (tn >> 1) + 8 * tm + 4 * (tn & 1), 4),
                      swap=lambda tm, tn: tn < 4, s_cnt=S_CNT, mid=mid, s16=True)
        else:
            run_roles(a, 'k1a', ringA, ringB, sbg, TM=2, TN=3, PD=PDA, NS=2 * PDA, FR=FR, vA=VA, offA=[0, 4096],
                      bmode='kn', vB=[VB0], offB=[(0, 0), (0, 8192), (0, 16384)], acc=acc,
                      swap=lambda tm, tn: tn < 2,
                      s_cnt=S_CNT, mid=mid)
    stamp(a, 2)
    wgt(a, 2)
    PK = 144
    PP = 152
    EP = 168
    EN = 184
    OP = 200
    ON = 208
    KV = 216
    TS = 248
    ZA = 22
    V_ONES = 21
    AF = 168
    a('v_mov_b32 v%d, 0x3f803f80' % V_ONES)
    a('v_mov_b32 v%d, 0' % ZA)
    a('v_mov_b32 v%d, 0' % (ZA + 1))
    srd(a, 56, 'ws', 4 << 20, WS_KVP)
    srd(a, 60, 'ws', 4 << 20, WS_O)

    def featmap(src, outp, outn):
        if S16:
            for tt in range(2):
                for dt in range(2):
                    for p in range(2):
                        r = src + 8 * tt + 4 * dt + 2 * p
                        a('v_cvt_pk_bf16_f32 v%d, v%d, v%d' % (PK + 4 * dt + 2 * tt + p, r, r + 1))
            for dt in range(2):
                for p in range(2):
                    a('v_permlane16_swap_b32 v%d, v%d' % (PK + 4 * dt + p, PK + 4 * dt + 2 + p))
        for k in range(0 if S16 else 8):
            a('v_cvt_pk_bf16_f32 v%d, v%d, v%d' % (PK + k, src + 2 * k, src + 2 * k + 1))
        a('v_mfma_f32_32x32x16_bf16 %s, %s, %s, 0' % (vr(PP, 16), vr(WPH, 4), vr(PK, 4)))
        a('v_mfma_f32_32x32x16_bf16 %s, %s, %s, %s' % (vr(PP, 16), vr(WPH + 4, 4), vr(PK + 4, 4), vr(PP, 16)))
        softmax_pm(a, PP, EP, EN, outp, outn, TS)

    for tm in range(2):
        featmap(AK + 16 * tm, OP, ON)
        if tm == 0:
            a('s_barrier')
        for g4 in range(4):
            a('ds_write_b64 v%d, %s offset:%d' % (VWR + g4, vr(OP + 2 * g4, 2), tm * 4096))
            a('ds_write_b64 v%d, %s offset:%d' % (VWR + 4 + g4, vr(ON + 2 * g4, 2), tm * 4096))
        for k in range(8):
            a('v_cvt_pk_bf16_f32 v%d, v%d, v%d' % (PK + k, AV + 16 * tm + 2 * k, AV + 16 * tm + 2 * k + 1))
        if S16:
            for s in range(2):
                for p in range(2):
                    a('v_permlane16_swap_b32 v%d, v%d' % (PK + 4 * s + p, PK + 4 * s + 2 + p))
        a('s_waitcnt lgkmcnt(0)')
        for ft in range(2):
            for s in range(2):
                f = AF + 4 * (2 * ft + s)
                for u in range(2):
                    a('ds_read_b64_tr_b16 %s, v%d offset:%d' % (vr(f + 2 * u, 2), VTR + 2 * ft + u,
                                                                 tm * 4096 + s * 2048 + u * (512 if S16 else 1024)))
        for ft in range(2):
            for s in range(2):
                f = AF + 4 * (2 * ft + s)
                a('s_waitcnt lgkmcnt(%d)' % (6 - 2 * (2 * ft + s)))
                c = '0' if (tm == 0 and s == 0) else vr(KV + 16 * ft, 16)
                a('v_mfma_f32_32x32x16_bf16 %s, %s, %s, %s' % (vr(KV + 16 * ft, 16), vr(f, 4), vr(PK + 4 * s, 4), c))
                for k in range(4):
                    a('v_dot2c_f32_bf16 v%d, v%d, v%d' % (ZA + ft, f + k, V_ONES))
    a('v_mov_b32 v%d, v%d' % (TS, ZA))
    a('v_mov_b32 v%d, v%d' % (TS + 1, ZA + 1))
    a('v_permlane32_swap_b32 v%d, v%d' % (ZA, TS))
    a('v_permlane32_swap_b32 v%d, v%d' % (ZA + 1, TS + 1))
    a('v_add_f32 v%d, v%d, v%d' % (ZA, ZA, TS))
    a('v_add_f32 v%d, v%d, v%d' % (ZA + 1, ZA + 1, TS + 1))
    a('v_cmp_eq_u32 vcc, 1, v%d' % V_HH)
    a('v_cndmask_b32 v%d, v%d, v%d, vcc' % (ZA, ZA, ZA + 1))
    a('s_lshl_b32 s5, %s, 13' % S_WAVE)
    a('v_lshl_add_u32 v%d, v%d, 4, s5' % (T0, V_LANE))
    a('s_lshl_b32 s5, %s, 8' % S_WAVE)
    a('s_add_u32 s5, s5, 65536')
    a('v_lshl_add_u32 v%d, v%d, 2, s5' % (T1, V_LANE))
    a('ds_write_b32 v%d, v%d' % (T1, ZA))
    for q in range(8):
        a('ds_write_b128 v%d, %s offset:%d' % (T0, vr(KV + 4 * q, 4), q * 1024))
    a('s_lshl_b32 s5, %s, 13' % S_WN)
    a('s_lshl_b32 s6, %s, 11' % S_WM)
    a('s_add_u32 s5, s5, s6')
    a('v_lshl_add_u32 v%d, v%d, 4, s5' % (T0, V_LANE))
    a('s_lshl_b32 s5, %s, 8' % S_WN)
    a('s_add_u32 s5, s5, 65536')
    a('v_lshl_add_u32 v%d, v%d, 2, s5' % (T1, V_LANE))
    a('s_lshl_b32 s5, %s, 5' % S_MT)
    a('s_add_u32 s5, s5, %s' % S_HD)
    a('s_lshl_b32 s6, s5, 13')
    a('s_lshl_b32 s7, %s, 11' % S_WM)
    a('s_add_u32 s6, s6, s7')
    a('v_lshlrev_b32 v%d, 4, v%d' % (T2, V_LANE))
    a('s_lshl_b32 s7, s5, 8')
    a('s_add_u32 s7, s7, 0x%x' % (WS_ZP - WS_KVP))
    a('v_lshlrev_b32 v%d, 2, v%d' % (T3, V_LANE))
    a('s_waitcnt lgkmcnt(0)')
    a('s_barrier')
    R = 216
    for w in range(4):
        for q in range(2):
            a('ds_read_b128 %s, v%d offset:%d' % (vr(R + 8 * w + 4 * q, 4), T0, w * 16384 + q * 1024))
    for w in range(4):
        a('ds_read_b32 v%d, v%d offset:%d' % (OP + w, T1, w * 512))
    a('s_waitcnt lgkmcnt(4)')
    for k in range(0, 8, 2):
        a('v_pk_add_f32 %s, %s, %s' % (vr(R + k, 2), vr(R + k, 2), vr(R + 8 + k, 2)))
        a('v_pk_add_f32 %s, %s, %s' % (vr(R + 16 + k, 2), vr(R + 16 + k, 2), vr(R + 24 + k, 2)))
    for k in range(0, 8, 2):
        a('v_pk_add_f32 %s, %s, %s' % (vr(R + k, 2), vr(R + k, 2), vr(R + 16 + k, 2)))
    a('buffer_store_dwordx4 %s, v%d, s[56:59], s6 offen sc1' % (vr(R, 4), T2))
    a('buffer_store_dwordx4 %s, v%d, s[56:59], s6 offen offset:1024 sc1' % (vr(R + 4, 4), T2))
    a('s_waitcnt lgkmcnt(0)')
    a('v_add_f32 v%d, v%d, v%d' % (OP, OP, OP + 1))
    a('v_add_f32 v%d, v%d, v%d' % (OP + 2, OP + 2, OP + 3))
    a('v_add_f32 v%d, v%d, v%d' % (ZA, OP, OP + 2))
    a('s_cmp_lg_u32 %s, 0' % S_WM)
    a('s_cbranch_scc1 k1a_noz')
    a('buffer_store_dword v%d, v%d, s[56:59], s7 offen sc1' % (ZA, T3))
    a.label('k1a_noz')
    stamp(a, 3)
    if (not FUSE) or WGTA:
        wgt(a, 3)
    nsig = [0]

    def signal():
        nsig[0] += 1
        lab = 'k1a_nosig%d' % nsig[0]
        a('s_cmp_lg_u32 %s, 0' % S_WAVE)
        a('s_cbranch_scc1 %s' % lab)
        a('s_mov_b64 exec, 1')
        a('global_atomic_add v%d, v%d, s[44:45] sc1' % (V_OFF, V_ONE))
        a('s_mov_b64 exec, -1')
        a.label(lab)

    if TWOPASS:
        PQ = 216
        a('s_lshl_b32 %s, %s, 13' % (S_MA, S_WAVE))
        a('s_add_u32 %s, %s, 4096' % (S_MA2, S_MA))
        a('s_lshl_b32 %s, s3, 7' % S_OA)
        a('s_lshl_b32 %s, %s, 13' % (S_TMP, S_WM))
        kc_read_addrs(a, VA, V_L31, V_HH, S_TMP, 0, T0, T1)
        w_setup(2, 0, BBASE)
        a('s_barrier')
        ringB = Ring(8192, 3, ['s12', 's13', 's14'], S_TMP)
        sbg = [(S_MB, [(VW[j], 's[52:55]', S_O2, j * 1024) for j in range(2)])]

        def mid2(nvm):
            a('s_waitcnt vmcnt(%d)' % nvm)
        run_roles(a, 'k1q', ringA, ringB, sbg, TM=2, TN=1, PD=PDA, NS=2 * PDA, FR=FR, vA=VA, offA=[0, 4096],
                  bmode='kn', vB=[VB0], offB=[(0, 0)], acc=lambda tm, tn: acc(tm, 0),
                  swap=lambda tm, tn: True, s_cnt=S_CNT, mid=mid2, post_bar=signal, n_extra_post=1)
        a('v_lshlrev_b32 v%d, 4, v%d' % (T2, V_LANE))
        a('v_lshlrev_b32 v%d, 2, v%d' % (T3, V_LANE))
    else:
        PQ = AK
        featmap(AQ, PQ, PQ + 8)
        a('s_waitcnt vmcnt(0)')
        a('s_barrier')
        signal()
        if not EARLYPOLL:
            featmap(AQ + 16, PQ + 16, PQ + 24)
    stamp(a, 4)
    if (not FUSE) or WGTA:
        wgt(a, 4)
    poll(a, 'k1a_poll', V_OFF, T0, '8', 'ge')
    stamp(a, 5)
    if (not FUSE) or WGTA:
        wgt(a, 5)
    a('s_lshl_b32 s6, %s, 13' % S_HD)
    a('s_lshl_b32 s7, %s, 11' % S_WM)
    a('s_add_u32 s6, s6, s7')
    if TWOPASS:
        LM = [AK + 8 * m for m in range(8)]
        ZL = 200
    elif EARLYPOLL:
        L = AV
        LM = [AV, AV + 8, AV + 16, AV + 24, 216, 224, 232, 240]
        ZL = AQ
    else:
        LM = [144 + 8 * m for m in range(8)]
        ZL = 208
    for m in range(8):
        a('buffer_load_dwordx4 %s, v%d, s[56:59], s6 offen sc1' % (vr(LM[m], 4), T2))
        a('buffer_load_dwordx4 %s, v%d, s[56:59], s6 offen offset:1024 sc1' % (vr(LM[m] + 4, 4), T2))
        if m < 7:
            a('s_add_u32 s6, s6, 0x40000')
    a('s_lshl_b32 s7, %s, 8' % S_HD)
    a('s_add_u32 s7, s7, 0x%x' % (WS_ZP - WS_KVP))
    for m in range(8):
        a('buffer_load_dword v%d, v%d, s[56:59], s7 offen sc1' % (ZL + m, T3))
        if m < 7:
            a('s_add_u32 s7, s7, 0x2000')
    if TWOPASS:
        featmap(AQ, PQ, PQ + 8)
        featmap(AQ + 16, PQ + 16, PQ + 24)
    elif EARLYPOLL:
        featmap(AQ + 16, PQ + 16, PQ + 24)
    a('s_lshl_b32 s5, %s, 12' % S_WN)
    a('v_lshl_add_u32 v%d, v%d, 4, s5' % (T0, V_LANE))
    a('s_lshl_b32 s6, %s, 10' % S_WM)
    a('v_add_u32 v%d, s6, v%d' % (T1, T0))
    a('s_lshl_b32 s5, %s, 13' % S_WM)
    a('s_lshl_b32 s6, %s, 2' % S_WN)
    a('v_or_b32 v%d, s6, v%d' % (TS, V_HH))
    a('v_and_b32 v%d, 7, v%d' % ((TS + 1), V_L31))
    a('v_xor_b32 v%d, v%d, v%d' % (TS, TS, (TS + 1)))
    a('v_lshlrev_b32 v%d, 4, v%d' % (TS, TS))
    a('v_lshl_add_u32 v%d, v%d, 7, v%d' % (TS, V_L31, TS))
    a('v_add_u32 v%d, s5, v%d' % (V_OW, TS))
    a('v_xor_b32 v%d, 32, v%d' % (V_OW + 1, V_OW))
    a('s_waitcnt vmcnt(8)')
    for k in range(0, 8, 2):
        for m in range(0, 8, 2):
            a('v_pk_add_f32 %s, %s, %s' % (vr(LM[m] + k, 2), vr(LM[m] + k, 2), vr(LM[m + 1] + k, 2)))
    for k in range(0, 8, 2):
        a('v_pk_add_f32 %s, %s, %s' % (vr(LM[0] + k, 2), vr(LM[0] + k, 2), vr(LM[2] + k, 2)))
        a('v_pk_add_f32 %s, %s, %s' % (vr(LM[4] + k, 2), vr(LM[4] + k, 2), vr(LM[6] + k, 2)))
    for k in range(0, 8, 2):
        a('v_pk_add_f32 %s, %s, %s' % (vr(LM[0] + k, 2), vr(LM[0] + k, 2), vr(LM[4] + k, 2)))
    for k in range(4):
        a('v_cvt_pk_bf16_f32 v%d, v%d, v%d' % (LM[1] + k, LM[0] + 2 * k, LM[0] + 2 * k + 1))
    a('ds_write_b128 v%d, %s' % (T1, vr(LM[1], 4)))
    a('s_waitcnt vmcnt(0)')
    for m in range(0, 8, 4):
        a('v_pk_add_f32 %s, %s, %s' % (vr(ZL + m, 2), vr(ZL + m, 2), vr(ZL + m + 2, 2)))
    a('v_pk_add_f32 %s, %s, %s' % (vr(ZL, 2), vr(ZL, 2), vr(ZL + 4, 2)))
    a('v_add_f32 v%d, v%d, v%d' % (ZL, ZL, ZL + 1))
    a('v_cvt_pk_bf16_f32 v%d, v%d, v%d' % (ZL, ZL, ZL))
    a('s_lshl_b32 s5, %s, 7' % S_WN)
    a('s_add_u32 s5, s5, 8192')
    a('v_lshl_add_u32 v%d, v%d, 1, s5' % (T1, V_LANE))
    a('ds_write_b16 v%d, v%d' % (T1, ZL))
    a('v_lshl_add_u32 v%d, v%d, 3, s5' % (T1, V_HH))
    a('s_lshl_b32 s5, %s, 6' % S_HD)
    a('s_add_u32 s6, s5, 0x10000')
    a('s_waitcnt lgkmcnt(0)')
    a('s_barrier')
    KF = 144
    ZF = 160
    for f in range(4):
        a('ds_read_b128 %s, v%d offset:%d' % (vr(KF + 4 * f, 4), T0, f * 1024))
        a('ds_read_b64 %s, v%d offset:%d' % (vr(ZF + 4 * f, 2), T1, f * 32))
        a('ds_read_b64 %s, v%d offset:%d' % (vr(ZF + 4 * f + 2, 2), T1, f * 32 + 16))
    NUM = 176
    DEN = 208
    if TWOPASS:
        NUM, DEN = AK, AV
    for f in range(4):
        a('s_waitcnt lgkmcnt(%d)' % (9 - 3 * f))
        for tm in range(2):
            b = PQ + 16 * tm + 4 * f
            a('v_mfma_f32_32x32x16_bf16 %s, %s, %s, %s' % (vr(DEN + 16 * tm, 16), vr(ZF + 4 * f, 4), vr(b, 4),
                                                           '0' if f == 0 else vr(DEN + 16 * tm, 16)))
            a('v_mfma_f32_32x32x16_bf16 %s, %s, %s, %s' % (vr(NUM + 16 * tm, 16), vr(KF + 4 * f, 4), vr(b, 4),
                                                           '0' if f == 0 else vr(NUM + 16 * tm, 16)))
    for tm in range(2):
        d = DEN + 16 * tm
        n = NUM + 16 * tm
        a('v_add_f32 v%d, 0x358637bd, v%d' % (d, d))
        a('v_rcp_f32 v%d, v%d' % (d, d))
        for k in range(0, 16, 2):
            a('v_pk_mul_f32 %s, %s, %s op_sel_hi:[1,0]' % (vr(n + k, 2), vr(n + k, 2), vr(d, 2)))
        o = d + 4
        for k in range(8):
            a('v_cvt_pk_bf16_f32 v%d, v%d, v%d' % (o + k, n + 2 * k, n + 2 * k + 1))
        for p in range(2):
            a('v_permlane32_swap_b32 v%d, v%d' % (o + 4 * p, o + 4 * p + 2))
            a('v_permlane32_swap_b32 v%d, v%d' % (o + 4 * p + 1, o + 4 * p + 3))
            a('ds_write_b128 v%d, %s offset:%d' % (V_OW + p, vr(o + 4 * p, 4), OBASE + tm * 4096))
    a('s_waitcnt lgkmcnt(0)')
    a('s_barrier')
    for i in range(4):
        a('ds_read_b128 %s, v%d offset:%d' % (vr(144 + 4 * i, 4), V_OR, OBASE + i * 1024))
    for i in range(4):
        a('s_mov_b32 s5, 0x%x' % (i * 8 * 2048))
        a('s_waitcnt lgkmcnt(%d)' % (3 - i))
        a('buffer_store_dwordx4 %s, v%d, s[60:63], s5 offen%s' % (vr(144 + 4 * i, 4), V_O,
                                                                  os.environ.get('STO', ' sc1' if FUSE else '')))
    if FUSE:
        handoff_phase2(a, 'a')
        return
    stamp(a, 6)
    wgt(a, 6)
    stamp_flush(a, 7, 0)
    wgt_flush(a, 7, 0)
    a('s_endpgm')


def cmul(a, dr, di, ar, ai, br, bi, t):
    a('v_mul_f32 v%d, v%d, v%d' % (t, ai, bi))
    a('v_mul_f32 v%d, v%d, v%d' % (t + 1, ar, bi))
    a('v_fma_f32 v%d, v%d, v%d, -v%d' % (t, ar, br, t))
    a('v_fma_f32 v%d, v%d, v%d, v%d' % (di, ai, br, t + 1))
    a('v_mov_b32 v%d, v%d' % (dr, t))


def cfma(a, hr, hi, lr, li, ur, ui, t):
    a('v_fma_f32 v%d, -v%d, v%d, v%d' % (t, li, hi, ur))
    a('v_fma_f32 v%d, v%d, v%d, v%d' % (t + 1, li, hr, ui))
    a('v_fma_f32 v%d, v%d, v%d, v%d' % (hr, lr, hr, t))
    a('v_fma_f32 v%d, v%d, v%d, v%d' % (hi, lr, hi, t + 1))


def gen_B(a, VA):
    a.comment('==== B: input projection gemm')
    VB = [12, 21, 22, 23]
    LR, LI, CR, CI, L32R, L32I, L256R, L256I = 24, 25, 26, 27, 28, 29, 30, 31
    V_P2, V_OFF, V_BIT, V_SEL, V_H, V_Q = 32, 33, 34, 35, 36, 37
    TT = 38
    V_HW = 47
    ACC = 48
    FR = 112
    NB, ST = 3, 49152
    a('s_lshl_b32 s5, %s, 6' % S_NT)
    a('s_lshl_b32 s6, %s, 5' % S_WN)
    a('s_add_u32 s5, s5, s6')
    a('v_add_u32 v%d, s5, v%d' % (V_P2, V_L31))
    a('v_lshlrev_b32 v%d, 1, v%d' % (T0, V_P2))
    a('global_load_ushort v%d, v%d, s[26:27]' % (TT, T0))
    a('global_load_ushort v%d, v%d, s[28:29]' % (TT + 1, T0))
    a('global_load_ushort v%d, v%d, s[38:39]' % (TT + 2, T0))
    VW = [176, 177, 178, 179]
    srd(a, 48, 'Bx', 4 << 20)
    srd(a, 52, 'Bre', 2 << 20)
    srd(a, 56, 'Bim', 2 << 20)
    a('s_and_b32 s4, %s, 3' % S_WAVE)
    a('s_cmp_ge_u32 s4, 2')
    a('s_cselect_b32 s52, s56, s52')
    a('s_cselect_b32 s53, s57, s53')
    a('s_lshl_b32 s5, %s, 8' % S_MT)
    a('s_lshl_b32 s6, s4, 6')
    a('s_add_u32 s6, s5, s6')
    kc_dma_voffs(a, 's6', True)
    a('s_lshl_b32 %s, s7, 7' % S_OA)
    a('s_lshl_b32 s5, %s, 6' % S_NT)
    a('s_and_b32 s6, s4, 1')
    a('s_lshl_b32 s6, s6, 5')
    a('s_add_u32 s5, s5, s6')
    a('v_lshrrev_b32 v%d, 3, v%d' % (T0, V_LANE))
    a('v_add_u32 v%d, s5, v%d' % (T0, T0))
    a('v_lshlrev_b32 v%d, 11, v%d' % (T0, T0))
    for j in range(4):
        a('v_xor_b32 v%d, %d, v%d' % (T2, (j & 1) * 4, T1))
        a('v_lshl_add_u32 v%d, v%d, 4, v%d' % (VW[j], T2, T0))
        if j:
            a('v_add_u32 v%d, 0x%x, v%d' % (VW[j], 8 * j * 2048 - j * 1024, VW[j]))
    a('s_lshl_b32 %s, s4, 12' % S_MB)
    a('s_add_u32 %s, %s, %d' % (S_MB, S_MB, BBASE))
    set_stream(a, S_O2, S_ADV2, S_END2, 128, 16, 0)
    a('s_lshl_b32 %s, %s, 12' % (S_TMP, S_WN))
    if S16:
        kc_read_addrs16(a, VB, V_LANE, S_TMP, BBASE, T0, T1)
    else:
        kc_read_addrs(a, VB, V_L31, V_HH, S_TMP, BBASE, T0, T1)

    def mid(nvm):
        a('s_waitcnt vmcnt(%d)' % nvm)
        lre, lim, dt = TT, TT + 1, TT + 2
        a('v_lshlrev_b32 v%d, 16, v%d' % (lre, lre))
        a('v_lshlrev_b32 v%d, 16, v%d' % (lim, lim))
        a('v_lshlrev_b32 v%d, 16, v%d' % (dt, dt))
        a('v_mul_f32 v%d, %s, v%d' % (dt, S_L2E, dt))
        a('v_exp_f32 v%d, v%d' % (dt, dt))
        a('v_cvt_pk_bf16_f32 v%d, v%d, v%d' % (dt, dt, dt))
        a('v_lshlrev_b32 v%d, 16, v%d' % (dt, dt))
        a('v_mul_f32 v%d, v%d, v%d' % (TT + 3, dt, lre))
        a('v_mul_f32 v%d, v%d, v%d' % (TT + 4, dt, lim))
        a('v_mul_f32 v%d, %s, v%d' % (TT + 3, S_L2E, TT + 3))
        a('v_exp_f32 v%d, v%d' % (TT + 3, TT + 3))
        a('v_mul_f32 v%d, 0.15915494, v%d' % (TT + 4, TT + 4))
        a('v_rndne_f32 v%d, v%d' % (TT + 5, TT + 4))
        a('v_sub_f32 v%d, v%d, v%d' % (TT + 4, TT + 4, TT + 5))
        a('v_cos_f32 v%d, v%d' % (LR, TT + 4))
        a('v_sin_f32 v%d, v%d' % (LI, TT + 4))
        a('v_mul_f32 v%d, v%d, v%d' % (LR, LR, TT + 3))
        a('v_mul_f32 v%d, v%d, v%d' % (LI, LI, TT + 3))
        a('v_add_f32 v%d, -1.0, v%d' % (TT + 5, LR))
        a('v_mul_f32 v%d, v%d, v%d' % (TT + 6, lre, lre))
        a('v_fma_f32 v%d, v%d, v%d, v%d' % (TT + 6, lim, lim, TT + 6))
        a('v_rcp_f32 v%d, v%d' % (TT + 6, TT + 6))
        a('v_mul_f32 v%d, v%d, v%d' % (CR, TT + 5, lre))
        a('v_fma_f32 v%d, v%d, v%d, v%d' % (CR, LI, lim, CR))
        a('v_mul_f32 v%d, v%d, v%d' % (CI, TT + 5, lim))
        a('v_fma_f32 v%d, v%d, v%d, -v%d' % (CI, LI, lre, CI))
        a('v_add_f32 v%d, v%d, v%d' % (TT + 6, TT + 6, TT + 6))
        a('v_mul_f32 v%d, v%d, v%d' % (CR, CR, TT + 6))
        a('v_mul_f32 v%d, v%d, v%d' % (CI, CI, TT + 6))
        a('v_mov_b32 v%d, v%d' % (L32R, LR))
        a('v_mov_b32 v%d, v%d' % (L32I, LI))
        for _ in range(5):
            cmul(a, L32R, L32I, L32R, L32I, L32R, L32I, TT + 7)
        a('v_mov_b32 v%d, v%d' % (L256R, L32R))
        a('v_mov_b32 v%d, v%d' % (L256I, L32I))
        for _ in range(3):
            cmul(a, L256R, L256I, L256R, L256I, L256R, L256I, TT + 7)
        a('s_lshl_b32 s5, %s, 2' % S_NT)
        a('s_add_u32 s5, s5, 64')
        a('v_mov_b32 v%d, s5' % V_OFF)
        a('s_lshl_b32 s5, 1, %s' % S_MT)
        a('v_mov_b32 v%d, s5' % V_BIT)
        a('v_and_b32 v%d, 1, v%d' % (T0, V_LANE))
        a('v_mov_b32 v%d, 0x05040100' % V_SEL)
        a('v_mov_b32 v%d, 0x03020706' % T1)
        a('v_cmp_eq_u32 vcc, 1, v%d' % T0)
        a('v_cndmask_b32 v%d, v%d, v%d, vcc' % (V_SEL, V_SEL, T1))
        a('s_lshl_b32 s5, %s, 14' % S_WM)
        a('s_lshl_b32 s6, %s, 6' % S_WN)
        a('s_add_u32 s5, s5, s6')
        a('v_lshl_add_u32 v%d, v%d, 13, s5' % (V_HW, V_HH))
        a('v_lshl_add_u32 v%d, v%d, 7, v%d' % (V_HW, T0, V_HW))
        a('v_and_b32 v%d, 30, v%d' % (T1, V_L31))
        a('v_lshl_add_u32 v%d, v%d, 1, v%d' % (V_HW, T1, V_HW))
        a('s_lshl_b32 s5, %s, 8' % S_MT)
        a('s_lshl_b32 s6, %s, 5' % S_WAVE)
        a('s_add_u32 s5, s5, s6')
        a('v_lshrrev_b32 v%d, 4, v%d' % (T1, V_LANE))
        a('v_add_u32 v%d, s5, v%d' % (T1, T1))
        a('v_lshlrev_b32 v%d, 12, v%d' % (V_H, T1))
        a('v_bfe_u32 v%d, v%d, 3, 1' % (T1, V_LANE))
        a('v_lshl_add_u32 v%d, v%d, 11, v%d' % (V_H, T1, V_H))
        a('v_and_b32 v%d, 7, v%d' % (T1, V_LANE))
        a('v_lshl_add_u32 v%d, v%d, 4, v%d' % (V_H, T1, V_H))
        a('s_lshl_b32 s5, %s, 7' % S_NT)
        a('v_add_u32 v%d, s5, v%d' % (V_H, V_H))
        a('s_lshl_b32 s5, %s, 1' % S_WM)
        a('v_add_u32 v%d, s5, v%d' % (V_Q, V_HH))

    def acc(tm, tn):
        return vr(ACC + 32 * tm + 16 * tn, 16)

    stamp(a, 1)
    wgt(a, 1)
    ringA = Ring(32768, 3, ['s67', 's68', 's79'], S_TMP)
    ringB = Ring(16384, 3, ['s12', 's13', 's14'], S_TMP)
    sbg = [(S_MB, [(VW[j], 's[52:55]', S_O2, j * 1024) for j in range(4)])]
    PFS = int(os.environ.get('PFS', '0'))
    exn = None
    if PFS:
        from asmlib import Asm
        exn = {}
        for n, (ptr, nbytes) in enumerate([('Cre', 2 << 20), ('Cim', 2 << 20), ('wo', 2 << 20)]):
            t = Asm()
            t('s_lshl_b32 s5, %s, 4' % S_MT)
            t('s_add_u32 s5, s5, %s' % S_NT)
            t('s_lshl_b32 s5, s5, 2')
            t('s_add_u32 s5, s5, %s' % S_WAVE)
            t('s_sub_u32 s5, s5, 4')
            srd(t, 96, ptr, nbytes)
            t('s_mul_i32 s6, s5, 4096')
            t('v_min_u32 v%d, 31, v%d' % (T0, V_LANE))
            t('v_lshlrev_b32 v%d, 7, v%d' % (T0, T0))
            t('buffer_load_dword v255, v%d, s[96:99], s6 offen' % T0)
            exn[PFS + 2 * n] = {1: [list(t.lines)]}
    if S16:
        run_roles(a, 'k1b', ringA, ringB, sbg, extra_none=exn, TM=4, TN=4, PD=1, NS=2, FR=FR, vA=VA,
                  offA=[0, 2048, 4096, 6144], bmode='kc', vB=VB, offB=[0, 2048, 8192, 10240],
                  acc=lambda tm, tn: vr(ACC + 16 * tm + 4 * tn, 4), swap=lambda tm, tn: False,
                  s_cnt=S_CNT, mid=mid, s16=True)
    else:
        run_roles(a, 'k1b', ringA, ringB, sbg, extra_none=exn, TM=2, TN=2, PD=PDB, NS=2 * PDB, FR=FR, vA=VA, offA=[0, 4096],
                  bmode='kc', vB=VB, offB=[0, 8192], acc=acc, swap=lambda tm, tn: False,
                  s_cnt=S_CNT, mid=mid)
    stamp(a, 2)
    wgt(a, 2)
    if FUSE and not os.environ.get('NO_PF3') and not PFS:
        prefetch_tail(a, [('Cre', 2 << 20), ('Cim', 2 << 20), ('wo', 2 << 20)], 255, T0)

    def ure(i):
        if S16:
            return ACC + 16 * (i >> 3) + (i & 7)
        return ACC + 32 * (i >> 4) + (i & 15)

    def uim(i):
        return ure(i) + (8 if S16 else 16)

    if S16:
        for tm in range(4):
            for half in range(2):
                for j in range(4):
                    r = ACC + 16 * tm + 8 * half + j
                    a('v_permlane16_swap_b32 v%d, v%d' % (r, r + 4))

    ER, EI = 112, 113
    t = 114
    BU = 144
    CP1, CP2, LP1, LP2 = 208, 210, 212, 214

    def pk_step(h, i, tt):
        a('v_pk_fma_f32 %s, %s, %s, %s op_sel:[1,0,0] op_sel_hi:[0,1,1]' % (vr(tt, 2), vr(h, 2), vr(LP2, 2), vr(BU + 2 * i, 2)))
        a('v_pk_fma_f32 %s, %s, %s, %s' % (vr(h, 2), vr(h, 2), vr(LP1, 2), vr(tt, 2)))

    if PKB:
        a('v_mov_b32 v%d, v%d' % (CP1, CR))
        a('v_mov_b32 v%d, v%d' % (CP1 + 1, CI))
        a('v_xor_b32 v%d, 0x80000000, v%d' % (CP2, CI))
        a('v_mov_b32 v%d, v%d' % (CP2 + 1, CR))
        a('v_mov_b32 v%d, v%d' % (LP1, LR))
        a('v_mov_b32 v%d, v%d' % (LP1 + 1, LR))
        a('v_xor_b32 v%d, 0x80000000, v%d' % (LP2, LI))
        a('v_mov_b32 v%d, v%d' % (LP2 + 1, LI))
        for i in range(32):
            h = i & 1
            r, m = ure(i & ~1), uim(i & ~1)
            tt = t + 2 * (i & 1)
            a('v_pk_mul_f32 %s, %s, %s op_sel:[%d,0] op_sel_hi:[%d,1]' % (vr(tt, 2), vr(r, 2), vr(CP1, 2), h, h))
            a('v_pk_fma_f32 %s, %s, %s, %s op_sel:[%d,0,0] op_sel_hi:[%d,1,1]' %
              (vr(BU + 2 * i, 2), vr(m, 2), vr(CP2, 2), vr(tt, 2), h, h))
            if i == 1:
                a('v_mov_b32 v%d, v%d' % (ER, BU))
                a('v_mov_b32 v%d, v%d' % (EI, BU + 1))
            if i >= 1:
                pk_step(ER, i, t + 4)
    else:
      for i in range(32):
        r, m = ure(i), uim(i)
        a('v_mul_f32 v%d, v%d, v%d' % (t, CI, m))
        a('v_mul_f32 v%d, v%d, v%d' % (t + 1, CI, r))
        a('v_fma_f32 v%d, v%d, v%d, -v%d' % (r, CR, r, t))
        a('v_fma_f32 v%d, v%d, v%d, v%d' % (m, CR, m, t + 1))
        if i == 0:
            a('v_mov_b32 v%d, v%d' % (ER, r))
            a('v_mov_b32 v%d, v%d' % (EI, m))
        else:
            cfma(a, ER, EI, LR, LI, r, m, t + 2)
    a('s_barrier')
    a('s_lshl_b32 s5, %s, 8' % S_WN)
    a('v_lshl_add_u32 v%d, v%d, 3, s5' % (T0, V_L31))
    a('v_lshl_add_u32 v%d, v%d, 9, v%d' % (T1, V_Q, T0))
    a('ds_write_b64 v%d, %s' % (T1, vr(ER, 2)))
    a('s_waitcnt lgkmcnt(0)')
    a('s_barrier')
    E = 120
    for q in range(8):
        a('ds_read_b64 %s, v%d offset:%d' % (vr(E + 2 * q, 2), T0, q * 512))
    PR, PI, WR, WI, SPR, SPI, SWR, SWI = 136, 137, 138, 139, 140, 141, 142, 143
    a('v_mov_b32 v%d, 0' % PR)
    a('v_mov_b32 v%d, 0' % PI)
    a('v_mov_b32 v%d, 1.0' % WR)
    a('v_mov_b32 v%d, 0' % WI)
    a('v_mov_b32 v%d, 0' % SPR)
    a('v_mov_b32 v%d, 0' % SPI)
    a('v_mov_b32 v%d, 1.0' % SWR)
    a('v_mov_b32 v%d, 0' % SWI)
    a('s_waitcnt lgkmcnt(0)')
    for q in range(8):
        cfma(a, PR, PI, L32R, L32I, E + 2 * q, E + 2 * q + 1, t)
        if q < 7:
            cmul(a, WR, WI, WR, WI, L32R, L32I, t + 2)
            a('v_cmp_eq_u32 vcc, %d, v%d' % (q + 1, V_Q))
            a('v_cndmask_b32 v%d, v%d, v%d, vcc' % (SPR, SPR, PR))
            a('v_cndmask_b32 v%d, v%d, v%d, vcc' % (SPI, SPI, PI))
            a('v_cndmask_b32 v%d, v%d, v%d, vcc' % (SWR, SWR, WR))
            a('v_cndmask_b32 v%d, v%d, v%d, vcc' % (SWI, SWI, WI))
    srd(a, 60, 'ws', 65536, WS_AGG)
    a('v_lshlrev_b32 v%d, 3, v%d' % (T2, V_P2))
    a('s_lshl_b32 s5, %s, 13' % S_MT)
    a('s_cmp_lg_u32 %s, 0' % S_WM)
    a('s_cbranch_scc1 k1b_nopub')
    a('buffer_store_dwordx2 %s, v%d, s[60:63], s5 offen sc1' % (vr(PR, 2), T2))
    a('s_waitcnt vmcnt(0)')
    a.label('k1b_nopub')
    a('s_barrier')
    a('s_cmp_lg_u32 %s, 0' % S_WAVE)
    a('s_cbranch_scc1 k1b_nosig')
    a('s_mov_b64 exec, 1')
    a('global_atomic_or v%d, v%d, s[44:45] sc1' % (V_OFF, V_BIT))
    a('s_mov_b64 exec, -1')
    a.label('k1b_nosig')
    stamp(a, 3)
    if (not FUSE) or WGTA:
        wgt(a, 3)
    a('s_lshl_b32 s7, 1, %s' % S_MT)
    a('s_sub_u32 s7, s7, 1')
    stamp(a, 4)
    if (not FUSE) or WGTA:
        wgt(a, 4)
    poll(a, 'k1b_poll', V_OFF, T0, 's7', 'and')
    stamp(a, 5)
    if (not FUSE) or WGTA:
        wgt(a, 5)
    for m in range(7):
        a('buffer_load_dwordx2 %s, v%d, s[60:63], %s offen sc1' % (vr(E + 2 * m, 2), T2, '0' if m == 0 else 's6'))
        a('s_mov_b32 s6, 0x%x' % ((m + 1) * 8192))
    HR, HI = 112, 113
    a('v_mov_b32 v%d, 0' % HR)
    a('v_mov_b32 v%d, 0' % HI)
    a('s_waitcnt vmcnt(0)')
    for m in range(7):
        a('s_cmp_le_u32 %s, %d' % (S_MT, m))
        a('s_cbranch_scc1 k1b_hdone')
        cfma(a, HR, HI, L256R, L256I, E + 2 * m, E + 2 * m + 1, t)
    a.label('k1b_hdone')
    cfma(a, HR, HI, SWR, SWI, SPR, SPI, t)
    srd(a, 60, 'ws', 8 << 20, WS_H)
    for i in range(32):
        r, m = ure(i), uim(i)
        if PKB:
            pk_step(HR, i, t)
        else:
            cfma(a, HR, HI, LR, LI, r, m, t)
        w = 120 + (i & 3) * 3
        a('v_cvt_pk_bf16_f32 v%d, v%d, -v%d' % (w, HR, HI))
        a('v_mov_b32_dpp v%d, v%d quad_perm:[1,0,3,2] row_mask:0xf bank_mask:0xf' % (w + 1, w))
        a('v_perm_b32 v%d, v%d, v%d, v%d' % (w + 2, w + 1, w, V_SEL))
        a('ds_write_b32 v%d, v%d offset:%d' % (V_HW, w + 2, i * 256))
    a('s_waitcnt lgkmcnt(0)')
    a('s_barrier')
    a('s_lshl_b32 s5, %s, 13' % S_WAVE)
    a('v_lshl_add_u32 v%d, v%d, 4, s5' % (T0, V_LANE))
    for i in range(8):
        a('ds_read_b128 %s, v%d offset:%d' % (vr(144 + 4 * i, 4), T0, i * 1024))
    for i in range(8):
        a('s_mov_b32 s5, 0x%x' % (i * 4 * 4096))
        a('s_waitcnt lgkmcnt(%d)' % (7 - i))
        a('buffer_store_dwordx4 %s, v%d, s[60:63], s5 offen%s' % (vr(144 + 4 * i, 4), V_H,
                                                                  os.environ.get('STH', ' sc1' if FUSE else '')))
    if FUSE:
        handoff_phase2(a, 'b')
        return
    if not os.environ.get('NO_PF3'):
        prefetch_tail(a, [('Cre', 2 << 20), ('Cim', 2 << 20), ('wo', 2 << 20)], 255, T0)
    stamp(a, 6)
    wgt(a, 6)
    stamp_flush(a, 7, 128, 44)
    wgt_flush(a, 7, 0)
    a('s_endpgm')
```

```python
import os
from gemm import Gemm, Ring, Stream
from gen import srd, kc_read_addrs, kn_read_addr, wgt, wgt_flush, WGT, S16, kc_read_addrs16, kn_read_addr16
from gen import WS_O, WS_H

V_LANE, V_L31, V_HH, T0, T1, T2 = 1, 2, 3, 4, 5, 6
VA = [8, 9, 10, 11]
VB = [12, 13, 14, 15]
VDA = [16, 17, 18, 19]
VDB = [20, 21, 22, 23]
V_OUT, V_X, V_LW, V_LR = 24, 25, 26, 27
V_D = 28
ACC = 64
FR = 128
XR = 192
S_WAVE, S_CNT, S_TMP = 's64', 's65', 's69'
S_OA, S_OB, S_MA, S_MB, S_MT, S_NT, S_WM, S_WN, S_T2 = 's70', 's71', 's72', 's73', 's74', 's75', 's76', 's77', 's78'
NB, ST = 4, 32768
AMOD = os.environ.get('AMOD', ' sc1')


def phase2(a, which, wait_fn):
    a.comment('==== phase 2 (%s)' % which)
    a('s_lshl_b32 %s, %s, 12' % (S_MA, S_WAVE))
    a('s_add_u32 %s, %s, 16384' % (S_MB, S_MA))
    a('s_lshl_b32 %s, s11, 7' % S_OA)
    a('s_mov_b32 %s, %s' % (S_OB, S_OA))
    a('s_mov_b32 s10, 0')
    a('s_lshl_b32 %s, %s, 13' % (S_TMP, S_WM))
    if S16:
        kc_read_addrs16(a, VA, V_LANE, S_TMP, 0, T0, T1)
    else:
        kc_read_addrs(a, VA, V_L31, V_HH, S_TMP, 0, T0, T1)
    a('s_lshl_b32 s5, %s, 7' % S_MT)
    a('s_lshl_b32 s6, %s, 6' % S_WM)
    a('s_add_u32 s5, s5, s6')
    a('s_lshl_b32 s6, %s, 7' % S_NT)
    a('s_lshl_b32 s7, %s, 6' % S_WN)
    a('s_add_u32 s6, s6, s7')
    a('v_lshrrev_b32 v%d, 4, v%d' % (T0, V_LANE))
    a('v_add_u32 v%d, s5, v%d' % (T0, T0))
    a('v_and_b32 v%d, 15, v%d' % (T1, V_LANE))
    a('v_lshl_add_u32 v%d, v%d, 2, s6' % (T1, T1))
    a('v_lshlrev_b32 v%d, 13, v%d' % (V_OUT, T0))
    a('v_lshl_add_u32 v%d, v%d, 2, v%d' % (V_OUT, T1, V_OUT))
    a('v_lshlrev_b32 v%d, 11, v%d' % (V_X, T0))
    a('v_lshl_add_u32 v%d, v%d, 1, v%d' % (V_X, T1, V_X))
    a('v_lshlrev_b32 v%d, 1, v%d' % (T2, T1))
    a('s_lshl_b32 s5, %s, 14' % S_WAVE)
    if S16:
        a('v_lshrrev_b32 v%d, 4, v%d' % (V_LW, V_LANE))
        a('v_lshlrev_b32 v%d, 10, v%d' % (V_LW, V_LW))
        a('v_and_b32 v%d, 15, v%d' % (V_LR, V_LANE))
        a('v_lshl_add_u32 v%d, v%d, 2, v%d' % (V_LW, V_LR, V_LW))
    else:
        a('v_lshlrev_b32 v%d, 10, v%d' % (V_LW, V_HH))
        a('v_lshl_add_u32 v%d, v%d, 2, v%d' % (V_LW, V_L31, V_LW))
    a('v_add_u32 v%d, s5, v%d' % (V_LW, V_LW))
    a('v_lshl_add_u32 v%d, v%d, 4, s5' % (V_LR, V_LANE))
    srd(a, 56, 'out', 2048 * 2048 * 4)

    def dma_kc_voffs(vd, s_row0, pitch_log2):
        a('s_lshl_b32 %s, %s, 5' % (S_T2, S_WAVE))
        a('s_add_u32 %s, %s, %s' % (S_T2, S_T2, s_row0))
        a('v_lshrrev_b32 v%d, 3, v%d' % (T0, V_LANE))
        a('v_add_u32 v%d, %s, v%d' % (T0, S_T2, T0))
        a('v_lshlrev_b32 v%d, %d, v%d' % (T0, pitch_log2, T0))
        a('v_lshrrev_b32 v%d, 4, v%d' % (T1, V_LANE))
        a('v_and_b32 v%d, 7, v%d' % (T2, V_LANE))
        a('v_xor_b32 v%d, v%d, v%d' % (T1, T1, T2))
        for j in range(4):
            a('v_xor_b32 v%d, %d, v%d' % (T2, (j & 1) * 4, T1))
            a('v_lshl_add_u32 v%d, v%d, 4, v%d' % (vd[j], T2, T0))
            c = (8 * j << pitch_log2) - j * 1024
            if c:
                a('v_add_u32 v%d, 0x%x, v%d' % (vd[j], c, vd[j]))

    ring = Ring(ST, NB, ['s67', 's68', 's79', 's9'], S_TMP)
    if S16:
        common = dict(TM=4, TN=4, ringA=ring, ringB=ring, PD=1, NS=2, FR=FR, vA=VA, offA=[0, 2048, 4096, 6144], s16=True,
                      acc=lambda tm, tn: 'v[%d:%d]' % (ACC + 4 * (4 * tm + tn), ACC + 4 * (4 * tm + tn) + 3),
                      swap=lambda tm, tn: False, s_cnt=S_CNT, pro_first=1, pro_between=wait_fn)
    else:
        common = dict(TM=2, TN=2, ringA=ring, ringB=ring, PD=2, NS=4, FR=FR, vA=VA, offA=[0, 4096],
                      acc=lambda tm, tn: 'v[%d:%d]' % (ACC + 16 * (2 * tm + tn), ACC + 16 * (2 * tm + tn) + 15),
                      swap=lambda tm, tn: False, s_cnt=S_CNT, pro_first=1, pro_between=wait_fn)
    grpA = [(S_MA, [(VDA[j], 's[48:51]', S_OA, j * 1024) for j in range(4)])]
    grpB = [(S_MB, [(VDB[j], 's[52:55]', S_OB, j * 1024) for j in range(4)])]

    def stage_out():
        if S16:
            for tm in range(4):
                for tn in range(4):
                    for r in range(4):
                        a('ds_write_b32 v%d, v%d offset:%d' % (V_LW, ACC + 4 * (4 * tm + tn) + r, (16 * tm + r) * 256 + tn * 64))
        for tm in range(0 if S16 else 2):
            for tn in range(2):
                for r in range(16):
                    row = 32 * tm + 8 * (r >> 2) + (r & 3)
                    a('ds_write_b32 v%d, v%d offset:%d' % (V_LW, ACC + 16 * (2 * tm + tn) + r, row * 256 + tn * 128))
        a('s_waitcnt lgkmcnt(0)')
        for i in range(16):
            a('ds_read_b128 v[%d:%d], v%d offset:%d' % (FR + 4 * i, FR + 4 * i + 3, V_LR, i * 1024))

    if which == 'b':
        srd(a, 60, 'Dsk', 2048)
        a('buffer_load_dwordx2 v[32:33], v%d, s[60:63], 0 offen' % T2)
        srd(a, 48, 'ws', 8 << 20, WS_H)
        srd(a, 52, 'Cre', 2 << 20)
        srd(a, 96, 'Bx', 4 << 20)
        for i in range(16):
            a('s_mov_b32 %s, 0x%x' % (S_T2, i * 4 * 2048))
            a('buffer_load_dwordx2 v[%d:%d], v%d, s[96:99], %s offen' % (XR + 2 * i, XR + 2 * i + 1, V_X, S_T2))
        a('s_lshl_b32 s5, %s, 7' % S_MT)
        dma_kc_voffs(VDA, 's5', 12)
        a('s_lshl_b32 s5, %s, 7' % S_NT)
        dma_kc_voffs(VDB, 's5', 11)
        a('s_lshl_b32 %s, %s, 13' % (S_TMP, S_WN))
        if S16:
            kc_read_addrs16(a, VB, V_LANE, S_TMP, 16384, T0, T1)
        else:
            kc_read_addrs(a, VB, V_L31, V_HH, S_TMP, 16384, T0, T1)
        sA = Stream(ring, grpA, ['s_add_u32 %s, %s, 128' % (S_OA, S_OA), 's_and_b32 %s, %s, 0x7ff' % (S_OA, S_OA),
                                 's_or_b32 %s, %s, s10' % (S_OA, S_OA)], mod=AMOD)
        sB = Stream(ring, grpB, ['s_add_u32 %s, %s, 128' % (S_OB, S_OB), 's_and_b32 %s, %s, 0x7ff' % (S_OB, S_OB)])
        g = Gemm(a, pfx='p2b', bmode='kc', vB=VB, offB=[0, 2048, 4096, 6144] if S16 else [0, 4096], streams=[sA, sB], **common)
        sw = ['s_mov_b32 s52, s36', 's_and_b32 s53, s37, 0xffff', 's_mov_b32 s10, 0x800',
              's_or_b32 %s, %s, s10' % (S_OA, S_OA)]
        g.run(32, switch=(16 - NB, sw))
        if not os.environ.get('WGTA'):
            wgt(a, 5)
        a('v_add_u32 v%d, 0x1000, v%d' % (V_OUT, V_OUT))
        a('v_lshlrev_b32 v%d, 16, v32' % V_D)
        a('v_and_b32 v%d, 0xffff0000, v32' % (V_D + 1))
        a('v_lshlrev_b32 v%d, 16, v33' % (V_D + 2))
        a('v_and_b32 v%d, 0xffff0000, v33' % (V_D + 3))
        stage_out()
        for i in range(16):
            x = XR + 2 * i
            t = ACC + 4 * (i & 3)
            c = FR + 4 * i
            a('v_lshlrev_b32 v%d, 16, v%d' % (t, x))
            a('v_and_b32 v%d, 0xffff0000, v%d' % (t + 1, x))
            a('v_lshlrev_b32 v%d, 16, v%d' % (t + 2, x + 1))
            a('v_and_b32 v%d, 0xffff0000, v%d' % (t + 3, x + 1))
            a('s_mov_b32 %s, 0x%x' % (S_T2, i * 4 * 8192))
            a('s_waitcnt lgkmcnt(%d)' % (15 - i))
            a('v_pk_fma_f32 v[%d:%d], v[%d:%d], v[%d:%d], v[%d:%d]' % (c, c + 1, t, t + 1, V_D, V_D + 1, c, c + 1))
            a('v_pk_fma_f32 v[%d:%d], v[%d:%d], v[%d:%d], v[%d:%d]' % (c + 2, c + 3, t + 2, t + 3, V_D + 2, V_D + 3, c + 2, c + 3))
            a('buffer_store_dwordx4 v[%d:%d], v%d, s[56:59], %s offen%s' % (c, c + 3, V_OUT, S_T2, os.environ.get('STOUT', '')))
    else:
        srd(a, 48, 'ws', 4 << 20, WS_O)
        srd(a, 52, 'wo', 2 << 20)
        a('s_lshl_b32 %s, s11, 17' % S_OB)
        a('s_lshl_b32 s5, %s, 7' % S_MT)
        dma_kc_voffs(VDA, 's5', 11)
        a('s_lshl_b32 s5, %s, 5' % S_WN)
        a('v_lshrrev_b32 v%d, 3, v%d' % (T0, V_LANE))
        a('v_add_u32 v%d, s5, v%d' % (T0, T0))
        a('v_lshlrev_b32 v%d, 11, v%d' % (T0, T0))
        a('s_lshl_b32 s5, %s, 8' % S_NT)
        a('s_lshl_b32 s6, %s, 7' % S_WM)
        a('s_add_u32 s5, s5, s6')
        a('v_add_u32 v%d, s5, v%d' % (T0, T0))
        a('v_bfe_u32 v%d, v%d, 4, 1' % (T1, V_LANE))
        a('v_lshlrev_b32 v%d, %d, v%d' % (T1, 1 if S16 else 2, T1))
        a('v_and_b32 v%d, 7, v%d' % (T2, V_LANE))
        a('v_xor_b32 v%d, v%d, v%d' % (T1, T1, T2))
        for j in range(4):
            if S16 and (j & 1):
                a('v_xor_b32 v%d, 4, v%d' % (T2, T1))
                a('v_lshl_add_u32 v%d, v%d, 4, v%d' % (VDB[j], T2, T0))
            else:
                a('v_lshl_add_u32 v%d, v%d, 4, v%d' % (VDB[j], T1, T0))
            if j:
                a('v_add_u32 v%d, 0x%x, v%d' % (VDB[j], 8 * j * 2048 - j * 1024, VDB[j]))
        a('s_lshl_b32 %s, %s, 13' % (S_TMP, S_WN))
        if S16:
            kn_read_addr16(a, VB, V_LANE, S_TMP, 16384, T0, T1)
        else:
            kn_read_addr(a, VB[0], VB[1], V_LANE, S_TMP, 16384, T0, T1)
        sA = Stream(ring, grpA, ['s_add_u32 %s, %s, 128' % (S_OA, S_OA), 's_and_b32 %s, %s, 0x7ff' % (S_OA, S_OA)],
                    mod=AMOD)
        sB = Stream(ring, grpB, ['s_add_u32 %s, %s, 0x20000' % (S_OB, S_OB), 's_and_b32 %s, %s, 0x1fffff' % (S_OB, S_OB)])
        g = Gemm(a, pfx='p2a', bmode='kn', vB=VB if S16 else VB[:2],
                 offB=[(t, 0) for t in range(4)] if S16 else [(0, 0), (1, 0)], streams=[sA, sB], **common)
        g.run(16)
        if not os.environ.get('WGTA'):
            wgt(a, 5)
        stage_out()
        for i in range(16):
            c = FR + 4 * i
            t = ACC + 2 * (i & 3)
            a('s_mov_b32 %s, 0x%x' % (S_T2, i * 4 * 8192))
            a('s_waitcnt lgkmcnt(%d)' % (15 - i))
            a('v_cvt_pk_bf16_f32 v%d, v%d, v%d' % (t, c, c + 1))
            a('v_cvt_pk_bf16_f32 v%d, v%d, v%d' % (t + 1, c + 2, c + 3))
            a('v_lshlrev_b32 v%d, 16, v%d' % (c, t))
            a('v_and_b32 v%d, 0xffff0000, v%d' % (c + 1, t))
            a('v_lshlrev_b32 v%d, 16, v%d' % (c + 2, t + 1))
            a('v_and_b32 v%d, 0xffff0000, v%d' % (c + 3, t + 1))
            a('buffer_store_dwordx4 v[%d:%d], v%d, s[56:59], %s offen%s' % (c, c + 3, V_OUT, S_T2, os.environ.get('STOUT', '')))
    if WGT:
        a('s_waitcnt vmcnt(0)')
    if not os.environ.get('WGTA'):
        wgt(a, 6)
    wgt_flush(a, 7, 0)
    a('s_endpgm')
```

```python
import sys, os
sys.path.insert(0, os.path.dirname(os.path.abspath(__file__)))
from asmlib import Asm
from gemm import Gemm, Ring, Stream

NAME = 'concat_heads__linear_kernel_hedgehog__ssm_conv_s5__prompt'

WS_O = 0
WS_H = 4 << 20
WS_KVP = 12 << 20
WS_ZP = 15 << 20
WS_AGG = 16 << 20

P = dict(Ax='s[16:17]', wqkv='s[18:19]', wphi='s[20:21]', wo='s[22:23]', Bx='s[24:25]', Lre='s[26:27]',
         Lim='s[28:29]', Bre='s[30:31]', Bim='s[32:33]', Cre='s[34:35]', Cim='s[36:37]', logdt='s[38:39]',
         Dsk='s[40:41]', out='s[42:43]', dbg='s[44:45]', ws='s[46:47]')
PN = dict(Ax=16, wqkv=18, wphi=20, wo=22, Bx=24, Lre=26, Lim=28, Bre=30, Bim=32, Cre=34, Cim=36, logdt=38,
          Dsk=40, out=42, dbg=44, ws=46)


def srd(a, d, ptr, nbytes, off=0):
    p = PN[ptr]
    if off:
        a('s_add_u32 s%d, s%d, 0x%x' % (d, p, off))
        a('s_addc_u32 s%d, s%d, 0' % (d + 1, p + 1))
        a('s_and_b32 s%d, s%d, 0xffff' % (d + 1, d + 1))
    else:
        a('s_mov_b32 s%d, s%d' % (d, p))
        a('s_and_b32 s%d, s%d, 0xffff' % (d + 1, p + 1))
    a('s_mov_b32 s%d, 0x%x' % (d + 2, nbytes))
    a('s_mov_b32 s%d, 0x00020000' % (d + 3))


STAMP = os.environ.get('STAMP')
def stamp(a, i):
    if not STAMP:
        return
    a('s_memtime s[%d:%d]' % (80 + 2 * i, 81 + 2 * i))
    if i == 0:
        a('s_memrealtime s[94:95]')


WGT = os.environ.get('WGT')
def wgt(a, i):
    if not WGT:
        return
    a('s_memrealtime s[%d:%d]' % (80 + 2 * i, 81 + 2 * i))
    if i == 1:
        a('s_memtime s[94:95]')
    if i == 2:
        a('s_memtime s[100:101]')


def wgt_flush(a, n, slot):
    if not WGT:
        return
    a('s_waitcnt lgkmcnt(0)')
    if os.environ.get('DBGT'):
        a('s_not_b32 s80, s80')
        a('s_lshr_b32 s5, s2, 7')
        a('s_mul_i32 s5, s5, 24')
        a('s_mov_b64 exec, 1')
        for i in range(n):
            if i == 0:
                a('v_mov_b32 v1, 0')
            else:
                a('s_add_u32 s6, s5, %d' % (4 * i))
                a('v_mov_b32 v1, s6')
            a('v_mov_b32 v2, s%d' % (80 + 2 * i))
            a('global_atomic_umax v1, v2, s[44:45] sc1')
        a('s_mov_b64 exec, -1')
        return
    srd(a, 96, 'ws', 1 << 20, (48 << 20) + slot * 65536)
    a('s_lshl_b32 s5, s2, 5')
    a('v_mov_b32 v1, 0')
    for i in range(n):
        a('v_mov_b32 v2, s%d' % (80 + 2 * i))
        a('buffer_store_dword v2, v1, s[96:99], s5 offen offset:%d' % (4 * i))
    a('s_sub_u32 s94, s100, s94')
    a('v_mov_b32 v2, s94')
    a('buffer_store_dword v2, v1, s[96:99], s5 offen offset:28')


def stamp_flush(a, n, wg=0, base=32):
    if not STAMP:
        return
    a('s_memrealtime s[100:101]')
    a('s_waitcnt lgkmcnt(0)')
    a('s_cmp_lg_u32 s2, %d' % wg)
    a('s_cbranch_scc1 stamp_skip_%d' % len(a.lines))
    lab = 'stamp_skip_%d' % (len(a.lines) - 1)
    srd(a, 96, 'dbg', 256)
    a('v_mov_b32 v1, 0')
    for i in range(n):
        a('v_mov_b32 v2, s%d' % (80 + 2 * i))
        a('buffer_store_dword v2, v1, s[96:99], 0 offen offset:%d' % (4 * i + 4 * base))
    a('v_mov_b32 v2, s94')
    a('buffer_store_dword v2, v1, s[96:99], 0 offen offset:%d' % (4 * base + 32))
    a('v_mov_b32 v2, s100')
    a('buffer_store_dword v2, v1, s[96:99], 0 offen offset:%d' % (4 * base + 36))
    a.label(lab)


def kernel_head(a, name, nwg):
    a.lines.append('.globl %s' % name)
    a.lines.append('.p2align 8')
    a.lines.append('.type %s,@function' % name)
    a.label(name)
    a('s_cmp_ge_u32 s2, %d' % nwg)
    a('s_cbranch_scc1 %s_exit' % name)
    a('s_load_dwordx16 s[16:31], s[0:1], 0')
    a('s_load_dwordx16 s[32:47], s[0:1], 64')
    stamp(a, 0)
    wgt(a, 0)


def lane_consts(a, v_lane, v_l31, v_hh, s_wave, vtmp):
    a('v_and_b32 v%d, 63, v0' % v_lane)
    a('v_and_b32 v%d, 31, v0' % v_l31)
    a('v_bfe_u32 v%d, v0, 5, 1' % v_hh)
    a('v_lshrrev_b32 v%d, 6, v0' % vtmp)
    a('v_readfirstlane_b32 %s, v%d' % (s_wave, vtmp))


def kc_read_addrs(a, vdst4, v_l31, v_hh, s_rowbase128, tilebase, t0, t1):
    a('v_bfe_u32 v%d, v%d, 1, 3' % (t0, v_l31))
    a('v_lshlrev_b32 v%d, 7, v%d' % (t1, v_l31))
    a('v_add_u32 v%d, %s, v%d' % (t1, s_rowbase128, t1))
    if tilebase:
        a('v_add_u32 v%d, 0x%x, v%d' % (t1, tilebase, t1))
    for j in range(4):
        d = vdst4[j]
        a('v_or_b32 v%d, %d, v%d' % (d, 2 * j, v_hh))
        a('v_xor_b32 v%d, v%d, v%d' % (d, d, t0))
        a('v_lshl_add_u32 v%d, v%d, 4, v%d' % (d, d, t1))


S16 = not os.environ.get('NO_S16')


def kc_read_addrs16(a, vdst2, v_lane, s_rowbase128, tilebase, t0, t1):
    a('v_bfe_u32 v%d, v%d, 1, 3' % (t0, v_lane))
    a('v_and_b32 v%d, 15, v%d' % (t1, v_lane))
    a('v_lshlrev_b32 v%d, 7, v%d' % (t1, t1))
    a('v_add_u32 v%d, %s, v%d' % (t1, s_rowbase128, t1))
    if tilebase:
        a('v_add_u32 v%d, 0x%x, v%d' % (t1, tilebase, t1))
    for j in range(2):
        d = vdst2[j]
        a('v_lshrrev_b32 v%d, 4, v%d' % (d, v_lane))
        if j:
            a('v_or_b32 v%d, 4, v%d' % (d, d))
        a('v_xor_b32 v%d, v%d, v%d' % (d, d, t0))
        a('v_lshl_add_u32 v%d, v%d, 4, v%d' % (d, d, t1))


def kn_read_addr16(a, vds, v_lane, s_base, tilebase, t0, t1, s_xor=None):
    d = vds[0]
    a('v_lshrrev_b32 v%d, 4, v%d' % (t0, v_lane))
    a('v_lshlrev_b32 v%d, 10, v%d' % (d, t0))
    a('v_bfe_u32 v%d, v%d, 2, 2' % (t0, v_lane))
    a('v_lshl_add_u32 v%d, v%d, 7, v%d' % (d, t0, d))
    a('v_bfe_u32 v%d, v%d, 3, 2' % (t0, v_lane))
    a('v_lshl_add_u32 v%d, v%d, 5, v%d' % (d, t0, d))
    a('v_and_b32 v%d, 3, v%d' % (t0, v_lane))
    a('v_lshl_add_u32 v%d, v%d, 3, v%d' % (d, t0, d))
    if s_xor:
        a('v_xor_b32 v%d, %s, v%d' % (d, s_xor, d))
    a('v_add_u32 v%d, %s, v%d' % (d, s_base, d))
    if tilebase:
        a('v_add_u32 v%d, 0x%x, v%d' % (d, tilebase, d))
    for t in range(1, len(vds)):
        a('v_xor_b32 v%d, %d, v%d' % (vds[t], 32 * t, d))


def kn_read_addr(a, vd0, vd1, v_lane, s_base, tilebase, t0, t1):
    a('v_bfe_u32 v%d, v%d, 5, 1' % (t0, v_lane))
    a('v_lshlrev_b32 v%d, 10, v%d' % (vd0, t0))
    a('v_bfe_u32 v%d, v%d, 2, 2' % (t0, v_lane))
    a('v_lshl_add_u32 v%d, v%d, 7, v%d' % (vd0, t0, vd0))
    a('v_bfe_u32 v%d, v%d, 3, 1' % (t0, v_lane))
    a('v_lshl_add_u32 v%d, v%d, 6, v%d' % (vd0, t0, vd0))
    a('v_bfe_u32 v%d, v%d, 4, 1' % (t0, v_lane))
    a('v_lshl_add_u32 v%d, v%d, 5, v%d' % (vd0, t0, vd0))
    a('v_and_b32 v%d, 3, v%d' % (t0, v_lane))
    a('v_lshl_add_u32 v%d, v%d, 3, v%d' % (vd0, t0, vd0))
    if vd1 is not None:
        a('v_xor_b32 v%d, 64, v%d' % (vd1, vd0))
    a('v_add_u32 v%d, %s, v%d' % (vd0, s_base, vd0))
    if tilebase:
        a('v_add_u32 v%d, 0x%x, v%d' % (vd0, tilebase, vd0))
    if vd1 is not None:
        a('v_add_u32 v%d, %s, v%d' % (vd1, s_base, vd1))
        if tilebase:
            a('v_add_u32 v%d, 0x%x, v%d' % (vd1, tilebase, vd1))


def gen_k3(a):
    name = 'k3_kernel'
    kernel_head(a, name, 256)
    V_LANE, V_L31, V_HH, T0, T1, T2 = 1, 2, 3, 4, 5, 6
    VA = [8, 9, 10, 11]
    VB = [12, 13, 14, 15]
    VDA = [16, 17, 18, 19]
    VDB = [20, 21, 22, 23]
    V_OUT, V_X, V_LW, V_LR = 24, 25, 26, 27
    V_D = 28
    ACC = 64
    FR = 128
    XR = 192
    S_WAVE, S_CNT, S_WROFF, S_D0, S_D1, S_TMP = 's64', 's65', 's66', 's67', 's68', 's69'
    S_OA, S_OB, S_MA, S_MB, S_MT, S_NT, S_WM, S_WN, S_T2 = 's70', 's71', 's72', 's73', 's74', 's75', 's76', 's77', 's78'
    NB, ST = 4, 32768
    lane_consts(a, V_LANE, V_L31, V_HH, S_WAVE, T0)
    a('s_and_b32 s3, s2, 7')
    a('s_lshr_b32 s4, s2, 3')
    a('s_and_b32 s5, s4, 3')
    a('s_and_b32 s6, s3, 3')
    a('s_lshl_b32 s6, s6, 2')
    a('s_add_u32 %s, s6, s5' % S_MT)
    a('s_bfe_u32 s5, s4, 0x20002')
    a('s_lshr_b32 s6, s3, 2')
    a('s_lshl_b32 s6, s6, 2')
    a('s_add_u32 %s, s6, s5' % S_NT)
    a('s_lshr_b32 %s, %s, 1' % (S_WM, S_WAVE))
    a('s_and_b32 %s, %s, 1' % (S_WN, S_WAVE))
    a('s_lshl_b32 %s, %s, 12' % (S_MA, S_WAVE))
    a('s_add_u32 %s, %s, 16384' % (S_MB, S_MA))
    if os.environ.get('NO_ROT3'):
        a('s_mov_b32 s11, 0')
    else:
        a('s_lshl_b32 s5, s3, 1')
        a('s_bfe_u32 s6, s4, 0x10004')
        a('s_add_u32 s11, s5, s6')
    a('s_lshl_b32 %s, s11, 7' % S_OA)
    a('s_mov_b32 %s, %s' % (S_OB, S_OA))
    a('s_mov_b32 s10, 0')
    if os.environ.get('EXP_STAG'):
        a('s_lshr_b32 s5, s2, 3')
        a('s_and_b32 s5, s5, 15')
        a('s_lshl_b32 %s, s5, 7' % S_OA)
        a('s_lshl_b32 %s, s5, 7' % S_OB)
    if os.environ.get('EXP_ONLYB'):
        a('s_bitcmp1_b32 s4, 4')
        a('s_cbranch_scc1 k3_kernel_exit')
    a('s_lshl_b32 %s, %s, 13' % (S_TMP, S_WM))
    kc_read_addrs(a, VA, V_L31, V_HH, S_TMP, 0, T0, T1)
    a('s_lshl_b32 s5, %s, 7' % S_MT)
    a('s_lshl_b32 s6, %s, 6' % S_WM)
    a('s_add_u32 s5, s5, s6')
    a('s_lshl_b32 s6, %s, 7' % S_NT)
    a('s_lshl_b32 s7, %s, 6' % S_WN)
    a('s_add_u32 s6, s6, s7')
    a('v_lshrrev_b32 v%d, 4, v%d' % (T0, V_LANE))
    a('v_add_u32 v%d, s5, v%d' % (T0, T0))
    a('v_and_b32 v%d, 15, v%d' % (T1, V_LANE))
    a('v_lshl_add_u32 v%d, v%d, 2, s6' % (T1, T1))
    a('v_lshlrev_b32 v%d, 13, v%d' % (V_OUT, T0))
    a('v_lshl_add_u32 v%d, v%d, 2, v%d' % (V_OUT, T1, V_OUT))
    a('v_lshlrev_b32 v%d, 11, v%d' % (V_X, T0))
    a('v_lshl_add_u32 v%d, v%d, 1, v%d' % (V_X, T1, V_X))
    a('v_lshlrev_b32 v%d, 1, v%d' % (T2, T1))
    a('s_lshl_b32 s5, %s, 14' % S_WAVE)
    a('v_lshlrev_b32 v%d, 10, v%d' % (V_LW, V_HH))
    a('v_lshl_add_u32 v%d, v%d, 2, v%d' % (V_LW, V_L31, V_LW))
    a('v_add_u32 v%d, s5, v%d' % (V_LW, V_LW))
    a('v_lshl_add_u32 v%d, v%d, 4, s5' % (V_LR, V_LANE))
    a('s_waitcnt lgkmcnt(0)')
    srd(a, 56, 'out', 2048 * 2048 * 4)
    a('s_bitcmp1_b32 s4, 4')
    a('s_cbranch_scc1 k3_outa')

    def dma_kc_voffs(vd, s_row0, pitch_log2):
        a('s_lshl_b32 %s, %s, 5' % (S_T2, S_WAVE))
        a('s_add_u32 %s, %s, %s' % (S_T2, S_T2, s_row0))
        a('v_lshrrev_b32 v%d, 3, v%d' % (T0, V_LANE))
        a('v_add_u32 v%d, %s, v%d' % (T0, S_T2, T0))
        if os.environ.get('EXP_PITCH'):
            a('v_mul_u32_u24 v%d, %d, v%d' % (T0, (1 << pitch_log2) - 128 * int(os.environ['EXP_PITCH']), T0))
        else:
            a('v_lshlrev_b32 v%d, %d, v%d' % (T0, pitch_log2, T0))
        a('v_lshrrev_b32 v%d, 4, v%d' % (T1, V_LANE))
        a('v_and_b32 v%d, 7, v%d' % (T2, V_LANE))
        a('v_xor_b32 v%d, v%d, v%d' % (T1, T1, T2))
        for j in range(4):
            a('v_xor_b32 v%d, %d, v%d' % (T2, (j & 1) * 4, T1))
            a('v_lshl_add_u32 v%d, v%d, 4, v%d' % (vd[j], T2, T0))
            c = (8 * j << pitch_log2) - j * 1024
            if os.environ.get('EXP_PITCH'):
                c = 8 * j * ((1 << pitch_log2) - 128 * int(os.environ['EXP_PITCH'])) - j * 1024
            if c:
                a('v_add_u32 v%d, 0x%x, v%d' % (vd[j], c, vd[j]))

    ring = Ring(ST, NB, ['s67', 's68', 's79', 's9'], S_TMP)
    common = dict(TM=2, TN=2, ringA=ring, ringB=ring, PD=2, NS=4, FR=FR, vA=VA, offA=[0, 4096],
                  acc=lambda tm, tn: 'v[%d:%d]' % (ACC + 16 * (2 * tm + tn), ACC + 16 * (2 * tm + tn) + 15),
                  swap=lambda tm, tn: False,
                  s_cnt=S_CNT)

    srd(a, 60, 'Dsk', 2048)
    a('buffer_load_dwordx2 v[32:33], v%d, s[60:63], 0 offen' % T2)
    srd(a, 48, 'ws', 8 << 20, WS_H)
    srd(a, 52, 'Cre', 2 << 20)
    srd(a, 96, 'Bx', 4 << 20)
    a('s_lshl_b32 s5, %s, 7' % S_MT)
    dma_kc_voffs(VDA, 's5', 12)
    a('s_lshl_b32 s5, %s, 7' % S_NT)
    dma_kc_voffs(VDB, 's5', 11)
    a('s_lshl_b32 %s, %s, 13' % (S_TMP, S_WN))
    kc_read_addrs(a, VB, V_L31, V_HH, S_TMP, 16384, T0, T1)
    g = Gemm(a, pfx='k3b', bmode='kc', vB=VB, offB=[0, 4096],
             streams=[Stream(ring, [(S_MA, [(VDA[j], 's[48:51]', S_OA, j * 1024) for j in range(4)]),
                                    (S_MB, [(VDB[j], 's[52:55]', S_OB, j * 1024) for j in range(4)])],
                             ['s_add_u32 %s, %s, 128' % (S_OB, S_OB), 's_and_b32 %s, %s, 0x7ff' % (S_OB, S_OB),
                              's_or_b32 %s, %s, s10' % (S_OA, S_OB)])], **common)
    sw = ['s_mov_b32 s52, s36', 's_and_b32 s53, s37, 0xffff', 's_mov_b32 s10, 0x800',
          's_or_b32 %s, %s, s10' % (S_OA, S_OB)]
    xl = []
    for i in range(16):
        xl.append(['s_mov_b32 %s, 0x%x' % (S_T2, i * 4 * 2048),
                   'buffer_load_dwordx2 v[%d:%d], v%d, s[96:99], %s offen' % (XR + 2 * i, XR + 2 * i + 1, V_X, S_T2)])
    def midx(n):
        for grp in xl:
            for x in grp:
                a(x)
    g.mid = midx
    g.n_extra_vm = 16
    stamp(a, 1)
    wgt(a, 1)
    g.run(32, switch=(16 - NB, sw))
    stamp(a, 2)
    wgt(a, 2)

    def stage_out():
        for tm in range(2):
            for tn in range(2):
                for r in range(16):
                    row = 32 * tm + 8 * (r >> 2) + (r & 3)
                    a('ds_write_b32 v%d, v%d offset:%d' % (V_LW, ACC + 16 * (2 * tm + tn) + r, row * 256 + tn * 128))
        a('s_waitcnt lgkmcnt(0)')
        for i in range(16):
            a('ds_read_b128 v[%d:%d], v%d offset:%d' % (FR + 4 * i, FR + 4 * i + 3, V_LR, i * 1024))

    a('v_add_u32 v%d, 0x1000, v%d' % (V_OUT, V_OUT))
    a('v_lshlrev_b32 v%d, 16, v32' % V_D)
    a('v_and_b32 v%d, 0xffff0000, v32' % (V_D + 1))
    a('v_lshlrev_b32 v%d, 16, v33' % (V_D + 2))
    a('v_and_b32 v%d, 0xffff0000, v33' % (V_D + 3))
    stage_out()
    a('s_waitcnt vmcnt(0)')
    for i in range(16):
        x = XR + 2 * i
        t = ACC + 4 * (i & 3)
        c = FR + 4 * i
        a('v_lshlrev_b32 v%d, 16, v%d' % (t, x))
        a('v_and_b32 v%d, 0xffff0000, v%d' % (t + 1, x))
        a('v_lshlrev_b32 v%d, 16, v%d' % (t + 2, x + 1))
        a('v_and_b32 v%d, 0xffff0000, v%d' % (t + 3, x + 1))
        a('s_mov_b32 %s, 0x%x' % (S_T2, i * 4 * 8192))
        a('s_waitcnt lgkmcnt(%d)' % (15 - i))
        a('v_pk_fma_f32 v[%d:%d], v[%d:%d], v[%d:%d], v[%d:%d]' % (c, c + 1, t, t + 1, V_D, V_D + 1, c, c + 1))
        a('v_pk_fma_f32 v[%d:%d], v[%d:%d], v[%d:%d], v[%d:%d]' % (c + 2, c + 3, t + 2, t + 3, V_D + 2, V_D + 3, c + 2, c + 3))
        a('buffer_store_dwordx4 v[%d:%d], v%d, s[56:59], %s offen%s' % (c, c + 3, V_OUT, S_T2, os.environ.get('STOUT', '')))
    stamp(a, 3)
    wgt(a, 3)
    if STAMP or WGT:
        a('s_waitcnt vmcnt(0)')
    stamp(a, 4)
    for i in (4, 5, 6):
        wgt(a, i)
    stamp_flush(a, 5)
    wgt_flush(a, 7, 1)
    a('s_endpgm')

    a.label('k3_outa')
    srd(a, 48, 'ws', 4 << 20, WS_O)
    srd(a, 52, 'wo', 2 << 20)
    a('s_lshl_b32 %s, s11, 17' % S_OB)
    a('s_lshl_b32 s5, %s, 7' % S_MT)
    dma_kc_voffs(VDA, 's5', 11)
    a('s_lshl_b32 s5, %s, 5' % S_WN)
    a('v_lshrrev_b32 v%d, 3, v%d' % (T0, V_LANE))
    a('v_add_u32 v%d, s5, v%d' % (T0, T0))
    a('v_lshlrev_b32 v%d, 11, v%d' % (T0, T0))
    a('s_lshl_b32 s5, %s, 8' % S_NT)
    a('s_lshl_b32 s6, %s, 7' % S_WM)
    a('s_add_u32 s5, s5, s6')
    a('v_add_u32 v%d, s5, v%d' % (T0, T0))
    a('v_bfe_u32 v%d, v%d, 4, 1' % (T1, V_LANE))
    a('v_lshlrev_b32 v%d, 2, v%d' % (T1, T1))
    a('v_and_b32 v%d, 7, v%d' % (T2, V_LANE))
    a('v_xor_b32 v%d, v%d, v%d' % (T1, T1, T2))
    a('v_lshl_add_u32 v%d, v%d, 4, v%d' % (T0, T1, T0))
    for j in range(4):
        c = 8 * j * 2048 - j * 1024
        a('v_add_u32 v%d, 0x%x, v%d' % (VDB[j], c, T0))
    a('s_lshl_b32 %s, %s, 13' % (S_TMP, S_WN))
    kn_read_addr(a, VB[0], VB[1], V_LANE, S_TMP, 16384, T0, T1)
    g = Gemm(a, pfx='k3a', bmode='kn', vB=VB[:2], offB=[(0, 0), (1, 0)],
             streams=[Stream(ring, [(S_MA, [(VDA[j], 's[48:51]', S_OA, j * 1024) for j in range(4)]),
                                    (S_MB, [(VDB[j], 's[52:55]', S_OB, j * 1024) for j in range(4)])],
                             ['s_add_u32 %s, %s, 128' % (S_OA, S_OA), 's_and_b32 %s, %s, 0x7ff' % (S_OA, S_OA),
                              's_lshl_b32 %s, %s, 10' % (S_OB, S_OA)])], **common)
    wgt(a, 1)
    g.run(16)
    wgt(a, 2)
    stage_out()
    for i in range(16):
        c = FR + 4 * i
        t = ACC + 2 * (i & 3)
        a('s_mov_b32 %s, 0x%x' % (S_T2, i * 4 * 8192))
        a('s_waitcnt lgkmcnt(%d)' % (15 - i))
        a('v_cvt_pk_bf16_f32 v%d, v%d, v%d' % (t, c, c + 1))
        a('v_cvt_pk_bf16_f32 v%d, v%d, v%d' % (t + 1, c + 2, c + 3))
        a('v_lshlrev_b32 v%d, 16, v%d' % (c, t))
        a('v_and_b32 v%d, 0xffff0000, v%d' % (c + 1, t))
        a('v_lshlrev_b32 v%d, 16, v%d' % (c + 2, t + 1))
        a('v_and_b32 v%d, 0xffff0000, v%d' % (c + 3, t + 1))
        a('buffer_store_dwordx4 v[%d:%d], v%d, s[56:59], %s offen%s' % (c, c + 3, V_OUT, S_T2, os.environ.get('STOUT', '')))
    wgt(a, 3)
    if WGT:
        a('s_waitcnt vmcnt(0)')
    for i in (4, 5, 6):
        wgt(a, i)
    wgt_flush(a, 7, 1)
    a.label(name + '_exit')
    a('s_endpgm')


def descriptor(name, vgpr, accum, sgpr=102):
    return f'''.amdhsa_kernel {name}
  .amdhsa_next_free_vgpr {vgpr}
  .amdhsa_next_free_sgpr {sgpr}
  .amdhsa_accum_offset {accum}
  .amdhsa_group_segment_fixed_size 0
  .amdhsa_kernarg_size 128
  .amdhsa_user_sgpr_count 2
  .amdhsa_user_sgpr_kernarg_segment_ptr 1
  .amdhsa_system_sgpr_workgroup_id_x 1
.end_amdhsa_kernel
'''


def main():
    which = sys.argv[1] if len(sys.argv) > 1 else 'all'
    outp = sys.argv[2] if len(sys.argv) > 2 else 'cdna_kernels/%s.s' % NAME
    ref = open('cdna_kernels/%s.s.ref' % NAME).read().split('\n')
    head = [l for l in ref if l.startswith(';') and '@launch' not in l and 'Override launch' not in l
            and 'grid=ceil' not in l]
    launches = []
    a = Asm()
    descs = []
    if which in ('all', 'k1'):
        import k1
        k1.gen_k1(a)
        launches.append('; @launch kernel=k1_kernel grid=(256,1,1) block=(512,1,1) lds=%d' % k1.LDS_BYTES)
        descs.append(descriptor('k1_kernel', 256, 256))
    if which == 'k3' or (which == 'all' and os.environ.get('NO_FUSE')):
        gen_k3(a)
        launches.append('; @launch kernel=k3_kernel grid=(256,1,1) block=(256,1,1) lds=131072')
        descs.append(descriptor('k3_kernel', 256, 256))
    txt = '\n'.join(head) + '\n' + '\n'.join(launches) + '\n'
    txt += '.amdgcn_target "amdgcn-amd-amdhsa--gfx950"\n.text\n'
    if os.environ.get('NO_STORE'):
        a.lines = [l for l in a.lines if not (l.startswith('buffer_store') and 's[96:99]' not in l)]
    if os.environ.get('NO_XLOAD'):
        a.lines = [l for l in a.lines if not l.startswith('buffer_load_ushort')]
    txt += a.finish()
    txt += '.section .rodata,"a"\n'
    for d in descs:
        txt += '.p2align 6\n' + d
    if len(launches) == 1 and which == 'all' and not os.environ.get('LIST'):
        txt = txt.replace('; @launch kernel=k1_kernel ', '; @launch ').replace('k1_kernel', NAME + '_kernel')
    open(outp, 'w').write(txt)
    print('wrote', outp, len(txt), 'bytes')


if __name__ == '__main__':
    main()
```

```python
from asmlib import interleave
import os
NO_DMA = os.environ.get('NO_DMA'); NO_MFMA = os.environ.get('NO_MFMA'); NO_READS = os.environ.get('NO_READS')


class Ring:
    def __init__(self, ST, NB, sregs, s_tmp):
        self.ST, self.NB, self.d, self.s_tmp = ST, NB, sregs, s_tmp
        assert len(sregs) >= NB

    def init(self):
        out = []
        for i in range(self.NB):
            v = self.ST if i < self.NB - 1 else -(self.NB - 1) * self.ST
            out.append('s_mov_b32 %s, 0x%x' % (self.d[i], v & 0xffffffff))
        return out

    def rotate(self):
        if self.NB == 2:
            return ['s_sub_u32 %s, 0, %s' % (self.d[0], self.d[0]), 's_sub_u32 %s, 0, %s' % (self.d[1], self.d[1])]
        out = ['s_mov_b32 %s, %s' % (self.s_tmp, self.d[0])]
        for i in range(self.NB - 1):
            out.append('s_mov_b32 %s, %s' % (self.d[i], self.d[i + 1]))
        out.append('s_mov_b32 %s, %s' % (self.d[self.NB - 1], self.s_tmp))
        return out


class Stream:
    def __init__(self, ring, groups, adv, mod=''):
        self.ring, self.groups, self.adv, self.mod = ring, groups, adv, mod
        self.n = sum(len(g[1]) for g in groups)

    def batch(self, delta):
        out = []
        for (sm0, lst) in self.groups:
            for i, (vo, srd, so, io) in enumerate(lst):
                ins = 'buffer_load_dwordx4 v%d, %s, %s offen offset:%d%s lds' % (vo, srd, so, io, self.mod)
                if NO_DMA:
                    ins = 's_nop 0'
                if i == 0:
                    out.append(['s_mov_b32 m0, %s' % sm0, 's_add_u32 %s, %s, %s' % (sm0, sm0, delta), ins])
                else:
                    out.append([ins])
        for x in self.adv:
            out[-1].extend(x if isinstance(x, (list, tuple)) else [x])
        return out


class Gemm:
    def __init__(self, a, **cfg):
        self.a = a
        self.mid = None
        self.streams = []
        self.pro_first = None
        self.pro_between = None
        self.post_bar = None
        self.n_extra_post = 0
        self.s16 = False
        self.__dict__.update(cfg)
        self.NSUB = 2 if self.s16 else 4
        self.SETSZ = 4 * (self.TM + self.TN)
        self.R = self.TM + (self.TN if self.bmode == 'kc' else 2 * self.TN)
        self.nloop = 0
        self.rings = [self.ringA] + ([self.ringB] if self.ringB is not self.ringA else [])
        self.NP = min(self.NSUB, int(os.environ.get('NP' + self.pfx[:2], cfg.get('NP', 4))))

    def fragA(self, st, tm):
        return self.FR + st * self.SETSZ + 4 * tm

    def fragB(self, st, tn):
        return self.FR + st * self.SETSZ + 4 * self.TM + 4 * tn

    def reads(self, j, st):
        ra = []
        for tm in range(self.TM):
            b = self.fragA(st, tm)
            ra.append('ds_read_b128 v[%d:%d], v%d offset:%d' % (b, b + 3, self.vA[j], self.offA[tm]))
        rb = []
        for tn in range(self.TN):
            b = self.fragB(st, tn)
            if self.bmode == 'kc':
                rb.append('ds_read_b128 v[%d:%d], v%d offset:%d' % (b, b + 3, self.vB[j], self.offB[tn]))
            else:
                ri, off = self.offB[tn]
                for u in range(2):
                    rb.append('ds_read_b64_tr_b16 v[%d:%d], v%d offset:%d' %
                              (b + 2 * u, b + 2 * u + 1, self.vB[ri], off + j * (4096 if self.s16 else 2048) + u * 512))
        out = [ra[0]] + rb + ra[1:]
        if NO_READS:
            return ['s_nop 0'] * len(out)
        return out

    def mfmas(self, st, zero=False):
        out = []
        for tm in range(self.TM):
            for tn in range(self.TN):
                fa = self.fragA(st, tm); fb = self.fragB(st, tn)
                A = 'v[%d:%d]' % (fa, fa + 3); B = 'v[%d:%d]' % (fb, fb + 3)
                if self.swap(tm, tn):
                    A, B = B, A
                acc = self.acc(tm, tn)
                if NO_MFMA and not zero:
                    out.append('s_nop 0')
                else:
                    out.append('%s %s, %s, %s, %s' % ('v_mfma_f32_16x16x32_bf16' if self.s16 else 'v_mfma_f32_32x32x16_bf16',
                                                      acc, A, B, '0' if zero else acc))
        return out

    def emit(self, lst):
        for f in lst:
            if isinstance(f, (list, tuple)):
                for x in f:
                    self.a(x)
            else:
                self.a(f)

    def active(self, sig):
        return [i for i, s in enumerate(self.streams) if sig + s.ring.NB < self.KS]

    def parts(self, act):
        if not act:
            return []
        items = []
        for i in act:
            n = self.streams[i].n
            items += [(i, k) for k in range(n)]
        NP = self.NP
        n = len(items)
        cuts = [(p * n) // NP for p in range(NP + 1)]
        if not os.environ.get('NO_URGENT'):
            urgent = sum(1 for (i, k) in items if self.streams[i].ring.NB == 2)
            if urgent > cuts[1]:
                rest = n - urgent
                cuts = [0] + [urgent + ((p - 1) * rest) // (NP - 1) for p in range(1, NP)] + [n]
        out = []
        for p in range(NP):
            late = p >= self.PD
            lst = []
            for (i, k) in items[cuts[p]:cuts[p + 1]]:
                st = self.streams[i]
                d = st.ring.d[st.ring.NB - 1] if late else st.ring.d[0]
                lst.append(st.batch(d)[k])
            out.append(lst)
        return out

    def simulate(self):
        order = []
        maxnb = max([s.ring.NB for s in self.streams] + [0])
        self.pro = []
        if self.pro_first is not None:
            for st in range(self.streams[self.pro_first].ring.NB):
                self.pro.append((self.pro_first, st))
            self.pro.append(None)
        for st in range(maxnb):
            for i, s in enumerate(self.streams):
                if st < s.ring.NB and i != self.pro_first:
                    self.pro.append((i, st))
        for p in self.pro:
            if p is not None:
                order += [p] * self.streams[p[0]].n
        self.npro = len(order)
        order += [(-1, 1 << 30)] * getattr(self, 'n_extra_vm', 0)

        def allowed(stage, upto):
            last = -1
            for idx in range(upto):
                if order[idx][1] <= stage:
                    last = idx
            return upto - 1 - last
        self.vm_first = allowed(0, len(order))
        vm = []
        for sig in range(self.KS - 1):
            vm.append(allowed(sig + 1, len(order)))
            for i in self.active(sig):
                order += [(i, sig + self.streams[i].ring.NB)] * self.streams[i].n
        return vm

    def prologue(self):
        a = self.a
        for p in self.pro:
            if p is None:
                self.pro_between()
                continue
            s, st = self.streams[p[0]], p[1]
            d = s.ring.ST if st < s.ring.NB - 1 else -(s.ring.NB - 1) * s.ring.ST
            self.emit(s.batch('0x%x' % (d & 0xffffffff)))
        for r in self.rings:
            self.emit(r.init())
        if self.mid:
            self.mid(self.npro)
        if self.streams:
            a('s_waitcnt vmcnt(%d)' % self.vm_first)
        a('s_barrier')
        if self.post_bar:
            self.post_bar()
        for j in range(self.PD):
            self.emit(self.reads(j, j % self.NS))
            a('v_add_u32 v%d, %s, v%d' % (self.vA[j], self.ringA.d[0], self.vA[j]))
            if self.bmode == 'kc':
                a('v_add_u32 v%d, %s, v%d' % (self.vB[j], self.ringB.d[0], self.vB[j]))

    def stage(self, act, pend, last, vm, first=False, extra=None, pre_dma=None):
        a = self.a
        PD, NS = self.PD, self.NS
        NS4 = self.NSUB
        pnew = self.parts(act)
        pold = self.parts(pend)
        for s in range(NS4):
            if s == NS4 - PD and not last:
                if self.streams:
                    a('s_waitcnt vmcnt(%d) lgkmcnt(0)' % vm)
                else:
                    a('s_waitcnt lgkmcnt(0)')
                a('s_barrier')
            else:
                ahead = PD - 1
                if last:
                    ahead = min(ahead, NS4 - 1 - s)
                a('s_waitcnt lgkmcnt(%d)' % (ahead * self.R))
            fill = []
            dpart = []
            if s >= NS4 - PD:
                k = s - (NS4 - PD)
                if k < len(pnew):
                    dpart = pnew[k]
            else:
                k = s + PD
                if k < len(pold):
                    dpart = pold[k]
            j = s + PD
            if j < NS4 or not last:
                jj = j % NS4
                fill += self.reads(jj, j % NS)
                di = 0 if j < NS4 else 1
                fill.append('v_add_u32 v%d, %s, v%d' % (self.vA[jj], self.ringA.d[di], self.vA[jj]))
                if self.bmode == 'kc':
                    fill.append('v_add_u32 v%d, %s, v%d' % (self.vB[jj], self.ringB.d[di], self.vB[jj]))
                elif j == NS4 - 1:
                    for r in self.vB:
                        fill.append('v_add_u32 v%d, %s, v%d' % (r, self.ringB.d[0], r))
            if pre_dma and s == NS4 - PD:
                fill.append(list(pre_dma))
            if os.environ.get('DMAFIRST') and s == NS4 - PD:
                fill = dpart + fill
            else:
                fill += dpart
            if extra and s in extra:
                fill += extra[s]
            if s == NS4 - 1 and not last:
                for r in self.rings:
                    fill += r.rotate()
            for l in interleave(self.mfmas(s % NS, zero=(first and s == 0)), fill):
                a(l)

    def run(self, KS, switch=None, tail_extra=None):
        a = self.a
        self.KS = KS
        vm = self.simulate()
        self.prologue()
        allst = list(range(len(self.streams)))
        desc = []
        for sig in range(KS):
            act = self.active(sig) if sig < KS - 1 else []
            pend = self.active(sig - 1) if sig > 0 else []
            special = (sig == 0) or (sig == KS - 1) or (switch and switch[0] == sig) or \
                      (tail_extra and sig in tail_extra)
            desc.append((tuple(act), tuple(pend), bool(special), vm[sig] if sig < KS - 1 else -1))
        sig = 0
        while sig < KS:
            act, pend, special = desc[sig][:3]
            n = 1
            if not special:
                while sig + n < KS and desc[sig + n][:3] == desc[sig][:3] and \
                        (desc[sig + n][3] == desc[sig + n - 1][3]):
                    n += 1
            if n >= 2:
                lab = '%s_L%d' % (self.pfx, self.nloop); self.nloop += 1
                a('s_mov_b32 %s, %d' % (self.s_cnt, n))
                if os.environ.get('ALIGN'):
                    a.lines.append('.p2alignl %s, 0xbf800000' % os.environ['ALIGN'])
                    if os.environ.get('ALIGN4'):
                        a('s_nop 0')
                a.label(lab)
                self.stage(act, pend, False, min(vm[sig:sig + n]))
                a('s_sub_u32 %s, %s, 1' % (self.s_cnt, self.s_cnt))
                a('s_cmp_lg_u32 %s, 0' % self.s_cnt)
                a('s_cbranch_scc1 %s' % lab)
            else:
                last = sig == KS - 1
                self.stage(act, pend, last, None if last else vm[sig], first=(sig == 0),
                           extra=(tail_extra.get(sig) if tail_extra else None),
                           pre_dma=(switch[1] if switch and switch[0] == sig else None))
            sig += n


class GemmH(Gemm):
    def reads(self, j, st):
        ra = []
        for tm in range(self.TM):
            b = self.fragA(st, tm)
            ra.append('ds_read_b128 v[%d:%d], v%d offset:%d' % (b, b + 3, self.vA[j], self.offA[tm]))
        rb = []
        for tn in range(self.TN):
            b = self.fragB(st, tn)
            ri, off = self.offB[tn]
            for u in range(2):
                rb.append('ds_read_b64_tr_b16 v[%d:%d], v%d offset:%d' %
                          (b + 2 * u, b + 2 * u + 1, self.vB[ri], off + u * 512))
        return [ra[0]] + rb + ra[1:]

    def plan(self):
        KS = self.KS
        NU = 2 * KS
        order = []
        if self.streams:
            sA, sB = self.streams
            NA, NBh = sA.ring.NB, sB.ring.NB
            self.pro = []
            for i in range(max(NA, NBh)):
                if i < NBh:
                    self.pro.append((1, i))
                if i < NA:
                    self.pro.append((0, i))
            for (i, un) in self.pro:
                order += [(i, un)] * self.streams[i].n
        self.npro = len(order)

        def allowed(u):
            last = -1
            for idx, (i, un) in enumerate(order):
                if (i == 0 and un <= u // 2) or (i == 1 and un <= u):
                    last = idx
            return len(order) - 1 - last
        self.vm_first = allowed(0)
        plan = []
        for u in range(NU):
            vm = allowed(u + 1) if u < NU - 1 else None
            hb = False
            xp = None
            if self.streams:
                if u + NBh < NU:
                    hb = True
                    order += [(1, u + NBh)] * sB.n
                h = sA.n // 2
                if u % 2 == 1 and (u // 2) + NA < KS:
                    xp = 0
                    order += [(0, u // 2 + NA)] * h
                elif u % 2 == 0 and u > 0 and (u // 2 - 1) + NA < KS:
                    xp = 1
                    order += [(0, u // 2 - 1 + NA)] * (sA.n - h)
            plan.append((hb, xp, vm))
        return plan

    def substep(self, s, hb, xp, vm, last, first, extra=None):
        a = self.a
        rA, rB = self.ringA, self.ringB
        if not last:
            if self.streams:
                a('s_waitcnt vmcnt(%d) lgkmcnt(0)' % vm)
            else:
                a('s_waitcnt lgkmcnt(0)')
            a('s_barrier')
        else:
            a('s_waitcnt lgkmcnt(0)')
        fill = []
        if not last:
            jj = (s + 1) % 2
            fill += self.reads(jj, (s + 1) % 2)
            fill.append('v_add_u32 v%d, %s, v%d' % (self.vA[jj], rA.d[0 if s == 0 else 1], self.vA[jj]))
            for r in self.vB:
                fill.append('v_add_u32 v%d, %s, v%d' % (r, rB.d[1], r))
        if hb:
            fill += self.streams[1].batch(rB.d[0])
        if xp is not None:
            sA = self.streams[0]
            h = sA.n // 2
            if xp == 0:
                fill += sA.batch(rA.d[0])[:h]
            else:
                fill += sA.batch(rA.d[rA.NB - 1])[h:]
        if extra:
            fill += extra
        if not last:
            fill += rB.rotate()
            if s == 1:
                fill += rA.rotate()
        for l in interleave(self.mfmas(s, zero=first), fill):
            a(l)

    def run(self, KS, switch=None, tail_extra=None):
        a = self.a
        self.KS = KS
        plan = self.plan()
        if self.streams:
            for (i, un) in self.pro:
                s = self.streams[i]
                d = s.ring.ST if un < s.ring.NB - 1 else -(s.ring.NB - 1) * s.ring.ST
                self.emit(s.batch('0x%x' % (d & 0xffffffff)))
        for r in self.rings:
            self.emit(r.init())
        if self.mid:
            self.mid(self.npro)
        if self.streams:
            a('s_waitcnt vmcnt(%d)' % self.vm_first)
        a('s_barrier')
        self.emit(self.reads(0, 0))
        a('v_add_u32 v%d, %s, v%d' % (self.vA[0], self.ringA.d[0], self.vA[0]))
        for r in self.vB:
            a('v_add_u32 v%d, %s, v%d' % (r, self.ringB.d[0], r))
        desc = [(plan[2 * g][:2], plan[2 * g + 1][:2], g == 0 or g == KS - 1) for g in range(KS)]
        g = 0
        while g < KS:
            n = 1
            if not desc[g][2]:
                while g + n < KS and desc[g + n] == desc[g] and \
                        ((plan[2 * (g + n)][2], plan[2 * (g + n) + 1][2]) ==
                         (plan[2 * (g + n - 1)][2], plan[2 * (g + n - 1) + 1][2])):
                    n += 1
            if n >= 2:
                lab = '%s_L%d' % (self.pfx, self.nloop); self.nloop += 1
                a('s_mov_b32 %s, %d' % (self.s_cnt, n))
                a.label(lab)
                for s in range(2):
                    vm = min(plan[2 * (g + i) + s][2] for i in range(n))
                    self.substep(s, plan[2 * g + s][0], plan[2 * g + s][1], vm, False, False)
                a('s_sub_u32 %s, %s, 1' % (self.s_cnt, self.s_cnt))
                a('s_cmp_lg_u32 %s, 0' % self.s_cnt)
                a('s_cbranch_scc1 %s' % lab)
            else:
                for s in range(2):
                    u = 2 * g + s
                    self.substep(s, plan[u][0], plan[u][1], plan[u][2], u == 2 * KS - 1, u == 0)
            g += n
```

```python
import os
from gemm import Gemm, GemmH, Ring, Stream
from gen import srd, kernel_head, lane_consts, kc_read_addrs, kn_read_addr, stamp, stamp_flush, wgt, wgt_flush
from gen import WS_O, WS_H, WS_KVP, WS_ZP, WS_AGG
from gen import kc_read_addrs16, kn_read_addr16
S16 = not (os.environ.get('NO_S16') or os.environ.get('NO_S16K1'))

HALFW = bool(os.environ.get('HALFW'))
W4 = bool(os.environ.get('W4'))
B4 = bool(os.environ.get('B4'))
LDS_BYTES = 159744 if HALFW else (163840 if (W4 or B4) else 147456)
LOG2E = 0x3fb8aa3b

V_LANE, V_L31, V_HH, T0, T1, T2, T3 = 1, 2, 3, 4, 5, 6, 7
S_WAVE, S_CNT, S_WROFF, S_D0, S_D1, S_TMP, S_ST = 's64', 's65', 's66', 's67', 's68', 's69', 's79'
S_OA, S_MA, S_MT, S_NT, S_WM, S_WN, S_T2 = 's70', 's72', 's74', 's75', 's76', 's77', 's78'
S_L2E, S_HD = 's8', 's10'
SPIN_MAX = 1 << 21
FUSE = not os.environ.get('NO_FUSE')
POLLW = bool(os.environ.get('POLLW'))
TWOPASS = bool(os.environ.get('TWOPASS'))
PKB = not os.environ.get('NO_PKB')
XMAP = bool(os.environ.get('XMAP'))
WGTA = bool(os.environ.get('WGTA'))
PDA = int(os.environ.get('PDA', '1')); PDB = int(os.environ.get('PDB', '1'))
ROT = not os.environ.get('NO_ROT')
PFD = int(os.environ.get('PFD', '4'))
EARLYPOLL = bool(os.environ.get('EARLYPOLL'))
S_MA2 = 's73'
S_O2, S_ADV2, S_END2 = 's71', 's11', 's15'
VD = [13, 14, 15, 16, 17, 18, 19, 20]
V_PFD = 47


def vr(b, n):
    return 'v[%d:%d]' % (b, b + n - 1)


def wrap_adv(so, adv, end):
    return ['s_add_u32 %s, %s, %s' % (so, so, adv),
            ['s_cmp_eq_u32 %s, %s' % (so, end), 's_cselect_b32 %s, 0, %s' % (so, so)]]


def set_stream(a, so, adv, end, step, nsteps, lead):
    a('s_add_u32 s5, s7, %d' % lead)
    a('s_and_b32 s5, s5, %d' % (nsteps - 1))
    a('s_mul_i32 %s, s5, 0x%x' % (so, step))
    a('s_mov_b32 %s, 0x%x' % (adv, step))
    a('s_mov_b32 %s, 0x%x' % (end, step * nsteps))


def kc_dma_voffs(a, s_row0, permute):
    if not permute or S16:
        a('v_lshrrev_b32 v%d, 3, v%d' % (T0, V_LANE))
    else:
        a('v_bfe_u32 v%d, v%d, 3, 2' % (T0, V_LANE))
        a('v_lshl_add_u32 v%d, v%d, 5, v%d' % (T0, V_HH, T0))
    a('v_add_u32 v%d, %s, v%d' % (T0, s_row0, T0))
    a('v_lshlrev_b32 v%d, 11, v%d' % (T0, T0))
    a('v_lshrrev_b32 v%d, 4, v%d' % (T1, V_LANE))
    a('v_and_b32 v%d, 7, v%d' % (T2, V_LANE))
    a('v_xor_b32 v%d, v%d, v%d' % (T1, T1, T2))
    for j in range(8):
        a('v_xor_b32 v%d, %d, v%d' % (T2, (j & 1) * 4, T1))
        a('v_lshl_add_u32 v%d, v%d, 4, v%d' % (VD[j], T2, T0))
        rows = (8 * j) if not permute else (16 * (j >> 2) + 4 * (j & 3))
        if permute and S16:
            rows = 32 * (j & 1) + 8 * (j >> 1)
        c = rows * 2048 - (j & 3) * 1024
        if c:
            a('v_add_u32 v%d, 0x%x, v%d' % (VD[j], c, VD[j]))


def poll(a, tag, v_off, v_tmp, s_mask_or_count, mode, wave=0):
    a('s_cmp_lg_u32 %s, %d' % (S_WAVE, wave))
    a('s_cbranch_scc1 %s_done' % tag)
    a('s_mov_b32 s5, 0')
    a.label('%s_loop' % tag)
    a('global_load_dword v%d, v%d, s[44:45] sc1' % (v_tmp, v_off))
    a('s_waitcnt vmcnt(0)')
    a('v_readfirstlane_b32 s6, v%d' % v_tmp)
    a('s_nop 3')
    if mode == 'ge':
        a('s_cmp_ge_u32 s6, %s' % s_mask_or_count)
    else:
        a('s_and_b32 s6, s6, %s' % s_mask_or_count)
        a('s_cmp_eq_u32 s6, %s' % s_mask_or_count)
    a('s_cbranch_scc1 %s_ok' % tag)
    a('s_sleep %s' % os.environ.get('SLEEP', '1'))
    a('s_add_u32 s5, s5, 1')
    a('s_cmp_lt_u32 s5, %d' % SPIN_MAX)
    a('s_cbranch_scc1 %s_loop' % tag)
    a.label('%s_ok' % tag)
    if os.environ.get('INV'):
        a('buffer_inv sc1')
        a('s_waitcnt vmcnt(0)')
    a.label('%s_done' % tag)
    a('s_barrier')


def softmax_pm(a, PP, EP, EN, OUTP, OUTN, t):
    mx, mn, t1, t2 = t, t + 2, t + 4, t + 6
    a('v_max3_f32 v%d, v%d, v%d, v%d' % (mx, PP, PP + 1, PP + 2))
    a('v_min3_f32 v%d, v%d, v%d, v%d' % (mn, PP, PP + 1, PP + 2))
    for i in range(3, 15, 2):
        a('v_max3_f32 v%d, v%d, v%d, v%d' % (mx, mx, PP + i, PP + i + 1))
        a('v_min3_f32 v%d, v%d, v%d, v%d' % (mn, mn, PP + i, PP + i + 1))
    a('v_max_f32 v%d, v%d, v%d' % (mx, mx, PP + 15))
    a('v_min_f32 v%d, v%d, v%d' % (mn, mn, PP + 15))
    a('v_mov_b32 v%d, v%d' % (t1, mx))
    a('v_mov_b32 v%d, v%d' % (t2, mn))
    a('v_permlane32_swap_b32 v%d, v%d' % (mx, t1))
    a('v_permlane32_swap_b32 v%d, v%d' % (mn, t2))
    a('v_max_f32 v%d, v%d, v%d' % (mx, mx, t1))
    a('v_min_f32 v%d, v%d, v%d' % (mn, mn, t2))
    a('v_mul_f32 v%d, %s, v%d' % (mx, S_L2E, mx))
    a('v_mul_f32 v%d, %s, v%d' % (mn, S_L2E, mn))
    for i in range(0, 16, 2):
        a('v_pk_fma_f32 %s, %s, s[8:9], %s op_sel_hi:[1,1,0] neg_lo:[0,0,1] neg_hi:[0,0,1]' %
          (vr(EP + i, 2), vr(PP + i, 2), vr(mx, 2)))
        a('v_pk_fma_f32 %s, %s, s[8:9], %s op_sel_hi:[1,1,0] neg_lo:[1,0,0] neg_hi:[1,0,0]' %
          (vr(EN + i, 2), vr(PP + i, 2), vr(mn, 2)))
    for i in range(16):
        a('v_exp_f32 v%d, v%d' % (EP + i, EP + i))
        a('v_exp_f32 v%d, v%d' % (EN + i, EN + i))
    a('v_pk_add_f32 %s, %s, %s' % (vr(mx, 2), vr(EP, 2), vr(EP + 2, 2)))
    a('v_pk_add_f32 %s, %s, %s' % (vr(mn, 2), vr(EN, 2), vr(EN + 2, 2)))
    a('v_pk_add_f32 %s, %s, %s' % (vr(t1, 2), vr(EP + 4, 2), vr(EP + 6, 2)))
    a('v_pk_add_f32 %s, %s, %s' % (vr(t2, 2), vr(EN + 4, 2), vr(EN + 6, 2)))
    for i in (8, 12):
        a('v_pk_add_f32 %s, %s, %s' % (vr(mx, 2), vr(mx, 2), vr(EP + i, 2)))
        a('v_pk_add_f32 %s, %s, %s' % (vr(mn, 2), vr(mn, 2), vr(EN + i, 2)))
        a('v_pk_add_f32 %s, %s, %s' % (vr(t1, 2), vr(t1, 2), vr(EP + i + 2, 2)))
        a('v_pk_add_f32 %s, %s, %s' % (vr(t2, 2), vr(t2, 2), vr(EN + i + 2, 2)))
    a('v_pk_add_f32 %s, %s, %s' % (vr(mx, 2), vr(mx, 2), vr(t1, 2)))
    a('v_pk_add_f32 %s, %s, %s' % (vr(mn, 2), vr(mn, 2), vr(t2, 2)))
    a('v_add_f32 v%d, v%d, v%d' % (mx, mx, mx + 1))
    a('v_add_f32 v%d, v%d, v%d' % (mn, mn, mn + 1))
    a('v_mov_b32 v%d, v%d' % (t1, mx))
    a('v_mov_b32 v%d, v%d' % (t2, mn))
    a('v_permlane32_swap_b32 v%d, v%d' % (mx, t1))
    a('v_permlane32_swap_b32 v%d, v%d' % (mn, t2))
    a('v_add_f32 v%d, v%d, v%d' % (mx, mx, t1))
    a('v_add_f32 v%d, v%d, v%d' % (mn, mn, t2))
    a('v_rcp_f32 v%d, v%d' % (mx, mx))
    a('v_rcp_f32 v%d, v%d' % (mn, mn))
    for i in range(0, 16, 2):
        a('v_pk_mul_f32 %s, %s, %s op_sel_hi:[1,0]' % (vr(EP + i, 2), vr(EP + i, 2), vr(mx, 2)))
        a('v_pk_mul_f32 %s, %s, %s op_sel_hi:[1,0]' % (vr(EN + i, 2), vr(EN + i, 2), vr(mn, 2)))
    for k in range(8):
        a('v_cvt_pk_bf16_f32 v%d, v%d, v%d' % (OUTP + k, EP + 2 * k, EP + 2 * k + 1))
        a('v_cvt_pk_bf16_f32 v%d, v%d, v%d' % (OUTN + k, EN + 2 * k, EN + 2 * k + 1))


def prefetch_tail(a, items, vdst, vt):
    nw = int(os.environ.get('PFT', '8'))
    if nw == 4:
        a('s_nop 7')
        a('s_nop 3')
        a('s_cmp_lt_u32 %s, 4' % S_WAVE)
        a('s_cbranch_scc1 pft_skip')
    a('s_lshl_b32 s5, %s, 4' % S_MT)
    a('s_add_u32 s5, s5, %s' % S_NT)
    a('s_lshl_b32 s5, s5, %d' % (2 if nw == 4 else 3))
    a('s_add_u32 s5, s5, %s' % S_WAVE)
    if nw == 4:
        a('s_sub_u32 s5, s5, 4')
    for (ptr, nbytes) in items:
        per = nbytes // (128 * nw)
        srd(a, 96, ptr, nbytes)
        a('s_mul_i32 s6, s5, %d' % per)
        a('v_min_u32 v%d, %d, v%d' % (vt, per // 128 - 1, V_LANE))
        a('v_lshlrev_b32 v%d, 7, v%d' % (vt, vt))
        a('buffer_load_dword v%d, v%d, s[96:99], s6 offen' % (vdst, vt))
    a.label('pft_skip')


def handoff_phase2(a, which):
    import p2
    tag = 'ho' + which
    base = 32 if which == 'b' else 40
    a('s_lshl_b32 s5, %s, 2' % S_MT)
    a('s_add_u32 s5, s5, %d' % (4 * base))
    a('v_mov_b32 v34, s5')
    a('v_mov_b32 v35, 1')
    a('s_waitcnt vmcnt(0) lgkmcnt(0)')
    a('s_barrier')
    a('s_cmp_lt_u32 %s, 4' % S_WAVE)
    a('s_cbranch_scc1 %s_go' % tag)
    if POLLW:
        a('s_cmp_lg_u32 %s, 4' % S_WAVE)
        a('s_cbranch_scc1 %s_end' % tag)
        a('s_mov_b64 exec, 1')
        a('global_atomic_add v34, v35, s[44:45] sc1')
        a('s_mov_b64 exec, -1')
        poll(a, tag + '_poll', 34, T0, '16', 'ge', wave=4)
        a.label('%s_end' % tag)
    a('s_endpgm')
    a.label('%s_go' % tag)
    if not POLLW:
        a('s_cmp_lg_u32 %s, 0' % S_WAVE)
        a('s_cbranch_scc1 %s_nosig' % tag)
        a('s_mov_b64 exec, 1')
        a('global_atomic_add v34, v35, s[44:45] sc1')
        a('s_mov_b64 exec, -1')
        a.label('%s_nosig' % tag)
    wgt(a, 6 if WGTA else 3)
    a('s_lshl_b32 %s, %s, 1' % (S_MT, S_MT))
    a('s_and_b32 s5, %s, 1' % S_NT)
    a('s_add_u32 %s, %s, s5' % (S_MT, S_MT))
    a('s_lshr_b32 %s, %s, 1' % (S_NT, S_NT))
    if XMAP:
        a('s_and_b32 s5, s2, 3')
        a('s_lshl_b32 s11, s5, 2')
    else:
        a('s_and_b32 s5, s2, 7')
        a('s_lshl_b32 s11, s5, 1')
    if which == 'b':
        a('s_add_u32 s11, s11, 1')

    def wait_fn():
        if POLLW:
            a('s_barrier')
        else:
            poll(a, tag + '_poll', 34, T0, '16', 'ge')
        if not WGTA:
            wgt(a, 4)
    p2.phase2(a, which, wait_fn)


def gen_k1(a):
    name = 'k1_kernel'
    kernel_head(a, name, 256)
    lane_consts(a, V_LANE, V_L31, V_HH, S_WAVE, T0)
    a('s_and_b32 s3, s2, 7')
    a('s_lshr_b32 s4, s2, 3')
    a('s_and_b32 s5, s4, 3')
    a('s_and_b32 s6, s3, 1')
    a('s_lshl_b32 s6, s6, 2')
    a('s_add_u32 %s, s6, s5' % S_MT)
    if XMAP:
        a('s_lshr_b32 s5, s4, 2')
        a('s_bfe_u32 s6, s3, 0x10001')
        a('s_lshl_b32 s6, s6, 3')
        a('s_add_u32 %s, s6, s5' % S_NT)
        a('s_lshr_b32 s4, s3, 2')
        a('s_lshl_b32 s4, s4, 4')
    else:
        a('s_bfe_u32 s5, s4, 0x20002')
        a('s_lshr_b32 s6, s3, 1')
        a('s_lshl_b32 s6, s6, 2')
        a('s_add_u32 %s, s6, s5' % S_NT)
    a('s_lshr_b32 %s, %s, 1' % (S_WM, S_WAVE))
    a('s_and_b32 %s, %s, 1' % (S_WN, S_WAVE))
    a('s_lshl_b32 %s, %s, 13' % (S_MA, S_WAVE))
    a('s_add_u32 %s, %s, 4096' % (S_MA2, S_MA))
    if ROT and XMAP:
        a('s_and_b32 s5, s3, 3')
        a('s_lshl_b32 s5, s5, 2')
        a('s_bfe_u32 s6, s4, 0x10004')
        a('s_lshl_b32 s6, s6, 1')
        a('s_add_u32 s7, s5, s6')
    elif ROT:
        a('s_lshl_b32 s5, s3, 1')
        a('s_bfe_u32 s6, s4, 0x10004')
        a('s_add_u32 s7, s5, s6')
    else:
        a('s_mov_b32 s7, 0')
    a('s_mov_b32 s3, s7')
    a('s_mov_b32 s8, 0x%x' % LOG2E)
    a('s_mov_b32 s9, 0x%x' % LOG2E)
    VA = [8, 9, 10, 11]
    a('s_lshl_b32 %s, %s, 13' % (S_TMP, S_WM))
    if S16:
        kc_read_addrs16(a, VA, V_LANE, S_TMP, 0, T0, T1)
    else:
        kc_read_addrs(a, VA, V_L31, V_HH, S_TMP, 0, T0, T1)
    a('s_waitcnt lgkmcnt(0)')
    a('s_bitcmp1_b32 s4, 4')
    a('s_cbranch_scc1 k1_B')
    gen_A(a, VA)
    a.label('k1_B')
    gen_B(a, VA)
    a.label(name + '_exit')
    a('s_endpgm')


S_MB, S_MB2 = 's66', 's78'


def bulk_pf(items, stage0):
    from asmlib import Asm
    exn = {}
    n = 0
    for (ptr, nbytes) in items:
        per = nbytes // 1024
        for off in range(0, per, 8192):
            lines = min(64, (per - off) // 128)
            t = Asm()
            t('s_lshl_b32 s5, s2, 2')
            t('s_add_u32 s5, s5, %s' % S_WAVE)
            t('s_sub_u32 s5, s5, 4')
            srd(t, 96, ptr, nbytes)
            t('s_mul_i32 s6, s5, %d' % per)
            if off:
                t('s_add_u32 s6, s6, %d' % off)
            t('v_min_u32 v%d, %d, v%d' % (T0, lines - 1, V_LANE))
            t('v_lshlrev_b32 v%d, 7, v%d' % (T0, T0))
            t('buffer_load_dword v255, v%d, s[96:99], s6 offen' % T0)
            exn.setdefault(stage0 + n // 4, {}).setdefault(n % 4, []).append(list(t.lines))
            n += 1
    return exn


BULK = os.environ.get('BULK')
BULK_ITEMS = [('wqkv', 6 << 20), ('Ax', 4 << 20), ('Bx', 4 << 20), ('Bre', 2 << 20), ('Bim', 2 << 20)]


def run_roles(a, tag, ringA, ringB, streamB_groups, extra_none=None, cls=Gemm, **cfg):
    if BULK and tag in ('k1a', 'k1b'):
        e2 = bulk_pf(BULK_ITEMS, int(BULK))
        if extra_none:
            e2.update(extra_none)
        extra_none = e2
    a('s_cmp_ge_u32 %s, 4' % S_WAVE)
    a('s_cbranch_scc1 %s_r1' % tag)
    sa = Stream(ringA, [(S_MA, [(VD[j], 's[48:51]', S_OA, j * 1024) for j in range(4)]),
                        (S_MA2, [(VD[4 + j], 's[48:51]', S_OA, j * 1024) for j in range(4)])],
                ['s_add_u32 %s, %s, 128' % (S_OA, S_OA), 's_and_b32 %s, %s, 0x7ff' % (S_OA, S_OA)])
    sb = Stream(ringB, streamB_groups, wrap_adv(S_O2, S_ADV2, S_END2))
    g = cls(a, pfx=tag + 'd', streams=[sa, sb], ringA=ringA, ringB=ringB, **cfg)
    g.run(16)
    a('s_branch %s_join' % tag)
    a.label('%s_r1' % tag)
    if os.environ.get('PRIO'):
        a('s_setprio %s' % os.environ['PRIO'])
    g = cls(a, pfx=tag + 'n', streams=[], ringA=ringA, ringB=ringB, **cfg)
    g.run(16, tail_extra=extra_none)
    if os.environ.get('PRIO'):
        a('s_setprio 0')
    a.label('%s_join' % tag)


BBASE = 98304
BBASE_A = 65536 if not os.environ.get('NO_SWAPRING') else 98304


def gen_A(a, VA):
    a.comment('==== A: qkv gemm')
    VB0 = 12
    WPH = 24
    VWR = 32
    VTR = 40
    V_OFF, V_ONE, V_O = 44, 45, 46
    V_OW, V_OR = 13, 47
    OBASE = 16384
    ACC = 48
    FR = 144
    AQ, AK, AV = ACC, ACC + 32, ACC + 64
    NB, ST = 2, 57344
    srd(a, 56, 'wphi', 65536)
    a('s_lshl_b32 %s, %s, 1' % (S_HD, S_NT))
    a('s_add_u32 %s, %s, %s' % (S_HD, S_HD, S_WN))
    a('v_lshlrev_b32 v%d, %d, v%d' % (T0, 9 if S16 else 8, V_HH))
    a('v_lshl_add_u32 v%d, v%d, 1, v%d' % (T0, V_L31, T0))
    a('s_lshl_b32 s5, %s, 11' % S_HD)
    for s in range(2):
        for i in range(8):
            d = 16 * s + 8 * (i >> 2) + (i & 3)
            if S16:
                d = 16 * s + i
            a('buffer_load_ushort v%d, v%d, s[56:59], s5 offen offset:%d' % (ACC + 8 * s + i, T0, d * 64))
    VW = [184, 185, 186, 187, 188, 189] if not S16 else [224, 225, 226, 227, 228, 229]
    srd(a, 48, 'Ax', 4 << 20)
    srd(a, 52, 'wqkv', 6 << 20)
    a('s_and_b32 s4, %s, 3' % S_WAVE)
    a('s_lshl_b32 s5, %s, 8' % S_MT)
    a('s_lshl_b32 s6, s4, 6')
    a('s_add_u32 s6, s5, s6')
    kc_dma_voffs(a, 's6', False)
    a('s_lshl_b32 %s, s7, 7' % S_OA)
    def w_setup(nper, seg0, base):
        a('s_and_b32 s4, %s, 3' % S_WAVE)
        a('v_lshrrev_b32 v%d, 3, v%d' % (T0, V_LANE))
        a('v_mul_u32_u24 v%d, 6144, v%d' % (T0, T0))
        a('v_bfe_u32 v%d, v%d, 4, 1' % (T1, V_LANE))
        a('v_lshlrev_b32 v%d, %d, v%d' % (T1, 1 if S16 else 2, T1))
        a('v_and_b32 v%d, 7, v%d' % (T2, V_LANE))
        a('v_xor_b32 v%d, v%d, v%d' % (T1, T1, T2))
        a('v_lshl_add_u32 v%d, v%d, 4, v%d' % (T0, T1, T0))
        a('v_xor_b32 v%d, 64, v%d' % (T1, T0))
        a('s_mul_i32 s4, s4, %d' % nper)
        a('s_lshl_b32 %s, s4, 10' % S_MB)
        a('s_add_u32 %s, %s, %d' % (S_MB, S_MB, base))
        a('s_add_u32 %s, %s, 4096' % (S_MB2, S_MB))
        for j in range(nper):
            a('s_add_u32 s5, s4, %d' % j)
            a('s_lshr_b32 s6, s5, 3')
            a('s_and_b32 s5, s5, 7')
            a('s_mul_i32 s5, s5, 49152')
            a('s_lshl_b32 s6, s6, 11')
            a('s_add_u32 s5, s5, s6')
            a('s_lshl_b32 s6, %s, 7' % S_NT)
            a('s_add_u32 s5, s5, s6')
            c = seg0 * 2048 - (j & 3) * 1024
            if c > 0:
                a('s_add_u32 s5, s5, %d' % c)
            elif c < 0:
                a('s_sub_u32 s5, s5, %d' % (-c))
            a('v_add_u32 v%d, s5, v%d' % (VW[j], T1 if (S16 and (j & 1)) else T0))
        a('s_mov_b32 s7, s3')
        set_stream(a, S_O2, S_ADV2, S_END2, 0x60000, 16, 0)
        a('s_mov_b32 %s, 0' % S_TMP)
        a('s_lshl_b32 s5, %s, 6' % S_WN)
        if S16:
            kn_read_addr16(a, [VB0, VA[2]], V_LANE, S_TMP, base, T0, T1, s_xor='s5')
        else:
            kn_read_addr(a, VB0, None, V_LANE, S_TMP, base, T0, T1)
            a('v_xor_b32 v%d, s5, v%d' % (VB0, VB0))

    def w_setup_half(base):
        a('s_and_b32 s4, %s, 3' % S_WAVE)
        a('v_lshrrev_b32 v%d, 3, v%d' % (T0, V_LANE))
        a('v_mul_u32_u24 v%d, 6144, v%d' % (T0, T0))
        a('v_bfe_u32 v%d, v%d, 4, 1' % (T1, V_LANE))
        a('v_lshlrev_b32 v%d, 1, v%d' % (T1, T1))
        a('v_and_b32 v%d, 7, v%d' % (T2, V_LANE))
        a('v_xor_b32 v%d, v%d, v%d' % (T1, T1, T2))
        a('v_lshl_add_u32 v%d, v%d, 4, v%d' % (T0, T1, T0))
        a('s_mul_i32 s4, s4, 3')
        a('s_lshl_b32 %s, s4, 10' % S_MB)
        a('s_add_u32 %s, %s, %d' % (S_MB, S_MB, base))
        for j in range(3):
            a('s_add_u32 s5, s4, %d' % j)
            a('s_and_b32 s6, s5, 1')
            a('s_lshl_b32 s6, s6, 6')
            a('v_xor_b32 v%d, s6, v%d' % (T1, T0))
            a('s_lshr_b32 s6, s5, 2')
            a('s_and_b32 s5, s5, 3')
            a('s_mul_i32 s5, s5, 49152')
            a('s_lshl_b32 s6, s6, 11')
            a('s_add_u32 s5, s5, s6')
            a('s_lshl_b32 s6, %s, 7' % S_NT)
            a('s_add_u32 s5, s5, s6')
            if j:
                a('s_sub_u32 s5, s5, %d' % (j * 1024))
            a('v_add_u32 v%d, s5, v%d' % (VW[j], T1))
        a('s_mul_i32 %s, s3, 0x60000' % S_O2)
        a('s_mov_b32 %s, 0x30000' % S_ADV2)
        a('s_mov_b32 %s, 0x600000' % S_END2)
        a('s_mov_b32 %s, 0' % S_TMP)
        a('s_lshl_b32 s5, %s, 6' % S_WN)
        kn_read_addr16(a, [VB0, VA[2]], V_LANE, S_TMP, base, T0, T1, s_xor='s5')

    if TWOPASS:
        w_setup(4, 1, BBASE)
    elif HALFW and S16:
        w_setup_half(BBASE)
    else:
        w_setup(6, 0, BBASE_A)

    def mid(nvm):
        a('s_lshl_b32 s5, %s, 13' % S_WAVE)
        a('v_and_b32 v%d, 5, v%d' % (T0, V_L31))
        a('v_bfe_u32 v%d, v%d, 1, 1' % (T1, V_L31))
        a('v_lshl_or_b32 v%d, v%d, 3, v%d' % (T0, T1, T0))
        a('v_bfe_u32 v%d, v%d, 3, 1' % (T1, V_L31))
        a('v_lshl_or_b32 v%d, v%d, 1, v%d' % (T0, T1, T0))
        a('v_xor_b32 v%d, v%d, v%d' % (T0, T0, V_HH))
        a('v_lshlrev_b32 v%d, 3, v%d' % (T0, T0))
        a('v_lshl_add_u32 v%d, v%d, 7, v%d' % (T0, V_L31, T0))
        a('v_add_u32 v%d, s5, v%d' % (T0, T0))
        for k in range(8):
            a('v_xor_b32 v%d, %d, v%d' % (VWR + k, ((k & 3) * 2 + (k >> 2) * 8) * 8, T0))
        a('v_bfe_u32 v%d, v%d, 2, 2' % (T0, V_LANE))
        if S16:
            a('v_and_b32 v%d, 1, v%d' % (T1, T0))
            a('v_bfe_u32 v%d, v%d, 1, 1' % (T2, T0))
            a('v_lshl_or_b32 v%d, v%d, 3, v%d' % (T1, T2, T1))
            a('v_lshl_or_b32 v%d, v%d, 1, v%d' % (T1, V_HH, T1))
            a('v_lshl_add_u32 v%d, v%d, 3, v%d' % (T0, V_HH, T0))
        else:
            a('v_lshl_add_u32 v%d, v%d, 2, v%d' % (T0, V_HH, T0))
            a('v_and_b32 v%d, 5, v%d' % (T1, T0))
            a('v_bfe_u32 v%d, v%d, 1, 1' % (T2, T0))
            a('v_lshl_or_b32 v%d, v%d, 3, v%d' % (T1, T2, T1))
        a('v_and_b32 v%d, 3, v%d' % (T2, V_LANE))
        a('v_bfe_u32 v%d, v%d, 4, 1' % (T3, V_LANE))
        a('v_lshl_or_b32 v%d, v%d, 2, v%d' % (T2, T3, T2))
        a('v_xor_b32 v%d, v%d, v%d' % (T1, T1, T2))
        a('v_lshlrev_b32 v%d, 3, v%d' % (T1, T1))
        a('v_lshl_add_u32 v%d, v%d, 7, v%d' % (T1, T0, T1))
        a('v_add_u32 v%d, s5, v%d' % (T1, T1))
        for ft in range(2):
            for u in range(2):
                a('v_xor_b32 v%d, %d, v%d' % (VTR + 2 * ft + u, ft * 64 + u * (32 if S16 else 16), T1))
        a('s_lshl_b32 s5, %s, 2' % S_NT)
        if os.environ.get('DBGT'):
            a('s_add_u32 s5, s5, 192')
        a('v_mov_b32 v%d, s5' % V_OFF)
        a('v_mov_b32 v%d, 1' % V_ONE)
        a('s_lshl_b32 s5, %s, 12' % S_WAVE)
        a('v_lshrrev_b32 v%d, 3, v%d' % (T0, V_LANE))
        a('v_and_b32 v%d, 7, v%d' % (T1, V_LANE))
        a('v_xor_b32 v%d, v%d, v%d' % (T2, T0, T1))
        a('v_lshlrev_b32 v%d, 4, v%d' % (T2, T2))
        a('v_lshl_add_u32 v%d, v%d, 7, v%d' % (T2, T0, T2))
        a('v_add_u32 v%d, s5, v%d' % (V_OR, T2))
        a('s_lshl_b32 s5, %s, 8' % S_MT)
        a('s_lshl_b32 s6, %s, 5' % S_WAVE)
        a('s_add_u32 s5, s5, s6')
        a('v_add_u32 v%d, s5, v%d' % (T0, T0))
        a('v_lshlrev_b32 v%d, 11, v%d' % (T0, T0))
        a('v_lshl_add_u32 v%d, v%d, 4, v%d' % (T0, T1, T0))
        a('s_lshl_b32 s5, %s, 7' % S_NT)
        a('v_add_u32 v%d, s5, v%d' % (V_O, T0))
        a('s_waitcnt vmcnt(%d)' % nvm)
        for r in range(8):
            a('v_lshl_or_b32 v%d, v%d, 16, v%d' % (WPH + r, ACC + 2 * r + 1, ACC + 2 * r))

    def acc(tm, tn):
        return vr(ACC + 32 * tn + 16 * tm, 16)

    stamp(a, 1)
    wgt(a, 1)
    if TWOPASS:
        ringA = Ring(32768, 3, ['s67', 's68', 's79'], S_TMP)
        ringB = Ring(16384, 3, ['s12', 's13', 's14'], S_TMP)
        sbg = [(S_MB, [(VW[j], 's[52:55]', S_O2, j * 1024) for j in range(4)])]
        run_roles(a, 'k1a', ringA, ringB, sbg, TM=2, TN=2, PD=PDA, NS=2 * PDA, FR=FR, vA=VA, offA=[0, 4096],
                  bmode='kn', vB=[VB0], offB=[(0, 0), (0, 8192)], acc=lambda tm, tn: acc(tm, tn + 1),
                  swap=lambda tm, tn: tn < 1, s_cnt=S_CNT, mid=mid)
    else:
        if not os.environ.get('NO_SWAPRING'):
            ringA = Ring(32768, 2, ['s67', 's68', 's79'], S_TMP)
            ringB = Ring(24576, 4 if W4 else 3, ['s12', 's13', 's14', 's4'], S_TMP)
        else:
            ringA = Ring(32768, 3, ['s67', 's68', 's79'], S_TMP)
            ringB = Ring(24576, 2, ['s12', 's13'], S_TMP)
        sbg = [(S_MB, [(VW[j], 's[52:55]', S_O2, j * 1024) for j in range(4)]),
               (S_MB2, [(VW[4 + j], 's[52:55]', S_O2, j * 1024) for j in range(2)])]
        if S16 and HALFW:
            ringA = Ring(32768, 3, ['s67', 's68', 's79'], S_TMP)
            ringB = Ring(12288, 5, ['s12', 's13', 's14', 's78', 's4'], S_TMP)
            sbg = [(S_MB, [(VW[j], 's[52:55]', S_O2, j * 1024) for j in range(3)])]
            run_roles(a, 'k1a', ringA, ringB, sbg, cls=GemmH, TM=4, TN=6, PD=1, NS=2, FR=FR, vA=VA,
                      offA=[0, 2048, 4096, 6144], bmode='kn', vB=[VB0, VA[2]],
                      offB=[(tn & 1, (tn >> 1) * 4096) for tn in range(6)],
                      acc=lambda tm, tn: vr(ACC + 32 * (tn >> 1) + 8 * tm + 4 * (tn & 1), 4),
                      swap=lambda tm, tn: tn < 4, s_cnt=S_CNT, mid=mid, s16=True)
        elif S16:
            run_roles(a, 'k1a', ringA, ringB, sbg, TM=4, TN=6, PD=1, NS=2, FR=FR, vA=VA, offA=[0, 2048, 4096, 6144],
                      bmode='kn', vB=[VB0, VA[2]], offB=[(tn & 1, (tn >> 1) * 8192) for tn in range(6)],
                      acc=lambda tm, tn: vr(ACC + 32 * (tn >> 1) + 8 * tm + 4 * (tn & 1), 4),
                      swap=lambda tm, tn: tn < 4, s_cnt=S_CNT, mid=mid, s16=True)
        else:
            run_roles(a, 'k1a', ringA, ringB, sbg, TM=2, TN=3, PD=PDA, NS=2 * PDA, FR=FR, vA=VA, offA=[0, 4096],
                      bmode='kn', vB=[VB0], offB=[(0, 0), (0, 8192), (0, 16384)], acc=acc,
                      swap=lambda tm, tn: tn < 2,
                      s_cnt=S_CNT, mid=mid)
    stamp(a, 2)
    wgt(a, 2)
    PK = 144
    PP = 152
    EP = 168
    EN = 184
    OP = 200
    ON = 208
    KV = 216
    TS = 248
    ZA = 22
    V_ONES = 21
    AF = 168
    a('v_mov_b32 v%d, 0x3f803f80' % V_ONES)
    a('v_mov_b32 v%d, 0' % ZA)
    a('v_mov_b32 v%d, 0' % (ZA + 1))
    srd(a, 56, 'ws', 4 << 20, WS_KVP)
    srd(a, 60, 'ws', 4 << 20, WS_O)

    def featmap(src, outp, outn):
        if S16:
            for tt in range(2):
                for dt in range(2):
                    for p in range(2):
                        r = src + 8 * tt + 4 * dt + 2 * p
                        a('v_cvt_pk_bf16_f32 v%d, v%d, v%d' % (PK + 4 * dt + 2 * tt + p, r, r + 1))
            for dt in range(2):
                for p in range(2):
                    a('v_permlane16_swap_b32 v%d, v%d' % (PK + 4 * dt + p, PK + 4 * dt + 2 + p))
        for k in range(0 if S16 else 8):
            a('v_cvt_pk_bf16_f32 v%d, v%d, v%d' % (PK + k, src + 2 * k, src + 2 * k + 1))
        a('v_mfma_f32_32x32x16_bf16 %s, %s, %s, 0' % (vr(PP, 16), vr(WPH, 4), vr(PK, 4)))
        a('v_mfma_f32_32x32x16_bf16 %s, %s, %s, %s' % (vr(PP, 16), vr(WPH + 4, 4), vr(PK + 4, 4), vr(PP, 16)))
        softmax_pm(a, PP, EP, EN, outp, outn, TS)

    for tm in range(2):
        featmap(AK + 16 * tm, OP, ON)
        if tm == 0:
            a('s_barrier')
        for g4 in range(4):
            a('ds_write_b64 v%d, %s offset:%d' % (VWR + g4, vr(OP + 2 * g4, 2), tm * 4096))
            a('ds_write_b64 v%d, %s offset:%d' % (VWR + 4 + g4, vr(ON + 2 * g4, 2), tm * 4096))
        for k in range(8):
            a('v_cvt_pk_bf16_f32 v%d, v%d, v%d' % (PK + k, AV + 16 * tm + 2 * k, AV + 16 * tm + 2 * k + 1))
        if S16:
            for s in range(2):
                for p in range(2):
                    a('v_permlane16_swap_b32 v%d, v%d' % (PK + 4 * s + p, PK + 4 * s + 2 + p))
        a('s_waitcnt lgkmcnt(0)')
        for ft in range(2):
            for s in range(2):
                f = AF + 4 * (2 * ft + s)
                for u in range(2):
                    a('ds_read_b64_tr_b16 %s, v%d offset:%d' % (vr(f + 2 * u, 2), VTR + 2 * ft + u,
                                                                 tm * 4096 + s * 2048 + u * (512 if S16 else 1024)))
        for ft in range(2):
            for s in range(2):
                f = AF + 4 * (2 * ft + s)
                a('s_waitcnt lgkmcnt(%d)' % (6 - 2 * (2 * ft + s)))
                c = '0' if (tm == 0 and s == 0) else vr(KV + 16 * ft, 16)
                a('v_mfma_f32_32x32x16_bf16 %s, %s, %s, %s' % (vr(KV + 16 * ft, 16), vr(f, 4), vr(PK + 4 * s, 4), c))
                for k in range(4):
                    a('v_dot2c_f32_bf16 v%d, v%d, v%d' % (ZA + ft, f + k, V_ONES))
    a('v_mov_b32 v%d, v%d' % (TS, ZA))
    a('v_mov_b32 v%d, v%d' % (TS + 1, ZA + 1))
    a('v_permlane32_swap_b32 v%d, v%d' % (ZA, TS))
    a('v_permlane32_swap_b32 v%d, v%d' % (ZA + 1, TS + 1))
    a('v_add_f32 v%d, v%d, v%d' % (ZA, ZA, TS))
    a('v_add_f32 v%d, v%d, v%d' % (ZA + 1, ZA + 1, TS + 1))
    a('v_cmp_eq_u32 vcc, 1, v%d' % V_HH)
    a('v_cndmask_b32 v%d, v%d, v%d, vcc' % (ZA, ZA, ZA + 1))
    a('s_lshl_b32 s5, %s, 13' % S_WAVE)
    a('v_lshl_add_u32 v%d, v%d, 4, s5' % (T0, V_LANE))
    a('s_lshl_b32 s5, %s, 8' % S_WAVE)
    a('s_add_u32 s5, s5, 65536')
    a('v_lshl_add_u32 v%d, v%d, 2, s5' % (T1, V_LANE))
    a('ds_write_b32 v%d, v%d' % (T1, ZA))
    for q in range(8):
        a('ds_write_b128 v%d, %s offset:%d' % (T0, vr(KV + 4 * q, 4), q * 1024))
    a('s_lshl_b32 s5, %s, 13' % S_WN)
    a('s_lshl_b32 s6, %s, 11' % S_WM)
    a('s_add_u32 s5, s5, s6')
    a('v_lshl_add_u32 v%d, v%d, 4, s5' % (T0, V_LANE))
    a('s_lshl_b32 s5, %s, 8' % S_WN)
    a('s_add_u32 s5, s5, 65536')
    a('v_lshl_add_u32 v%d, v%d, 2, s5' % (T1, V_LANE))
    a('s_lshl_b32 s5, %s, 5' % S_MT)
    a('s_add_u32 s5, s5, %s' % S_HD)
    a('s_lshl_b32 s6, s5, 13')
    a('s_lshl_b32 s7, %s, 11' % S_WM)
    a('s_add_u32 s6, s6, s7')
    a('v_lshlrev_b32 v%d, 4, v%d' % (T2, V_LANE))
    a('s_lshl_b32 s7, s5, 8')
    a('s_add_u32 s7, s7, 0x%x' % (WS_ZP - WS_KVP))
    a('v_lshlrev_b32 v%d, 2, v%d' % (T3, V_LANE))
    a('s_waitcnt lgkmcnt(0)')
    a('s_barrier')
    R = 216
    for w in range(4):
        for q in range(2):
            a('ds_read_b128 %s, v%d offset:%d' % (vr(R + 8 * w + 4 * q, 4), T0, w * 16384 + q * 1024))
    for w in range(4):
        a('ds_read_b32 v%d, v%d offset:%d' % (OP + w, T1, w * 512))
    a('s_waitcnt lgkmcnt(4)')
    for k in range(0, 8, 2):
        a('v_pk_add_f32 %s, %s, %s' % (vr(R + k, 2), vr(R + k, 2), vr(R + 8 + k, 2)))
        a('v_pk_add_f32 %s, %s, %s' % (vr(R + 16 + k, 2), vr(R + 16 + k, 2), vr(R + 24 + k, 2)))
    for k in range(0, 8, 2):
        a('v_pk_add_f32 %s, %s, %s' % (vr(R + k, 2), vr(R + k, 2), vr(R + 16 + k, 2)))
    a('buffer_store_dwordx4 %s, v%d, s[56:59], s6 offen sc1' % (vr(R, 4), T2))
    a('buffer_store_dwordx4 %s, v%d, s[56:59], s6 offen offset:1024 sc1' % (vr(R + 4, 4), T2))
    a('s_waitcnt lgkmcnt(0)')
    a('v_add_f32 v%d, v%d, v%d' % (OP, OP, OP + 1))
    a('v_add_f32 v%d, v%d, v%d' % (OP + 2, OP + 2, OP + 3))
    a('v_add_f32 v%d, v%d, v%d' % (ZA, OP, OP + 2))
    a('s_cmp_lg_u32 %s, 0' % S_WM)
    a('s_cbranch_scc1 k1a_noz')
    a('buffer_store_dword v%d, v%d, s[56:59], s7 offen sc1' % (ZA, T3))
    a.label('k1a_noz')
    stamp(a, 3)
    if (not FUSE) or WGTA:
        wgt(a, 3)
    nsig = [0]

    def signal():
        nsig[0] += 1
        lab = 'k1a_nosig%d' % nsig[0]
        a('s_cmp_lg_u32 %s, 0' % S_WAVE)
        a('s_cbranch_scc1 %s' % lab)
        a('s_mov_b64 exec, 1')
        a('global_atomic_add v%d, v%d, s[44:45] sc1' % (V_OFF, V_ONE))
        a('s_mov_b64 exec, -1')
        a.label(lab)

    if TWOPASS:
        PQ = 216
        a('s_lshl_b32 %s, %s, 13' % (S_MA, S_WAVE))
        a('s_add_u32 %s, %s, 4096' % (S_MA2, S_MA))
        a('s_lshl_b32 %s, s3, 7' % S_OA)
        a('s_lshl_b32 %s, %s, 13' % (S_TMP, S_WM))
        kc_read_addrs(a, VA, V_L31, V_HH, S_TMP, 0, T0, T1)
        w_setup(2, 0, BBASE)
        a('s_barrier')
        ringB = Ring(8192, 3, ['s12', 's13', 's14'], S_TMP)
        sbg = [(S_MB, [(VW[j], 's[52:55]', S_O2, j * 1024) for j in range(2)])]

        def mid2(nvm):
            a('s_waitcnt vmcnt(%d)' % nvm)
        run_roles(a, 'k1q', ringA, ringB, sbg, TM=2, TN=1, PD=PDA, NS=2 * PDA, FR=FR, vA=VA, offA=[0, 4096],
                  bmode='kn', vB=[VB0], offB=[(0, 0)], acc=lambda tm, tn: acc(tm, 0),
                  swap=lambda tm, tn: True, s_cnt=S_CNT, mid=mid2, post_bar=signal, n_extra_post=1)
        a('v_lshlrev_b32 v%d, 4, v%d' % (T2, V_LANE))
        a('v_lshlrev_b32 v%d, 2, v%d' % (T3, V_LANE))
    else:
        PQ = AK
        featmap(AQ, PQ, PQ + 8)
        a('s_waitcnt vmcnt(0)')
        a('s_barrier')
        signal()
        if not EARLYPOLL:
            featmap(AQ + 16, PQ + 16, PQ + 24)
    stamp(a, 4)
    if (not FUSE) or WGTA:
        wgt(a, 4)
    poll(a, 'k1a_poll', V_OFF, T0, '8', 'ge')
    stamp(a, 5)
    if (not FUSE) or WGTA:
        wgt(a, 5)
    a('s_lshl_b32 s6, %s, 13' % S_HD)
    a('s_lshl_b32 s7, %s, 11' % S_WM)
    a('s_add_u32 s6, s6, s7')
    if TWOPASS:
        LM = [AK + 8 * m for m in range(8)]
        ZL = 200
    elif EARLYPOLL:
        L = AV
        LM = [AV, AV + 8, AV + 16, AV + 24, 216, 224, 232, 240]
        ZL = AQ
    else:
        LM = [144 + 8 * m for m in range(8)]
        ZL = 208
    for m in range(8):
        a('buffer_load_dwordx4 %s, v%d, s[56:59], s6 offen sc1' % (vr(LM[m], 4), T2))
        a('buffer_load_dwordx4 %s, v%d, s[56:59], s6 offen offset:1024 sc1' % (vr(LM[m] + 4, 4), T2))
        if m < 7:
            a('s_add_u32 s6, s6, 0x40000')
    a('s_lshl_b32 s7, %s, 8' % S_HD)
    a('s_add_u32 s7, s7, 0x%x' % (WS_ZP - WS_KVP))
    for m in range(8):
        a('buffer_load_dword v%d, v%d, s[56:59], s7 offen sc1' % (ZL + m, T3))
        if m < 7:
            a('s_add_u32 s7, s7, 0x2000')
    if TWOPASS:
        featmap(AQ, PQ, PQ + 8)
        featmap(AQ + 16, PQ + 16, PQ + 24)
    elif EARLYPOLL:
        featmap(AQ + 16, PQ + 16, PQ + 24)
    a('s_lshl_b32 s5, %s, 12' % S_WN)
    a('v_lshl_add_u32 v%d, v%d, 4, s5' % (T0, V_LANE))
    a('s_lshl_b32 s6, %s, 10' % S_WM)
    a('v_add_u32 v%d, s6, v%d' % (T1, T0))
    a('s_lshl_b32 s5, %s, 13' % S_WM)
    a('s_lshl_b32 s6, %s, 2' % S_WN)
    a('v_or_b32 v%d, s6, v%d' % (TS, V_HH))
    a('v_and_b32 v%d, 7, v%d' % ((TS + 1), V_L31))
    a('v_xor_b32 v%d, v%d, v%d' % (TS, TS, (TS + 1)))
    a('v_lshlrev_b32 v%d, 4, v%d' % (TS, TS))
    a('v_lshl_add_u32 v%d, v%d, 7, v%d' % (TS, V_L31, TS))
    a('v_add_u32 v%d, s5, v%d' % (V_OW, TS))
    a('v_xor_b32 v%d, 32, v%d' % (V_OW + 1, V_OW))
    a('s_waitcnt vmcnt(8)')
    for k in range(0, 8, 2):
        for m in range(0, 8, 2):
            a('v_pk_add_f32 %s, %s, %s' % (vr(LM[m] + k, 2), vr(LM[m] + k, 2), vr(LM[m + 1] + k, 2)))
    for k in range(0, 8, 2):
        a('v_pk_add_f32 %s, %s, %s' % (vr(LM[0] + k, 2), vr(LM[0] + k, 2), vr(LM[2] + k, 2)))
        a('v_pk_add_f32 %s, %s, %s' % (vr(LM[4] + k, 2), vr(LM[4] + k, 2), vr(LM[6] + k, 2)))
    for k in range(0, 8, 2):
        a('v_pk_add_f32 %s, %s, %s' % (vr(LM[0] + k, 2), vr(LM[0] + k, 2), vr(LM[4] + k, 2)))
    for k in range(4):
        a('v_cvt_pk_bf16_f32 v%d, v%d, v%d' % (LM[1] + k, LM[0] + 2 * k, LM[0] + 2 * k + 1))
    a('ds_write_b128 v%d, %s' % (T1, vr(LM[1], 4)))
    a('s_waitcnt vmcnt(0)')
    for m in range(0, 8, 4):
        a('v_pk_add_f32 %s, %s, %s' % (vr(ZL + m, 2), vr(ZL + m, 2), vr(ZL + m + 2, 2)))
    a('v_pk_add_f32 %s, %s, %s' % (vr(ZL, 2), vr(ZL, 2), vr(ZL + 4, 2)))
    a('v_add_f32 v%d, v%d, v%d' % (ZL, ZL, ZL + 1))
    a('v_cvt_pk_bf16_f32 v%d, v%d, v%d' % (ZL, ZL, ZL))
    a('s_lshl_b32 s5, %s, 7' % S_WN)
    a('s_add_u32 s5, s5, 8192')
    a('v_lshl_add_u32 v%d, v%d, 1, s5' % (T1, V_LANE))
    a('ds_write_b16 v%d, v%d' % (T1, ZL))
    a('v_lshl_add_u32 v%d, v%d, 3, s5' % (T1, V_HH))
    a('s_lshl_b32 s5, %s, 6' % S_HD)
    a('s_add_u32 s6, s5, 0x10000')
    a('s_waitcnt lgkmcnt(0)')
    a('s_barrier')
    KF = 144
    ZF = 160
    for f in range(4):
        a('ds_read_b128 %s, v%d offset:%d' % (vr(KF + 4 * f, 4), T0, f * 1024))
        a('ds_read_b64 %s, v%d offset:%d' % (vr(ZF + 4 * f, 2), T1, f * 32))
        a('ds_read_b64 %s, v%d offset:%d' % (vr(ZF + 4 * f + 2, 2), T1, f * 32 + 16))
    NUM = 176
    DEN = 208
    if TWOPASS:
        NUM, DEN = AK, AV
    for f in range(4):
        a('s_waitcnt lgkmcnt(%d)' % (9 - 3 * f))
        for tm in range(2):
            b = PQ + 16 * tm + 4 * f
            a('v_mfma_f32_32x32x16_bf16 %s, %s, %s, %s' % (vr(DEN + 16 * tm, 16), vr(ZF + 4 * f, 4), vr(b, 4),
                                                           '0' if f == 0 else vr(DEN + 16 * tm, 16)))
            a('v_mfma_f32_32x32x16_bf16 %s, %s, %s, %s' % (vr(NUM + 16 * tm, 16), vr(KF + 4 * f, 4), vr(b, 4),
                                                           '0' if f == 0 else vr(NUM + 16 * tm, 16)))
    for tm in range(2):
        d = DEN + 16 * tm
        n = NUM + 16 * tm
        a('v_add_f32 v%d, 0x358637bd, v%d' % (d, d))
        a('v_rcp_f32 v%d, v%d' % (d, d))
        for k in range(0, 16, 2):
            a('v_pk_mul_f32 %s, %s, %s op_sel_hi:[1,0]' % (vr(n + k, 2), vr(n + k, 2), vr(d, 2)))
        o = d + 4
        for k in range(8):
            a('v_cvt_pk_bf16_f32 v%d, v%d, v%d' % (o + k, n + 2 * k, n + 2 * k + 1))
        for p in range(2):
            a('v_permlane32_swap_b32 v%d, v%d' % (o + 4 * p, o + 4 * p + 2))
            a('v_permlane32_swap_b32 v%d, v%d' % (o + 4 * p + 1, o + 4 * p + 3))
            a('ds_write_b128 v%d, %s offset:%d' % (V_OW + p, vr(o + 4 * p, 4), OBASE + tm * 4096))
    a('s_waitcnt lgkmcnt(0)')
    a('s_barrier')
    for i in range(4):
        a('ds_read_b128 %s, v%d offset:%d' % (vr(144 + 4 * i, 4), V_OR, OBASE + i * 1024))
    for i in range(4):
        a('s_mov_b32 s5, 0x%x' % (i * 8 * 2048))
        a('s_waitcnt lgkmcnt(%d)' % (3 - i))
        a('buffer_store_dwordx4 %s, v%d, s[60:63], s5 offen%s' % (vr(144 + 4 * i, 4), V_O,
                                                                  os.environ.get('STO', ' sc1' if FUSE else '')))
    if FUSE:
        handoff_phase2(a, 'a')
        return
    stamp(a, 6)
    wgt(a, 6)
    stamp_flush(a, 7, 0)
    wgt_flush(a, 7, 0)
    a('s_endpgm')


def cmul(a, dr, di, ar, ai, br, bi, t):
    a('v_mul_f32 v%d, v%d, v%d' % (t, ai, bi))
    a('v_mul_f32 v%d, v%d, v%d' % (t + 1, ar, bi))
    a('v_fma_f32 v%d, v%d, v%d, -v%d' % (t, ar, br, t))
    a('v_fma_f32 v%d, v%d, v%d, v%d' % (di, ai, br, t + 1))
    a('v_mov_b32 v%d, v%d' % (dr, t))


def cfma(a, hr, hi, lr, li, ur, ui, t):
    a('v_fma_f32 v%d, -v%d, v%d, v%d' % (t, li, hi, ur))
    a('v_fma_f32 v%d, v%d, v%d, v%d' % (t + 1, li, hr, ui))
    a('v_fma_f32 v%d, v%d, v%d, v%d' % (hr, lr, hr, t))
    a('v_fma_f32 v%d, v%d, v%d, v%d' % (hi, lr, hi, t + 1))


def gen_B(a, VA):
    a.comment('==== B: input projection gemm')
    VB = [12, 21, 22, 23]
    LR, LI, CR, CI, L32R, L32I, L256R, L256I = 24, 25, 26, 27, 28, 29, 30, 31
    V_P2, V_OFF, V_BIT, V_SEL, V_H, V_Q = 32, 33, 34, 35, 36, 37
    TT = 38
    V_HW = 47
    ACC = 48
    FR = 112
    NB, ST = 3, 49152
    a('s_lshl_b32 s5, %s, 6' % S_NT)
    a('s_lshl_b32 s6, %s, 5' % S_WN)
    a('s_add_u32 s5, s5, s6')
    a('v_add_u32 v%d, s5, v%d' % (V_P2, V_L31))
    a('v_lshlrev_b32 v%d, 1, v%d' % (T0, V_P2))
    a('global_load_ushort v%d, v%d, s[26:27]' % (TT, T0))
    a('global_load_ushort v%d, v%d, s[28:29]' % (TT + 1, T0))
    a('global_load_ushort v%d, v%d, s[38:39]' % (TT + 2, T0))
    VW = [176, 177, 178, 179]
    srd(a, 48, 'Bx', 4 << 20)
    srd(a, 52, 'Bre', 2 << 20)
    srd(a, 56, 'Bim', 2 << 20)
    a('s_and_b32 s4, %s, 3' % S_WAVE)
    a('s_cmp_ge_u32 s4, 2')
    a('s_cselect_b32 s52, s56, s52')
    a('s_cselect_b32 s53, s57, s53')
    a('s_lshl_b32 s5, %s, 8' % S_MT)
    a('s_lshl_b32 s6, s4, 6')
    a('s_add_u32 s6, s5, s6')
    kc_dma_voffs(a, 's6', True)
    a('s_lshl_b32 %s, s7, 7' % S_OA)
    a('s_lshl_b32 s5, %s, 6' % S_NT)
    a('s_and_b32 s6, s4, 1')
    a('s_lshl_b32 s6, s6, 5')
    a('s_add_u32 s5, s5, s6')
    a('v_lshrrev_b32 v%d, 3, v%d' % (T0, V_LANE))
    a('v_add_u32 v%d, s5, v%d' % (T0, T0))
    a('v_lshlrev_b32 v%d, 11, v%d' % (T0, T0))
    for j in range(4):
        a('v_xor_b32 v%d, %d, v%d' % (T2, (j & 1) * 4, T1))
        a('v_lshl_add_u32 v%d, v%d, 4, v%d' % (VW[j], T2, T0))
        if j:
            a('v_add_u32 v%d, 0x%x, v%d' % (VW[j], 8 * j * 2048 - j * 1024, VW[j]))
    a('s_lshl_b32 %s, s4, 12' % S_MB)
    a('s_add_u32 %s, %s, %d' % (S_MB, S_MB, BBASE))
    set_stream(a, S_O2, S_ADV2, S_END2, 128, 16, 0)
    a('s_lshl_b32 %s, %s, 12' % (S_TMP, S_WN))
    if S16:
        kc_read_addrs16(a, VB, V_LANE, S_TMP, BBASE, T0, T1)
    else:
        kc_read_addrs(a, VB, V_L31, V_HH, S_TMP, BBASE, T0, T1)

    def mid(nvm):
        a('s_waitcnt vmcnt(%d)' % nvm)
        lre, lim, dt = TT, TT + 1, TT + 2
        a('v_lshlrev_b32 v%d, 16, v%d' % (lre, lre))
        a('v_lshlrev_b32 v%d, 16, v%d' % (lim, lim))
        a('v_lshlrev_b32 v%d, 16, v%d' % (dt, dt))
        a('v_mul_f32 v%d, %s, v%d' % (dt, S_L2E, dt))
        a('v_exp_f32 v%d, v%d' % (dt, dt))
        a('v_cvt_pk_bf16_f32 v%d, v%d, v%d' % (dt, dt, dt))
        a('v_lshlrev_b32 v%d, 16, v%d' % (dt, dt))
        a('v_mul_f32 v%d, v%d, v%d' % (TT + 3, dt, lre))
        a('v_mul_f32 v%d, v%d, v%d' % (TT + 4, dt, lim))
        a('v_mul_f32 v%d, %s, v%d' % (TT + 3, S_L2E, TT + 3))
        a('v_exp_f32 v%d, v%d' % (TT + 3, TT + 3))
        a('v_mul_f32 v%d, 0.15915494, v%d' % (TT + 4, TT + 4))
        a('v_rndne_f32 v%d, v%d' % (TT + 5, TT + 4))
        a('v_sub_f32 v%d, v%d, v%d' % (TT + 4, TT + 4, TT + 5))
        a('v_cos_f32 v%d, v%d' % (LR, TT + 4))
        a('v_sin_f32 v%d, v%d' % (LI, TT + 4))
        a('v_mul_f32 v%d, v%d, v%d' % (LR, LR, TT + 3))
        a('v_mul_f32 v%d, v%d, v%d' % (LI, LI, TT + 3))
        a('v_add_f32 v%d, -1.0, v%d' % (TT + 5, LR))
        a('v_mul_f32 v%d, v%d, v%d' % (TT + 6, lre, lre))
        a('v_fma_f32 v%d, v%d, v%d, v%d' % (TT + 6, lim, lim, TT + 6))
        a('v_rcp_f32 v%d, v%d' % (TT + 6, TT + 6))
        a('v_mul_f32 v%d, v%d, v%d' % (CR, TT + 5, lre))
        a('v_fma_f32 v%d, v%d, v%d, v%d' % (CR, LI, lim, CR))
        a('v_mul_f32 v%d, v%d, v%d' % (CI, TT + 5, lim))
        a('v_fma_f32 v%d, v%d, v%d, -v%d' % (CI, LI, lre, CI))
        a('v_add_f32 v%d, v%d, v%d' % (TT + 6, TT + 6, TT + 6))
        a('v_mul_f32 v%d, v%d, v%d' % (CR, CR, TT + 6))
        a('v_mul_f32 v%d, v%d, v%d' % (CI, CI, TT + 6))
        a('v_mov_b32 v%d, v%d' % (L32R, LR))
        a('v_mov_b32 v%d, v%d' % (L32I, LI))
        for _ in range(5):
            cmul(a, L32R, L32I, L32R, L32I, L32R, L32I, TT + 7)
        a('v_mov_b32 v%d, v%d' % (L256R, L32R))
        a('v_mov_b32 v%d, v%d' % (L256I, L32I))
        for _ in range(3):
            cmul(a, L256R, L256I, L256R, L256I, L256R, L256I, TT + 7)
        a('s_lshl_b32 s5, %s, 2' % S_NT)
        a('s_add_u32 s5, s5, 64')
        a('v_mov_b32 v%d, s5' % V_OFF)
        a('s_lshl_b32 s5, 1, %s' % S_MT)
        a('v_mov_b32 v%d, s5' % V_BIT)
        a('v_and_b32 v%d, 1, v%d' % (T0, V_LANE))
        a('v_mov_b32 v%d, 0x05040100' % V_SEL)
        a('v_mov_b32 v%d, 0x03020706' % T1)
        a('v_cmp_eq_u32 vcc, 1, v%d' % T0)
        a('v_cndmask_b32 v%d, v%d, v%d, vcc' % (V_SEL, V_SEL, T1))
        a('s_lshl_b32 s5, %s, 14' % S_WM)
        a('s_lshl_b32 s6, %s, 6' % S_WN)
        a('s_add_u32 s5, s5, s6')
        a('v_lshl_add_u32 v%d, v%d, 13, s5' % (V_HW, V_HH))
        a('v_lshl_add_u32 v%d, v%d, 7, v%d' % (V_HW, T0, V_HW))
        a('v_and_b32 v%d, 30, v%d' % (T1, V_L31))
        a('v_lshl_add_u32 v%d, v%d, 1, v%d' % (V_HW, T1, V_HW))
        a('s_lshl_b32 s5, %s, 8' % S_MT)
        a('s_lshl_b32 s6, %s, 5' % S_WAVE)
        a('s_add_u32 s5, s5, s6')
        a('v_lshrrev_b32 v%d, 4, v%d' % (T1, V_LANE))
        a('v_add_u32 v%d, s5, v%d' % (T1, T1))
        a('v_lshlrev_b32 v%d, 12, v%d' % (V_H, T1))
        a('v_bfe_u32 v%d, v%d, 3, 1' % (T1, V_LANE))
        a('v_lshl_add_u32 v%d, v%d, 11, v%d' % (V_H, T1, V_H))
        a('v_and_b32 v%d, 7, v%d' % (T1, V_LANE))
        a('v_lshl_add_u32 v%d, v%d, 4, v%d' % (V_H, T1, V_H))
        a('s_lshl_b32 s5, %s, 7' % S_NT)
        a('v_add_u32 v%d, s5, v%d' % (V_H, V_H))
        a('s_lshl_b32 s5, %s, 1' % S_WM)
        a('v_add_u32 v%d, s5, v%d' % (V_Q, V_HH))

    def acc(tm, tn):
        return vr(ACC + 32 * tm + 16 * tn, 16)

    stamp(a, 1)
    wgt(a, 1)
    ringA = Ring(32768, 3, ['s67', 's68', 's79'], S_TMP)
    ringB = Ring(16384, 4 if B4 else 3, ['s12', 's13', 's14', 's4'], S_TMP)
    sbg = [(S_MB, [(VW[j], 's[52:55]', S_O2, j * 1024) for j in range(4)])]
    PFS = int(os.environ.get('PFS', '0'))
    exn = None
    if PFS:
        from asmlib import Asm
        exn = {}
        for n, (ptr, nbytes) in enumerate([('Cre', 2 << 20), ('Cim', 2 << 20), ('wo', 2 << 20)]):
            t = Asm()
            t('s_lshl_b32 s5, %s, 4' % S_MT)
            t('s_add_u32 s5, s5, %s' % S_NT)
            t('s_lshl_b32 s5, s5, 2')
            t('s_add_u32 s5, s5, %s' % S_WAVE)
            t('s_sub_u32 s5, s5, 4')
            srd(t, 96, ptr, nbytes)
            t('s_mul_i32 s6, s5, 4096')
            t('v_min_u32 v%d, 31, v%d' % (T0, V_LANE))
            t('v_lshlrev_b32 v%d, 7, v%d' % (T0, T0))
            t('buffer_load_dword v255, v%d, s[96:99], s6 offen' % T0)
            exn[PFS + 2 * n] = {1: [list(t.lines)]}
    if S16:
        run_roles(a, 'k1b', ringA, ringB, sbg, extra_none=exn, TM=4, TN=4, PD=1, NS=2, FR=FR, vA=VA,
                  offA=[0, 2048, 4096, 6144], bmode='kc', vB=VB, offB=[0, 2048, 8192, 10240],
                  acc=lambda tm, tn: vr(ACC + 16 * tm + 4 * tn, 4), swap=lambda tm, tn: False,
                  s_cnt=S_CNT, mid=mid, s16=True)
    else:
        run_roles(a, 'k1b', ringA, ringB, sbg, extra_none=exn, TM=2, TN=2, PD=PDB, NS=2 * PDB, FR=FR, vA=VA, offA=[0, 4096],
                  bmode='kc', vB=VB, offB=[0, 8192], acc=acc, swap=lambda tm, tn: False,
                  s_cnt=S_CNT, mid=mid)
    stamp(a, 2)
    wgt(a, 2)
    if FUSE and not os.environ.get('NO_PF3') and not PFS:
        prefetch_tail(a, [('Cre', 2 << 20), ('Cim', 2 << 20), ('wo', 2 << 20)], 255, T0)

    def ure(i):
        if S16:
            return ACC + 16 * (i >> 3) + (i & 7)
        return ACC + 32 * (i >> 4) + (i & 15)

    def uim(i):
        return ure(i) + (8 if S16 else 16)

    if S16:
        for tm in range(4):
            for half in range(2):
                for j in range(4):
                    r = ACC + 16 * tm + 8 * half + j
                    a('v_permlane16_swap_b32 v%d, v%d' % (r, r + 4))

    ER, EI = 112, 113
    t = 114
    BU = 144
    CP1, CP2, LP1, LP2 = 208, 210, 212, 214

    def pk_step(h, i, tt):
        a('v_pk_fma_f32 %s, %s, %s, %s op_sel:[1,0,0] op_sel_hi:[0,1,1]' % (vr(tt, 2), vr(h, 2), vr(LP2, 2), vr(BU + 2 * i, 2)))
        a('v_pk_fma_f32 %s, %s, %s, %s' % (vr(h, 2), vr(h, 2), vr(LP1, 2), vr(tt, 2)))

    if PKB:
        a('v_mov_b32 v%d, v%d' % (CP1, CR))
        a('v_mov_b32 v%d, v%d' % (CP1 + 1, CI))
        a('v_xor_b32 v%d, 0x80000000, v%d' % (CP2, CI))
        a('v_mov_b32 v%d, v%d' % (CP2 + 1, CR))
        a('v_mov_b32 v%d, v%d' % (LP1, LR))
        a('v_mov_b32 v%d, v%d' % (LP1 + 1, LR))
        a('v_xor_b32 v%d, 0x80000000, v%d' % (LP2, LI))
        a('v_mov_b32 v%d, v%d' % (LP2 + 1, LI))
        for i in range(32):
            h = i & 1
            r, m = ure(i & ~1), uim(i & ~1)
            tt = t + 2 * (i & 1)
            a('v_pk_mul_f32 %s, %s, %s op_sel:[%d,0] op_sel_hi:[%d,1]' % (vr(tt, 2), vr(r, 2), vr(CP1, 2), h, h))
            a('v_pk_fma_f32 %s, %s, %s, %s op_sel:[%d,0,0] op_sel_hi:[%d,1,1]' %
              (vr(BU + 2 * i, 2), vr(m, 2), vr(CP2, 2), vr(tt, 2), h, h))
            if i == 1:
                a('v_mov_b32 v%d, v%d' % (ER, BU))
                a('v_mov_b32 v%d, v%d' % (EI, BU + 1))
            if i >= 1:
                pk_step(ER, i, t + 4)
    else:
      for i in range(32):
        r, m = ure(i), uim(i)
        a('v_mul_f32 v%d, v%d, v%d' % (t, CI, m))
        a('v_mul_f32 v%d, v%d, v%d' % (t + 1, CI, r))
        a('v_fma_f32 v%d, v%d, v%d, -v%d' % (r, CR, r, t))
        a('v_fma_f32 v%d, v%d, v%d, v%d' % (m, CR, m, t + 1))
        if i == 0:
            a('v_mov_b32 v%d, v%d' % (ER, r))
            a('v_mov_b32 v%d, v%d' % (EI, m))
        else:
            cfma(a, ER, EI, LR, LI, r, m, t + 2)
    a('s_barrier')
    a('s_lshl_b32 s5, %s, 8' % S_WN)
    a('v_lshl_add_u32 v%d, v%d, 3, s5' % (T0, V_L31))
    a('v_lshl_add_u32 v%d, v%d, 9, v%d' % (T1, V_Q, T0))
    a('ds_write_b64 v%d, %s' % (T1, vr(ER, 2)))
    a('s_waitcnt lgkmcnt(0)')
    a('s_barrier')
    E = 120
    for q in range(8):
        a('ds_read_b64 %s, v%d offset:%d' % (vr(E + 2 * q, 2), T0, q * 512))
    PR, PI, WR, WI, SPR, SPI, SWR, SWI = 136, 137, 138, 139, 140, 141, 142, 143
    a('v_mov_b32 v%d, 0' % PR)
    a('v_mov_b32 v%d, 0' % PI)
    a('v_mov_b32 v%d, 1.0' % WR)
    a('v_mov_b32 v%d, 0' % WI)
    a('v_mov_b32 v%d, 0' % SPR)
    a('v_mov_b32 v%d, 0' % SPI)
    a('v_mov_b32 v%d, 1.0' % SWR)
    a('v_mov_b32 v%d, 0' % SWI)
    a('s_waitcnt lgkmcnt(0)')
    for q in range(8):
        cfma(a, PR, PI, L32R, L32I, E + 2 * q, E + 2 * q + 1, t)
        if q < 7:
            cmul(a, WR, WI, WR, WI, L32R, L32I, t + 2)
            a('v_cmp_eq_u32 vcc, %d, v%d' % (q + 1, V_Q))
            a('v_cndmask_b32 v%d, v%d, v%d, vcc' % (SPR, SPR, PR))
            a('v_cndmask_b32 v%d, v%d, v%d, vcc' % (SPI, SPI, PI))
            a('v_cndmask_b32 v%d, v%d, v%d, vcc' % (SWR, SWR, WR))
            a('v_cndmask_b32 v%d, v%d, v%d, vcc' % (SWI, SWI, WI))
    srd(a, 60, 'ws', 65536, WS_AGG)
    a('v_lshlrev_b32 v%d, 3, v%d' % (T2, V_P2))
    a('s_lshl_b32 s5, %s, 13' % S_MT)
    a('s_cmp_lg_u32 %s, 0' % S_WM)
    a('s_cbranch_scc1 k1b_nopub')
    a('buffer_store_dwordx2 %s, v%d, s[60:63], s5 offen sc1' % (vr(PR, 2), T2))
    a('s_waitcnt vmcnt(0)')
    a.label('k1b_nopub')
    a('s_barrier')
    a('s_cmp_lg_u32 %s, 0' % S_WAVE)
    a('s_cbranch_scc1 k1b_nosig')
    a('s_mov_b64 exec, 1')
    a('global_atomic_or v%d, v%d, s[44:45] sc1' % (V_OFF, V_BIT))
    a('s_mov_b64 exec, -1')
    a.label('k1b_nosig')
    stamp(a, 3)
    if (not FUSE) or WGTA:
        wgt(a, 3)
    a('s_lshl_b32 s7, 1, %s' % S_MT)
    a('s_sub_u32 s7, s7, 1')
    stamp(a, 4)
    if (not FUSE) or WGTA:
        wgt(a, 4)
    poll(a, 'k1b_poll', V_OFF, T0, 's7', 'and')
    stamp(a, 5)
    if (not FUSE) or WGTA:
        wgt(a, 5)
    for m in range(7):
        a('buffer_load_dwordx2 %s, v%d, s[60:63], %s offen sc1' % (vr(E + 2 * m, 2), T2, '0' if m == 0 else 's6'))
        a('s_mov_b32 s6, 0x%x' % ((m + 1) * 8192))
    HR, HI = 112, 113
    a('v_mov_b32 v%d, 0' % HR)
    a('v_mov_b32 v%d, 0' % HI)
    a('s_waitcnt vmcnt(0)')
    for m in range(7):
        a('s_cmp_le_u32 %s, %d' % (S_MT, m))
        a('s_cbranch_scc1 k1b_hdone')
        cfma(a, HR, HI, L256R, L256I, E + 2 * m, E + 2 * m + 1, t)
    a.label('k1b_hdone')
    cfma(a, HR, HI, SWR, SWI, SPR, SPI, t)
    srd(a, 60, 'ws', 8 << 20, WS_H)
    for i in range(32):
        r, m = ure(i), uim(i)
        if PKB:
            pk_step(HR, i, t)
        else:
            cfma(a, HR, HI, LR, LI, r, m, t)
        w = 120 + (i & 3) * 3
        a('v_cvt_pk_bf16_f32 v%d, v%d, -v%d' % (w, HR, HI))
        a('v_mov_b32_dpp v%d, v%d quad_perm:[1,0,3,2] row_mask:0xf bank_mask:0xf' % (w + 1, w))
        a('v_perm_b32 v%d, v%d, v%d, v%d' % (w + 2, w + 1, w, V_SEL))
        a('ds_write_b32 v%d, v%d offset:%d' % (V_HW, w + 2, i * 256))
    a('s_waitcnt lgkmcnt(0)')
    a('s_barrier')
    a('s_lshl_b32 s5, %s, 13' % S_WAVE)
    a('v_lshl_add_u32 v%d, v%d, 4, s5' % (T0, V_LANE))
    for i in range(8):
        a('ds_read_b128 %s, v%d offset:%d' % (vr(144 + 4 * i, 4), T0, i * 1024))
    for i in range(8):
        a('s_mov_b32 s5, 0x%x' % (i * 4 * 4096))
        a('s_waitcnt lgkmcnt(%d)' % (7 - i))
        a('buffer_store_dwordx4 %s, v%d, s[60:63], s5 offen%s' % (vr(144 + 4 * i, 4), V_H,
                                                                  os.environ.get('STH', ' sc1' if FUSE else '')))
    if FUSE:
        handoff_phase2(a, 'b')
        return
    if not os.environ.get('NO_PF3'):
        prefetch_tail(a, [('Cre', 2 << 20), ('Cim', 2 << 20), ('wo', 2 << 20)], 255, T0)
    stamp(a, 6)
    wgt(a, 6)
    stamp_flush(a, 7, 128, 44)
    wgt_flush(a, 7, 0)
    a('s_endpgm')
```

```python
import os
from gemm import Gemm, GemmH, Ring, Stream
from gen import srd, kernel_head, lane_consts, kc_read_addrs, kn_read_addr, stamp, stamp_flush, wgt, wgt_flush
from gen import WS_O, WS_H, WS_KVP, WS_ZP, WS_AGG
from gen import kc_read_addrs16, kn_read_addr16
S16 = not (os.environ.get('NO_S16') or os.environ.get('NO_S16K1'))

HALFW = bool(os.environ.get('HALFW'))
W4 = bool(os.environ.get('W4'))
B4 = bool(os.environ.get('B4'))
LDS_BYTES = 159744 if HALFW else (163840 if (W4 or B4) else 147456)
LOG2E = 0x3fb8aa3b

V_LANE, V_L31, V_HH, T0, T1, T2, T3 = 1, 2, 3, 4, 5, 6, 7
S_WAVE, S_CNT, S_WROFF, S_D0, S_D1, S_TMP, S_ST = 's64', 's65', 's66', 's67', 's68', 's69', 's79'
S_OA, S_MA, S_MT, S_NT, S_WM, S_WN, S_T2 = 's70', 's72', 's74', 's75', 's76', 's77', 's78'
S_L2E, S_HD = 's8', 's10'
SPIN_MAX = 1 << 21
FUSE = not os.environ.get('NO_FUSE')
POLLW = bool(os.environ.get('POLLW'))
TWOPASS = bool(os.environ.get('TWOPASS'))
PKB = not os.environ.get('NO_PKB')
XMAP = bool(os.environ.get('XMAP'))
WGTA = bool(os.environ.get('WGTA'))
WGTB = bool(os.environ.get('WGTB'))
PDA = int(os.environ.get('PDA', '1')); PDB = int(os.environ.get('PDB', '1'))
ROT = not os.environ.get('NO_ROT')
PFD = int(os.environ.get('PFD', '4'))
EARLYPOLL = bool(os.environ.get('EARLYPOLL'))
S_MA2 = 's73'
S_O2, S_ADV2, S_END2 = 's71', 's11', 's15'
VD = [13, 14, 15, 16, 17, 18, 19, 20]
V_PFD = 47


def vr(b, n):
    return 'v[%d:%d]' % (b, b + n - 1)


def wrap_adv(so, adv, end):
    return ['s_add_u32 %s, %s, %s' % (so, so, adv),
            ['s_cmp_eq_u32 %s, %s' % (so, end), 's_cselect_b32 %s, 0, %s' % (so, so)]]


def set_stream(a, so, adv, end, step, nsteps, lead):
    a('s_add_u32 s5, s7, %d' % lead)
    a('s_and_b32 s5, s5, %d' % (nsteps - 1))
    a('s_mul_i32 %s, s5, 0x%x' % (so, step))
    a('s_mov_b32 %s, 0x%x' % (adv, step))
    a('s_mov_b32 %s, 0x%x' % (end, step * nsteps))


def kc_dma_voffs(a, s_row0, permute):
    if not permute or S16:
        a('v_lshrrev_b32 v%d, 3, v%d' % (T0, V_LANE))
    else:
        a('v_bfe_u32 v%d, v%d, 3, 2' % (T0, V_LANE))
        a('v_lshl_add_u32 v%d, v%d, 5, v%d' % (T0, V_HH, T0))
    a('v_add_u32 v%d, %s, v%d' % (T0, s_row0, T0))
    a('v_lshlrev_b32 v%d, 11, v%d' % (T0, T0))
    a('v_lshrrev_b32 v%d, 4, v%d' % (T1, V_LANE))
    a('v_and_b32 v%d, 7, v%d' % (T2, V_LANE))
    a('v_xor_b32 v%d, v%d, v%d' % (T1, T1, T2))
    for j in range(8):
        a('v_xor_b32 v%d, %d, v%d' % (T2, (j & 1) * 4, T1))
        a('v_lshl_add_u32 v%d, v%d, 4, v%d' % (VD[j], T2, T0))
        rows = (8 * j) if not permute else (16 * (j >> 2) + 4 * (j & 3))
        if permute and S16:
            rows = 32 * (j & 1) + 8 * (j >> 1)
        c = rows * 2048 - (j & 3) * 1024
        if c:
            a('v_add_u32 v%d, 0x%x, v%d' % (VD[j], c, VD[j]))


def poll(a, tag, v_off, v_tmp, s_mask_or_count, mode, wave=0):
    a('s_cmp_lg_u32 %s, %d' % (S_WAVE, wave))
    a('s_cbranch_scc1 %s_done' % tag)
    a('s_mov_b32 s5, 0')
    a.label('%s_loop' % tag)
    a('global_load_dword v%d, v%d, s[44:45] sc1' % (v_tmp, v_off))
    a('s_waitcnt vmcnt(0)')
    a('v_readfirstlane_b32 s6, v%d' % v_tmp)
    a('s_nop 3')
    if mode == 'ge':
        a('s_cmp_ge_u32 s6, %s' % s_mask_or_count)
    else:
        a('s_and_b32 s6, s6, %s' % s_mask_or_count)
        a('s_cmp_eq_u32 s6, %s' % s_mask_or_count)
    a('s_cbranch_scc1 %s_ok' % tag)
    a('s_sleep %s' % os.environ.get('SLEEP', '1'))
    a('s_add_u32 s5, s5, 1')
    a('s_cmp_lt_u32 s5, %d' % SPIN_MAX)
    a('s_cbranch_scc1 %s_loop' % tag)
    a.label('%s_ok' % tag)
    if os.environ.get('INV'):
        a('buffer_inv sc1')
        a('s_waitcnt vmcnt(0)')
    a.label('%s_done' % tag)
    a('s_barrier')


def softmax_pm(a, PP, EP, EN, OUTP, OUTN, t):
    mx, mn, t1, t2 = t, t + 2, t + 4, t + 6
    a('v_max3_f32 v%d, v%d, v%d, v%d' % (mx, PP, PP + 1, PP + 2))
    a('v_min3_f32 v%d, v%d, v%d, v%d' % (mn, PP, PP + 1, PP + 2))
    for i in range(3, 15, 2):
        a('v_max3_f32 v%d, v%d, v%d, v%d' % (mx, mx, PP + i, PP + i + 1))
        a('v_min3_f32 v%d, v%d, v%d, v%d' % (mn, mn, PP + i, PP + i + 1))
    a('v_max_f32 v%d, v%d, v%d' % (mx, mx, PP + 15))
    a('v_min_f32 v%d, v%d, v%d' % (mn, mn, PP + 15))
    a('v_mov_b32 v%d, v%d' % (t1, mx))
    a('v_mov_b32 v%d, v%d' % (t2, mn))
    a('v_permlane32_swap_b32 v%d, v%d' % (mx, t1))
    a('v_permlane32_swap_b32 v%d, v%d' % (mn, t2))
    a('v_max_f32 v%d, v%d, v%d' % (mx, mx, t1))
    a('v_min_f32 v%d, v%d, v%d' % (mn, mn, t2))
    a('v_mul_f32 v%d, %s, v%d' % (mx, S_L2E, mx))
    a('v_mul_f32 v%d, %s, v%d' % (mn, S_L2E, mn))
    for i in range(0, 16, 2):
        a('v_pk_fma_f32 %s, %s, s[8:9], %s op_sel_hi:[1,1,0] neg_lo:[0,0,1] neg_hi:[0,0,1]' %
          (vr(EP + i, 2), vr(PP + i, 2), vr(mx, 2)))
        a('v_pk_fma_f32 %s, %s, s[8:9], %s op_sel_hi:[1,1,0] neg_lo:[1,0,0] neg_hi:[1,0,0]' %
          (vr(EN + i, 2), vr(PP + i, 2), vr(mn, 2)))
    for i in range(16):
        a('v_exp_f32 v%d, v%d' % (EP + i, EP + i))
        a('v_exp_f32 v%d, v%d' % (EN + i, EN + i))
    a('v_pk_add_f32 %s, %s, %s' % (vr(mx, 2), vr(EP, 2), vr(EP + 2, 2)))
    a('v_pk_add_f32 %s, %s, %s' % (vr(mn, 2), vr(EN, 2), vr(EN + 2, 2)))
    a('v_pk_add_f32 %s, %s, %s' % (vr(t1, 2), vr(EP + 4, 2), vr(EP + 6, 2)))
    a('v_pk_add_f32 %s, %s, %s' % (vr(t2, 2), vr(EN + 4, 2), vr(EN + 6, 2)))
    for i in (8, 12):
        a('v_pk_add_f32 %s, %s, %s' % (vr(mx, 2), vr(mx, 2), vr(EP + i, 2)))
        a('v_pk_add_f32 %s, %s, %s' % (vr(mn, 2), vr(mn, 2), vr(EN + i, 2)))
        a('v_pk_add_f32 %s, %s, %s' % (vr(t1, 2), vr(t1, 2), vr(EP + i + 2, 2)))
        a('v_pk_add_f32 %s, %s, %s' % (vr(t2, 2), vr(t2, 2), vr(EN + i + 2, 2)))
    a('v_pk_add_f32 %s, %s, %s' % (vr(mx, 2), vr(mx, 2), vr(t1, 2)))
    a('v_pk_add_f32 %s, %s, %s' % (vr(mn, 2), vr(mn, 2), vr(t2, 2)))
    a('v_add_f32 v%d, v%d, v%d' % (mx, mx, mx + 1))
    a('v_add_f32 v%d, v%d, v%d' % (mn, mn, mn + 1))
    a('v_mov_b32 v%d, v%d' % (t1, mx))
    a('v_mov_b32 v%d, v%d' % (t2, mn))
    a('v_permlane32_swap_b32 v%d, v%d' % (mx, t1))
    a('v_permlane32_swap_b32 v%d, v%d' % (mn, t2))
    a('v_add_f32 v%d, v%d, v%d' % (mx, mx, t1))
    a('v_add_f32 v%d, v%d, v%d' % (mn, mn, t2))
    a('v_rcp_f32 v%d, v%d' % (mx, mx))
    a('v_rcp_f32 v%d, v%d' % (mn, mn))
    for i in range(0, 16, 2):
        a('v_pk_mul_f32 %s, %s, %s op_sel_hi:[1,0]' % (vr(EP + i, 2), vr(EP + i, 2), vr(mx, 2)))
        a('v_pk_mul_f32 %s, %s, %s op_sel_hi:[1,0]' % (vr(EN + i, 2), vr(EN + i, 2), vr(mn, 2)))
    for k in range(8):
        a('v_cvt_pk_bf16_f32 v%d, v%d, v%d' % (OUTP + k, EP + 2 * k, EP + 2 * k + 1))
        a('v_cvt_pk_bf16_f32 v%d, v%d, v%d' % (OUTN + k, EN + 2 * k, EN + 2 * k + 1))


def prefetch_tail(a, items, vdst, vt):
    nw = int(os.environ.get('PFT', '8'))
    if nw == 4:
        a('s_nop 7')
        a('s_nop 3')
        a('s_cmp_lt_u32 %s, 4' % S_WAVE)
        a('s_cbranch_scc1 pft_skip')
    a('s_lshl_b32 s5, %s, 4' % S_MT)
    a('s_add_u32 s5, s5, %s' % S_NT)
    a('s_lshl_b32 s5, s5, %d' % (2 if nw == 4 else 3))
    a('s_add_u32 s5, s5, %s' % S_WAVE)
    if nw == 4:
        a('s_sub_u32 s5, s5, 4')
    for (ptr, nbytes) in items:
        per = nbytes // (128 * nw)
        srd(a, 96, ptr, nbytes)
        a('s_mul_i32 s6, s5, %d' % per)
        a('v_min_u32 v%d, %d, v%d' % (vt, per // 128 - 1, V_LANE))
        a('v_lshlrev_b32 v%d, 7, v%d' % (vt, vt))
        a('buffer_load_dword v%d, v%d, s[96:99], s6 offen' % (vdst, vt))
    a.label('pft_skip')


def handoff_phase2(a, which):
    import p2
    tag = 'ho' + which
    base = 32 if which == 'b' else 40
    a('s_lshl_b32 s5, %s, 2' % S_MT)
    a('s_add_u32 s5, s5, %d' % (4 * base))
    a('v_mov_b32 v34, s5')
    a('v_mov_b32 v35, 1')
    a('s_waitcnt vmcnt(0) lgkmcnt(0)')
    a('s_barrier')
    a('s_cmp_lt_u32 %s, 4' % S_WAVE)
    a('s_cbranch_scc1 %s_go' % tag)
    if POLLW:
        a('s_cmp_lg_u32 %s, 4' % S_WAVE)
        a('s_cbranch_scc1 %s_end' % tag)
        a('s_mov_b64 exec, 1')
        a('global_atomic_add v34, v35, s[44:45] sc1')
        a('s_mov_b64 exec, -1')
        poll(a, tag + '_poll', 34, T0, '16', 'ge', wave=4)
        a.label('%s_end' % tag)
    a('s_endpgm')
    a.label('%s_go' % tag)
    if not POLLW:
        a('s_cmp_lg_u32 %s, 0' % S_WAVE)
        a('s_cbranch_scc1 %s_nosig' % tag)
        a('s_mov_b64 exec, 1')
        a('global_atomic_add v34, v35, s[44:45] sc1')
        a('s_mov_b64 exec, -1')
        a.label('%s_nosig' % tag)
    wgt(a, 6 if WGTA else 3)
    a('s_lshl_b32 %s, %s, 1' % (S_MT, S_MT))
    a('s_and_b32 s5, %s, 1' % S_NT)
    a('s_add_u32 %s, %s, s5' % (S_MT, S_MT))
    a('s_lshr_b32 %s, %s, 1' % (S_NT, S_NT))
    if XMAP:
        a('s_and_b32 s5, s2, 3')
        a('s_lshl_b32 s11, s5, 2')
    else:
        a('s_and_b32 s5, s2, 7')
        a('s_lshl_b32 s11, s5, 1')
    if which == 'b':
        a('s_add_u32 s11, s11, 1')

    def wait_fn():
        if POLLW:
            a('s_barrier')
        else:
            poll(a, tag + '_poll', 34, T0, '16', 'ge')
        if not WGTA:
            wgt(a, 4)
    p2.phase2(a, which, wait_fn)


def gen_k1(a):
    name = 'k1_kernel'
    kernel_head(a, name, 256)
    lane_consts(a, V_LANE, V_L31, V_HH, S_WAVE, T0)
    a('s_and_b32 s3, s2, 7')
    a('s_lshr_b32 s4, s2, 3')
    a('s_and_b32 s5, s4, 3')
    a('s_and_b32 s6, s3, 1')
    a('s_lshl_b32 s6, s6, 2')
    a('s_add_u32 %s, s6, s5' % S_MT)
    if XMAP:
        a('s_lshr_b32 s5, s4, 2')
        a('s_bfe_u32 s6, s3, 0x10001')
        a('s_lshl_b32 s6, s6, 3')
        a('s_add_u32 %s, s6, s5' % S_NT)
        a('s_lshr_b32 s4, s3, 2')
        a('s_lshl_b32 s4, s4, 4')
    else:
        a('s_bfe_u32 s5, s4, 0x20002')
        a('s_lshr_b32 s6, s3, 1')
        a('s_lshl_b32 s6, s6, 2')
        a('s_add_u32 %s, s6, s5' % S_NT)
    a('s_lshr_b32 %s, %s, 1' % (S_WM, S_WAVE))
    a('s_and_b32 %s, %s, 1' % (S_WN, S_WAVE))
    a('s_lshl_b32 %s, %s, 13' % (S_MA, S_WAVE))
    a('s_add_u32 %s, %s, 4096' % (S_MA2, S_MA))
    if ROT and XMAP:
        a('s_and_b32 s5, s3, 3')
        a('s_lshl_b32 s5, s5, 2')
        a('s_bfe_u32 s6, s4, 0x10004')
        a('s_lshl_b32 s6, s6, 1')
        a('s_add_u32 s7, s5, s6')
    elif ROT:
        a('s_lshl_b32 s5, s3, 1')
        a('s_bfe_u32 s6, s4, 0x10004')
        a('s_add_u32 s7, s5, s6')
    else:
        a('s_mov_b32 s7, 0')
    a('s_mov_b32 s3, s7')
    a('s_mov_b32 s8, 0x%x' % LOG2E)
    a('s_mov_b32 s9, 0x%x' % LOG2E)
    VA = [8, 9, 10, 11]
    a('s_lshl_b32 %s, %s, 13' % (S_TMP, S_WM))
    if S16:
        kc_read_addrs16(a, VA, V_LANE, S_TMP, 0, T0, T1)
    else:
        kc_read_addrs(a, VA, V_L31, V_HH, S_TMP, 0, T0, T1)
    a('s_waitcnt lgkmcnt(0)')
    a('s_bitcmp1_b32 s4, 4')
    a('s_cbranch_scc1 k1_B')
    gen_A(a, VA)
    a.label('k1_B')
    gen_B(a, VA)
    a.label(name + '_exit')
    a('s_endpgm')


S_MB, S_MB2 = 's66', 's78'


def bulk_pf(items, stage0):
    from asmlib import Asm
    exn = {}
    n = 0
    for (ptr, nbytes) in items:
        per = nbytes // 1024
        for off in range(0, per, 8192):
            lines = min(64, (per - off) // 128)
            t = Asm()
            t('s_lshl_b32 s5, s2, 2')
            t('s_add_u32 s5, s5, %s' % S_WAVE)
            t('s_sub_u32 s5, s5, 4')
            srd(t, 96, ptr, nbytes)
            t('s_mul_i32 s6, s5, %d' % per)
            if off:
                t('s_add_u32 s6, s6, %d' % off)
            t('v_min_u32 v%d, %d, v%d' % (T0, lines - 1, V_LANE))
            t('v_lshlrev_b32 v%d, 7, v%d' % (T0, T0))
            t('buffer_load_dword v255, v%d, s[96:99], s6 offen' % T0)
            exn.setdefault(stage0 + n // 4, {}).setdefault(n % 4, []).append(list(t.lines))
            n += 1
    return exn


BULK = os.environ.get('BULK')
BULK_ITEMS = [('wqkv', 6 << 20), ('Ax', 4 << 20), ('Bx', 4 << 20), ('Bre', 2 << 20), ('Bim', 2 << 20)]


def run_roles(a, tag, ringA, ringB, streamB_groups, extra_none=None, cls=Gemm, **cfg):
    if BULK and tag in ('k1a', 'k1b'):
        e2 = bulk_pf(BULK_ITEMS, int(BULK))
        if extra_none:
            e2.update(extra_none)
        extra_none = e2
    a('s_cmp_ge_u32 %s, 4' % S_WAVE)
    a('s_cbranch_scc1 %s_r1' % tag)
    sa = Stream(ringA, [(S_MA, [(VD[j], 's[48:51]', S_OA, j * 1024) for j in range(4)]),
                        (S_MA2, [(VD[4 + j], 's[48:51]', S_OA, j * 1024) for j in range(4)])],
                ['s_add_u32 %s, %s, 128' % (S_OA, S_OA), 's_and_b32 %s, %s, 0x7ff' % (S_OA, S_OA)])
    sb = Stream(ringB, streamB_groups, wrap_adv(S_O2, S_ADV2, S_END2))
    g = cls(a, pfx=tag + 'd', streams=[sa, sb], ringA=ringA, ringB=ringB, **cfg)
    g.run(16)
    a('s_branch %s_join' % tag)
    a.label('%s_r1' % tag)
    if os.environ.get('PRIO'):
        a('s_setprio %s' % os.environ['PRIO'])
    g = cls(a, pfx=tag + 'n', streams=[], ringA=ringA, ringB=ringB, **cfg)
    g.run(16, tail_extra=extra_none)
    if os.environ.get('PRIO'):
        a('s_setprio 0')
    a.label('%s_join' % tag)


BBASE = 98304
BBASE_A = 65536 if not os.environ.get('NO_SWAPRING') else 98304


def gen_A(a, VA):
    a.comment('==== A: qkv gemm')
    VB0 = 12
    WPH = 24
    VWR = 32
    VTR = 40
    V_OFF, V_ONE, V_O = 44, 45, 46
    V_OW, V_OR = 13, 47
    OBASE = 16384
    ACC = 48
    FR = 144
    AQ, AK, AV = ACC, ACC + 32, ACC + 64
    NB, ST = 2, 57344
    srd(a, 56, 'wphi', 65536)
    a('s_lshl_b32 %s, %s, 1' % (S_HD, S_NT))
    a('s_add_u32 %s, %s, %s' % (S_HD, S_HD, S_WN))
    a('v_lshlrev_b32 v%d, %d, v%d' % (T0, 9 if S16 else 8, V_HH))
    a('v_lshl_add_u32 v%d, v%d, 1, v%d' % (T0, V_L31, T0))
    a('s_lshl_b32 s5, %s, 11' % S_HD)
    for s in range(2):
        for i in range(8):
            d = 16 * s + 8 * (i >> 2) + (i & 3)
            if S16:
                d = 16 * s + i
            a('buffer_load_ushort v%d, v%d, s[56:59], s5 offen offset:%d' % (ACC + 8 * s + i, T0, d * 64))
    VW = [184, 185, 186, 187, 188, 189] if not S16 else [224, 225, 226, 227, 228, 229]
    srd(a, 48, 'Ax', 4 << 20)
    srd(a, 52, 'wqkv', 6 << 20)
    a('s_and_b32 s4, %s, 3' % S_WAVE)
    a('s_lshl_b32 s5, %s, 8' % S_MT)
    a('s_lshl_b32 s6, s4, 6')
    a('s_add_u32 s6, s5, s6')
    kc_dma_voffs(a, 's6', False)
    a('s_lshl_b32 %s, s7, 7' % S_OA)
    def w_setup(nper, seg0, base):
        a('s_and_b32 s4, %s, 3' % S_WAVE)
        a('v_lshrrev_b32 v%d, 3, v%d' % (T0, V_LANE))
        a('v_mul_u32_u24 v%d, 6144, v%d' % (T0, T0))
        a('v_bfe_u32 v%d, v%d, 4, 1' % (T1, V_LANE))
        a('v_lshlrev_b32 v%d, %d, v%d' % (T1, 1 if S16 else 2, T1))
        a('v_and_b32 v%d, 7, v%d' % (T2, V_LANE))
        a('v_xor_b32 v%d, v%d, v%d' % (T1, T1, T2))
        a('v_lshl_add_u32 v%d, v%d, 4, v%d' % (T0, T1, T0))
        a('v_xor_b32 v%d, 64, v%d' % (T1, T0))
        a('s_mul_i32 s4, s4, %d' % nper)
        a('s_lshl_b32 %s, s4, 10' % S_MB)
        a('s_add_u32 %s, %s, %d' % (S_MB, S_MB, base))
        a('s_add_u32 %s, %s, 4096' % (S_MB2, S_MB))
        for j in range(nper):
            a('s_add_u32 s5, s4, %d' % j)
            a('s_lshr_b32 s6, s5, 3')
            a('s_and_b32 s5, s5, 7')
            a('s_mul_i32 s5, s5, 49152')
            a('s_lshl_b32 s6, s6, 11')
            a('s_add_u32 s5, s5, s6')
            a('s_lshl_b32 s6, %s, 7' % S_NT)
            a('s_add_u32 s5, s5, s6')
            c = seg0 * 2048 - (j & 3) * 1024
            if c > 0:
                a('s_add_u32 s5, s5, %d' % c)
            elif c < 0:
                a('s_sub_u32 s5, s5, %d' % (-c))
            a('v_add_u32 v%d, s5, v%d' % (VW[j], T1 if (S16 and (j & 1)) else T0))
        a('s_mov_b32 s7, s3')
        set_stream(a, S_O2, S_ADV2, S_END2, 0x60000, 16, 0)
        a('s_mov_b32 %s, 0' % S_TMP)
        a('s_lshl_b32 s5, %s, 6' % S_WN)
        if S16:
            kn_read_addr16(a, [VB0, VA[2]], V_LANE, S_TMP, base, T0, T1, s_xor='s5')
        else:
            kn_read_addr(a, VB0, None, V_LANE, S_TMP, base, T0, T1)
            a('v_xor_b32 v%d, s5, v%d' % (VB0, VB0))

    def w_setup_half(base):
        a('s_and_b32 s4, %s, 3' % S_WAVE)
        a('v_lshrrev_b32 v%d, 3, v%d' % (T0, V_LANE))
        a('v_mul_u32_u24 v%d, 6144, v%d' % (T0, T0))
        a('v_bfe_u32 v%d, v%d, 4, 1' % (T1, V_LANE))
        a('v_lshlrev_b32 v%d, 1, v%d' % (T1, T1))
        a('v_and_b32 v%d, 7, v%d' % (T2, V_LANE))
        a('v_xor_b32 v%d, v%d, v%d' % (T1, T1, T2))
        a('v_lshl_add_u32 v%d, v%d, 4, v%d' % (T0, T1, T0))
        a('s_mul_i32 s4, s4, 3')
        a('s_lshl_b32 %s, s4, 10' % S_MB)
        a('s_add_u32 %s, %s, %d' % (S_MB, S_MB, base))
        for j in range(3):
            a('s_add_u32 s5, s4, %d' % j)
            a('s_and_b32 s6, s5, 1')
            a('s_lshl_b32 s6, s6, 6')
            a('v_xor_b32 v%d, s6, v%d' % (T1, T0))
            a('s_lshr_b32 s6, s5, 2')
            a('s_and_b32 s5, s5, 3')
            a('s_mul_i32 s5, s5, 49152')
            a('s_lshl_b32 s6, s6, 11')
            a('s_add_u32 s5, s5, s6')
            a('s_lshl_b32 s6, %s, 7' % S_NT)
            a('s_add_u32 s5, s5, s6')
            if j:
                a('s_sub_u32 s5, s5, %d' % (j * 1024))
            a('v_add_u32 v%d, s5, v%d' % (VW[j], T1))
        a('s_mul_i32 %s, s3, 0x60000' % S_O2)
        a('s_mov_b32 %s, 0x30000' % S_ADV2)
        a('s_mov_b32 %s, 0x600000' % S_END2)
        a('s_mov_b32 %s, 0' % S_TMP)
        a('s_lshl_b32 s5, %s, 6' % S_WN)
        kn_read_addr16(a, [VB0, VA[2]], V_LANE, S_TMP, base, T0, T1, s_xor='s5')

    if TWOPASS:
        w_setup(4, 1, BBASE)
    elif HALFW and S16:
        w_setup_half(BBASE)
    else:
        w_setup(6, 0, BBASE_A)

    def mid(nvm):
        a('s_lshl_b32 s5, %s, 13' % S_WAVE)
        a('v_and_b32 v%d, 5, v%d' % (T0, V_L31))
        a('v_bfe_u32 v%d, v%d, 1, 1' % (T1, V_L31))
        a('v_lshl_or_b32 v%d, v%d, 3, v%d' % (T0, T1, T0))
        a('v_bfe_u32 v%d, v%d, 3, 1' % (T1, V_L31))
        a('v_lshl_or_b32 v%d, v%d, 1, v%d' % (T0, T1, T0))
        a('v_xor_b32 v%d, v%d, v%d' % (T0, T0, V_HH))
        a('v_lshlrev_b32 v%d, 3, v%d' % (T0, T0))
        a('v_lshl_add_u32 v%d, v%d, 7, v%d' % (T0, V_L31, T0))
        a('v_add_u32 v%d, s5, v%d' % (T0, T0))
        for k in range(8):
            a('v_xor_b32 v%d, %d, v%d' % (VWR + k, ((k & 3) * 2 + (k >> 2) * 8) * 8, T0))
        a('v_bfe_u32 v%d, v%d, 2, 2' % (T0, V_LANE))
        if S16:
            a('v_and_b32 v%d, 1, v%d' % (T1, T0))
            a('v_bfe_u32 v%d, v%d, 1, 1' % (T2, T0))
            a('v_lshl_or_b32 v%d, v%d, 3, v%d' % (T1, T2, T1))
            a('v_lshl_or_b32 v%d, v%d, 1, v%d' % (T1, V_HH, T1))
            a('v_lshl_add_u32 v%d, v%d, 3, v%d' % (T0, V_HH, T0))
        else:
            a('v_lshl_add_u32 v%d, v%d, 2, v%d' % (T0, V_HH, T0))
            a('v_and_b32 v%d, 5, v%d' % (T1, T0))
            a('v_bfe_u32 v%d, v%d, 1, 1' % (T2, T0))
            a('v_lshl_or_b32 v%d, v%d, 3, v%d' % (T1, T2, T1))
        a('v_and_b32 v%d, 3, v%d' % (T2, V_LANE))
        a('v_bfe_u32 v%d, v%d, 4, 1' % (T3, V_LANE))
        a('v_lshl_or_b32 v%d, v%d, 2, v%d' % (T2, T3, T2))
        a('v_xor_b32 v%d, v%d, v%d' % (T1, T1, T2))
        a('v_lshlrev_b32 v%d, 3, v%d' % (T1, T1))
        a('v_lshl_add_u32 v%d, v%d, 7, v%d' % (T1, T0, T1))
        a('v_add_u32 v%d, s5, v%d' % (T1, T1))
        for ft in range(2):
            for u in range(2):
                a('v_xor_b32 v%d, %d, v%d' % (VTR + 2 * ft + u, ft * 64 + u * (32 if S16 else 16), T1))
        a('s_lshl_b32 s5, %s, 2' % S_NT)
        if os.environ.get('DBGT'):
            a('s_add_u32 s5, s5, 192')
        a('v_mov_b32 v%d, s5' % V_OFF)
        a('v_mov_b32 v%d, 1' % V_ONE)
        a('s_lshl_b32 s5, %s, 12' % S_WAVE)
        a('v_lshrrev_b32 v%d, 3, v%d' % (T0, V_LANE))
        a('v_and_b32 v%d, 7, v%d' % (T1, V_LANE))
        a('v_xor_b32 v%d, v%d, v%d' % (T2, T0, T1))
        a('v_lshlrev_b32 v%d, 4, v%d' % (T2, T2))
        a('v_lshl_add_u32 v%d, v%d, 7, v%d' % (T2, T0, T2))
        a('v_add_u32 v%d, s5, v%d' % (V_OR, T2))
        a('s_lshl_b32 s5, %s, 8' % S_MT)
        a('s_lshl_b32 s6, %s, 5' % S_WAVE)
        a('s_add_u32 s5, s5, s6')
        a('v_add_u32 v%d, s5, v%d' % (T0, T0))
        a('v_lshlrev_b32 v%d, 11, v%d' % (T0, T0))
        a('v_lshl_add_u32 v%d, v%d, 4, v%d' % (T0, T1, T0))
        a('s_lshl_b32 s5, %s, 7' % S_NT)
        a('v_add_u32 v%d, s5, v%d' % (V_O, T0))
        a('s_waitcnt vmcnt(%d)' % nvm)
        for r in range(8):
            a('v_lshl_or_b32 v%d, v%d, 16, v%d' % (WPH + r, ACC + 2 * r + 1, ACC + 2 * r))

    def acc(tm, tn):
        return vr(ACC + 32 * tn + 16 * tm, 16)

    stamp(a, 1)
    wgt(a, 1)
    if TWOPASS:
        ringA = Ring(32768, 3, ['s67', 's68', 's79'], S_TMP)
        ringB = Ring(16384, 3, ['s12', 's13', 's14'], S_TMP)
        sbg = [(S_MB, [(VW[j], 's[52:55]', S_O2, j * 1024) for j in range(4)])]
        run_roles(a, 'k1a', ringA, ringB, sbg, TM=2, TN=2, PD=PDA, NS=2 * PDA, FR=FR, vA=VA, offA=[0, 4096],
                  bmode='kn', vB=[VB0], offB=[(0, 0), (0, 8192)], acc=lambda tm, tn: acc(tm, tn + 1),
                  swap=lambda tm, tn: tn < 1, s_cnt=S_CNT, mid=mid)
    else:
        if not os.environ.get('NO_SWAPRING'):
            ringA = Ring(32768, 2, ['s67', 's68', 's79'], S_TMP)
            ringB = Ring(24576, 4 if W4 else 3, ['s12', 's13', 's14', 's4'], S_TMP)
        else:
            ringA = Ring(32768, 3, ['s67', 's68', 's79'], S_TMP)
            ringB = Ring(24576, 2, ['s12', 's13'], S_TMP)
        sbg = [(S_MB, [(VW[j], 's[52:55]', S_O2, j * 1024) for j in range(4)]),
               (S_MB2, [(VW[4 + j], 's[52:55]', S_O2, j * 1024) for j in range(2)])]
        if S16 and HALFW:
            ringA = Ring(32768, 3, ['s67', 's68', 's79'], S_TMP)
            ringB = Ring(12288, 5, ['s12', 's13', 's14', 's78', 's4'], S_TMP)
            sbg = [(S_MB, [(VW[j], 's[52:55]', S_O2, j * 1024) for j in range(3)])]
            run_roles(a, 'k1a', ringA, ringB, sbg, cls=GemmH, TM=4, TN=6, PD=1, NS=2, FR=FR, vA=VA,
                      offA=[0, 2048, 4096, 6144], bmode='kn', vB=[VB0, VA[2]],
                      offB=[(tn & 1, (tn >> 1) * 4096) for tn in range(6)],
                      acc=lambda tm, tn: vr(ACC + 32 * (tn >> 1) + 8 * tm + 4 * (tn & 1), 4),
                      swap=lambda tm, tn: tn < 4, s_cnt=S_CNT, mid=mid, s16=True)
        elif S16:
            run_roles(a, 'k1a', ringA, ringB, sbg, TM=4, TN=6, PD=1, NS=2, FR=FR, vA=VA, offA=[0, 2048, 4096, 6144],
                      bmode='kn', vB=[VB0, VA[2]], offB=[(tn & 1, (tn >> 1) * 8192) for tn in range(6)],
                      acc=lambda tm, tn: vr(ACC + 32 * (tn >> 1) + 8 * tm + 4 * (tn & 1), 4),
                      swap=lambda tm, tn: tn < 4, s_cnt=S_CNT, mid=mid, s16=True)
        else:
            run_roles(a, 'k1a', ringA, ringB, sbg, TM=2, TN=3, PD=PDA, NS=2 * PDA, FR=FR, vA=VA, offA=[0, 4096],
                      bmode='kn', vB=[VB0], offB=[(0, 0), (0, 8192), (0, 16384)], acc=acc,
                      swap=lambda tm, tn: tn < 2,
                      s_cnt=S_CNT, mid=mid)
    stamp(a, 2)
    wgt(a, 2)
    PK = 144
    PP = 152
    EP = 168
    EN = 184
    OP = 200
    ON = 208
    KV = 216
    TS = 248
    ZA = 22
    V_ONES = 21
    AF = 168
    a('v_mov_b32 v%d, 0x3f803f80' % V_ONES)
    a('v_mov_b32 v%d, 0' % ZA)
    a('v_mov_b32 v%d, 0' % (ZA + 1))
    srd(a, 56, 'ws', 4 << 20, WS_KVP)
    srd(a, 60, 'ws', 4 << 20, WS_O)

    def featmap(src, outp, outn):
        if S16:
            for tt in range(2):
                for dt in range(2):
                    for p in range(2):
                        r = src + 8 * tt + 4 * dt + 2 * p
                        a('v_cvt_pk_bf16_f32 v%d, v%d, v%d' % (PK + 4 * dt + 2 * tt + p, r, r + 1))
            for dt in range(2):
                for p in range(2):
                    a('v_permlane16_swap_b32 v%d, v%d' % (PK + 4 * dt + p, PK + 4 * dt + 2 + p))
        for k in range(0 if S16 else 8):
            a('v_cvt_pk_bf16_f32 v%d, v%d, v%d' % (PK + k, src + 2 * k, src + 2 * k + 1))
        a('v_mfma_f32_32x32x16_bf16 %s, %s, %s, 0' % (vr(PP, 16), vr(WPH, 4), vr(PK, 4)))
        a('v_mfma_f32_32x32x16_bf16 %s, %s, %s, %s' % (vr(PP, 16), vr(WPH + 4, 4), vr(PK + 4, 4), vr(PP, 16)))
        softmax_pm(a, PP, EP, EN, outp, outn, TS)

    for tm in range(2):
        featmap(AK + 16 * tm, OP, ON)
        if tm == 0:
            a('s_barrier')
        for g4 in range(4):
            a('ds_write_b64 v%d, %s offset:%d' % (VWR + g4, vr(OP + 2 * g4, 2), tm * 4096))
            a('ds_write_b64 v%d, %s offset:%d' % (VWR + 4 + g4, vr(ON + 2 * g4, 2), tm * 4096))
        for k in range(8):
            a('v_cvt_pk_bf16_f32 v%d, v%d, v%d' % (PK + k, AV + 16 * tm + 2 * k, AV + 16 * tm + 2 * k + 1))
        if S16:
            for s in range(2):
                for p in range(2):
                    a('v_permlane16_swap_b32 v%d, v%d' % (PK + 4 * s + p, PK + 4 * s + 2 + p))
        a('s_waitcnt lgkmcnt(0)')
        for ft in range(2):
            for s in range(2):
                f = AF + 4 * (2 * ft + s)
                for u in range(2):
                    a('ds_read_b64_tr_b16 %s, v%d offset:%d' % (vr(f + 2 * u, 2), VTR + 2 * ft + u,
                                                                 tm * 4096 + s * 2048 + u * (512 if S16 else 1024)))
        for ft in range(2):
            for s in range(2):
                f = AF + 4 * (2 * ft + s)
                a('s_waitcnt lgkmcnt(%d)' % (6 - 2 * (2 * ft + s)))
                c = '0' if (tm == 0 and s == 0) else vr(KV + 16 * ft, 16)
                a('v_mfma_f32_32x32x16_bf16 %s, %s, %s, %s' % (vr(KV + 16 * ft, 16), vr(f, 4), vr(PK + 4 * s, 4), c))
                for k in range(4):
                    a('v_dot2c_f32_bf16 v%d, v%d, v%d' % (ZA + ft, f + k, V_ONES))
    a('v_mov_b32 v%d, v%d' % (TS, ZA))
    a('v_mov_b32 v%d, v%d' % (TS + 1, ZA + 1))
    a('v_permlane32_swap_b32 v%d, v%d' % (ZA, TS))
    a('v_permlane32_swap_b32 v%d, v%d' % (ZA + 1, TS + 1))
    a('v_add_f32 v%d, v%d, v%d' % (ZA, ZA, TS))
    a('v_add_f32 v%d, v%d, v%d' % (ZA + 1, ZA + 1, TS + 1))
    a('v_cmp_eq_u32 vcc, 1, v%d' % V_HH)
    a('v_cndmask_b32 v%d, v%d, v%d, vcc' % (ZA, ZA, ZA + 1))
    a('s_lshl_b32 s5, %s, 13' % S_WAVE)
    a('v_lshl_add_u32 v%d, v%d, 4, s5' % (T0, V_LANE))
    a('s_lshl_b32 s5, %s, 8' % S_WAVE)
    a('s_add_u32 s5, s5, 65536')
    a('v_lshl_add_u32 v%d, v%d, 2, s5' % (T1, V_LANE))
    a('ds_write_b32 v%d, v%d' % (T1, ZA))
    for q in range(8):
        a('ds_write_b128 v%d, %s offset:%d' % (T0, vr(KV + 4 * q, 4), q * 1024))
    a('s_lshl_b32 s5, %s, 13' % S_WN)
    a('s_lshl_b32 s6, %s, 11' % S_WM)
    a('s_add_u32 s5, s5, s6')
    a('v_lshl_add_u32 v%d, v%d, 4, s5' % (T0, V_LANE))
    a('s_lshl_b32 s5, %s, 8' % S_WN)
    a('s_add_u32 s5, s5, 65536')
    a('v_lshl_add_u32 v%d, v%d, 2, s5' % (T1, V_LANE))
    a('s_lshl_b32 s5, %s, 5' % S_MT)
    a('s_add_u32 s5, s5, %s' % S_HD)
    a('s_lshl_b32 s6, s5, 13')
    a('s_lshl_b32 s7, %s, 11' % S_WM)
    a('s_add_u32 s6, s6, s7')
    a('v_lshlrev_b32 v%d, 4, v%d' % (T2, V_LANE))
    a('s_lshl_b32 s7, s5, 8')
    a('s_add_u32 s7, s7, 0x%x' % (WS_ZP - WS_KVP))
    a('v_lshlrev_b32 v%d, 2, v%d' % (T3, V_LANE))
    a('s_waitcnt lgkmcnt(0)')
    a('s_barrier')
    R = 216
    for w in range(4):
        for q in range(2):
            a('ds_read_b128 %s, v%d offset:%d' % (vr(R + 8 * w + 4 * q, 4), T0, w * 16384 + q * 1024))
    for w in range(4):
        a('ds_read_b32 v%d, v%d offset:%d' % (OP + w, T1, w * 512))
    a('s_waitcnt lgkmcnt(4)')
    for k in range(0, 8, 2):
        a('v_pk_add_f32 %s, %s, %s' % (vr(R + k, 2), vr(R + k, 2), vr(R + 8 + k, 2)))
        a('v_pk_add_f32 %s, %s, %s' % (vr(R + 16 + k, 2), vr(R + 16 + k, 2), vr(R + 24 + k, 2)))
    for k in range(0, 8, 2):
        a('v_pk_add_f32 %s, %s, %s' % (vr(R + k, 2), vr(R + k, 2), vr(R + 16 + k, 2)))
    a('buffer_store_dwordx4 %s, v%d, s[56:59], s6 offen sc1' % (vr(R, 4), T2))
    a('buffer_store_dwordx4 %s, v%d, s[56:59], s6 offen offset:1024 sc1' % (vr(R + 4, 4), T2))
    a('s_waitcnt lgkmcnt(0)')
    a('v_add_f32 v%d, v%d, v%d' % (OP, OP, OP + 1))
    a('v_add_f32 v%d, v%d, v%d' % (OP + 2, OP + 2, OP + 3))
    a('v_add_f32 v%d, v%d, v%d' % (ZA, OP, OP + 2))
    a('s_cmp_lg_u32 %s, 0' % S_WM)
    a('s_cbranch_scc1 k1a_noz')
    a('buffer_store_dword v%d, v%d, s[56:59], s7 offen sc1' % (ZA, T3))
    a.label('k1a_noz')
    stamp(a, 3)
    if ((not FUSE) or WGTA) and not WGTB:
        wgt(a, 3)
    nsig = [0]

    def signal():
        nsig[0] += 1
        lab = 'k1a_nosig%d' % nsig[0]
        a('s_cmp_lg_u32 %s, 0' % S_WAVE)
        a('s_cbranch_scc1 %s' % lab)
        a('s_mov_b64 exec, 1')
        a('global_atomic_add v%d, v%d, s[44:45] sc1' % (V_OFF, V_ONE))
        a('s_mov_b64 exec, -1')
        a.label(lab)

    if TWOPASS:
        PQ = 216
        a('s_lshl_b32 %s, %s, 13' % (S_MA, S_WAVE))
        a('s_add_u32 %s, %s, 4096' % (S_MA2, S_MA))
        a('s_lshl_b32 %s, s3, 7' % S_OA)
        a('s_lshl_b32 %s, %s, 13' % (S_TMP, S_WM))
        kc_read_addrs(a, VA, V_L31, V_HH, S_TMP, 0, T0, T1)
        w_setup(2, 0, BBASE)
        a('s_barrier')
        ringB = Ring(8192, 3, ['s12', 's13', 's14'], S_TMP)
        sbg = [(S_MB, [(VW[j], 's[52:55]', S_O2, j * 1024) for j in range(2)])]

        def mid2(nvm):
            a('s_waitcnt vmcnt(%d)' % nvm)
        run_roles(a, 'k1q', ringA, ringB, sbg, TM=2, TN=1, PD=PDA, NS=2 * PDA, FR=FR, vA=VA, offA=[0, 4096],
                  bmode='kn', vB=[VB0], offB=[(0, 0)], acc=lambda tm, tn: acc(tm, 0),
                  swap=lambda tm, tn: True, s_cnt=S_CNT, mid=mid2, post_bar=signal, n_extra_post=1)
        a('v_lshlrev_b32 v%d, 4, v%d' % (T2, V_LANE))
        a('v_lshlrev_b32 v%d, 2, v%d' % (T3, V_LANE))
    else:
        PQ = AK
        featmap(AQ, PQ, PQ + 8)
        a('s_waitcnt vmcnt(0)')
        a('s_barrier')
        signal()
        if not EARLYPOLL:
            featmap(AQ + 16, PQ + 16, PQ + 24)
    stamp(a, 4)
    if ((not FUSE) or WGTA) and not WGTB:
        wgt(a, 4)
    poll(a, 'k1a_poll', V_OFF, T0, '8', 'ge')
    if WGTB:
        wgt(a, 2)
    stamp(a, 5)
    if ((not FUSE) or WGTA) and not WGTB:
        wgt(a, 5)
    a('s_lshl_b32 s6, %s, 13' % S_HD)
    a('s_lshl_b32 s7, %s, 11' % S_WM)
    a('s_add_u32 s6, s6, s7')
    if TWOPASS:
        LM = [AK + 8 * m for m in range(8)]
        ZL = 200
    elif EARLYPOLL:
        L = AV
        LM = [AV, AV + 8, AV + 16, AV + 24, 216, 224, 232, 240]
        ZL = AQ
    else:
        LM = [144 + 8 * m for m in range(8)]
        ZL = 208
    for m in range(8):
        a('buffer_load_dwordx4 %s, v%d, s[56:59], s6 offen sc1' % (vr(LM[m], 4), T2))
        a('buffer_load_dwordx4 %s, v%d, s[56:59], s6 offen offset:1024 sc1' % (vr(LM[m] + 4, 4), T2))
        if m < 7:
            a('s_add_u32 s6, s6, 0x40000')
    a('s_lshl_b32 s7, %s, 8' % S_HD)
    a('s_add_u32 s7, s7, 0x%x' % (WS_ZP - WS_KVP))
    for m in range(8):
        a('buffer_load_dword v%d, v%d, s[56:59], s7 offen sc1' % (ZL + m, T3))
        if m < 7:
            a('s_add_u32 s7, s7, 0x2000')
    if TWOPASS:
        featmap(AQ, PQ, PQ + 8)
        featmap(AQ + 16, PQ + 16, PQ + 24)
    elif EARLYPOLL:
        featmap(AQ + 16, PQ + 16, PQ + 24)
    a('s_lshl_b32 s5, %s, 12' % S_WN)
    a('v_lshl_add_u32 v%d, v%d, 4, s5' % (T0, V_LANE))
    a('s_lshl_b32 s6, %s, 10' % S_WM)
    a('v_add_u32 v%d, s6, v%d' % (T1, T0))
    a('s_lshl_b32 s5, %s, 13' % S_WM)
    a('s_lshl_b32 s6, %s, 2' % S_WN)
    a('v_or_b32 v%d, s6, v%d' % (TS, V_HH))
    a('v_and_b32 v%d, 7, v%d' % ((TS + 1), V_L31))
    a('v_xor_b32 v%d, v%d, v%d' % (TS, TS, (TS + 1)))
    a('v_lshlrev_b32 v%d, 4, v%d' % (TS, TS))
    a('v_lshl_add_u32 v%d, v%d, 7, v%d' % (TS, V_L31, TS))
    a('v_add_u32 v%d, s5, v%d' % (V_OW, TS))
    a('v_xor_b32 v%d, 32, v%d' % (V_OW + 1, V_OW))
    a('s_waitcnt vmcnt(8)')
    if WGTB:
        wgt(a, 3)
    for k in range(0, 8, 2):
        for m in range(0, 8, 2):
            a('v_pk_add_f32 %s, %s, %s' % (vr(LM[m] + k, 2), vr(LM[m] + k, 2), vr(LM[m + 1] + k, 2)))
    for k in range(0, 8, 2):
        a('v_pk_add_f32 %s, %s, %s' % (vr(LM[0] + k, 2), vr(LM[0] + k, 2), vr(LM[2] + k, 2)))
        a('v_pk_add_f32 %s, %s, %s' % (vr(LM[4] + k, 2), vr(LM[4] + k, 2), vr(LM[6] + k, 2)))
    for k in range(0, 8, 2):
        a('v_pk_add_f32 %s, %s, %s' % (vr(LM[0] + k, 2), vr(LM[0] + k, 2), vr(LM[4] + k, 2)))
    for k in range(4):
        a('v_cvt_pk_bf16_f32 v%d, v%d, v%d' % (LM[1] + k, LM[0] + 2 * k, LM[0] + 2 * k + 1))
    a('ds_write_b128 v%d, %s' % (T1, vr(LM[1], 4)))
    a('s_waitcnt vmcnt(0)')
    for m in range(0, 8, 4):
        a('v_pk_add_f32 %s, %s, %s' % (vr(ZL + m, 2), vr(ZL + m, 2), vr(ZL + m + 2, 2)))
    a('v_pk_add_f32 %s, %s, %s' % (vr(ZL, 2), vr(ZL, 2), vr(ZL + 4, 2)))
    a('v_add_f32 v%d, v%d, v%d' % (ZL, ZL, ZL + 1))
    a('v_cvt_pk_bf16_f32 v%d, v%d, v%d' % (ZL, ZL, ZL))
    a('s_lshl_b32 s5, %s, 7' % S_WN)
    a('s_add_u32 s5, s5, 8192')
    a('v_lshl_add_u32 v%d, v%d, 1, s5' % (T1, V_LANE))
    a('ds_write_b16 v%d, v%d' % (T1, ZL))
    a('v_lshl_add_u32 v%d, v%d, 3, s5' % (T1, V_HH))
    a('s_lshl_b32 s5, %s, 6' % S_HD)
    a('s_add_u32 s6, s5, 0x10000')
    a('s_waitcnt lgkmcnt(0)')
    a('s_barrier')
    if WGTB:
        wgt(a, 4)
    KF = 144
    ZF = 160
    for f in range(4):
        a('ds_read_b128 %s, v%d offset:%d' % (vr(KF + 4 * f, 4), T0, f * 1024))
        a('ds_read_b64 %s, v%d offset:%d' % (vr(ZF + 4 * f, 2), T1, f * 32))
        a('ds_read_b64 %s, v%d offset:%d' % (vr(ZF + 4 * f + 2, 2), T1, f * 32 + 16))
    NUM = 176
    DEN = 208
    if TWOPASS:
        NUM, DEN = AK, AV
    for f in range(4):
        a('s_waitcnt lgkmcnt(%d)' % (9 - 3 * f))
        for tm in range(2):
            b = PQ + 16 * tm + 4 * f
            a('v_mfma_f32_32x32x16_bf16 %s, %s, %s, %s' % (vr(DEN + 16 * tm, 16), vr(ZF + 4 * f, 4), vr(b, 4),
                                                           '0' if f == 0 else vr(DEN + 16 * tm, 16)))
            a('v_mfma_f32_32x32x16_bf16 %s, %s, %s, %s' % (vr(NUM + 16 * tm, 16), vr(KF + 4 * f, 4), vr(b, 4),
                                                           '0' if f == 0 else vr(NUM + 16 * tm, 16)))
    for tm in range(2):
        d = DEN + 16 * tm
        n = NUM + 16 * tm
        a('v_add_f32 v%d, 0x358637bd, v%d' % (d, d))
        a('v_rcp_f32 v%d, v%d' % (d, d))
        for k in range(0, 16, 2):
            a('v_pk_mul_f32 %s, %s, %s op_sel_hi:[1,0]' % (vr(n + k, 2), vr(n + k, 2), vr(d, 2)))
        o = d + 4
        for k in range(8):
            a('v_cvt_pk_bf16_f32 v%d, v%d, v%d' % (o + k, n + 2 * k, n + 2 * k + 1))
        for p in range(2):
            a('v_permlane32_swap_b32 v%d, v%d' % (o + 4 * p, o + 4 * p + 2))
            a('v_permlane32_swap_b32 v%d, v%d' % (o + 4 * p + 1, o + 4 * p + 3))
            a('ds_write_b128 v%d, %s offset:%d' % (V_OW + p, vr(o + 4 * p, 4), OBASE + tm * 4096))
    a('s_waitcnt lgkmcnt(0)')
    a('s_barrier')
    if WGTB:
        wgt(a, 5)
    for i in range(4):
        a('ds_read_b128 %s, v%d offset:%d' % (vr(144 + 4 * i, 4), V_OR, OBASE + i * 1024))
    for i in range(4):
        a('s_mov_b32 s5, 0x%x' % (i * 8 * 2048))
        a('s_waitcnt lgkmcnt(%d)' % (3 - i))
        a('buffer_store_dwordx4 %s, v%d, s[60:63], s5 offen%s' % (vr(144 + 4 * i, 4), V_O,
                                                                  os.environ.get('STO', ' sc1' if FUSE else '')))
    if FUSE:
        handoff_phase2(a, 'a')
        return
    stamp(a, 6)
    wgt(a, 6)
    stamp_flush(a, 7, 0)
    wgt_flush(a, 7, 0)
    a('s_endpgm')


def cmul(a, dr, di, ar, ai, br, bi, t):
    a('v_mul_f32 v%d, v%d, v%d' % (t, ai, bi))
    a('v_mul_f32 v%d, v%d, v%d' % (t + 1, ar, bi))
    a('v_fma_f32 v%d, v%d, v%d, -v%d' % (t, ar, br, t))
    a('v_fma_f32 v%d, v%d, v%d, v%d' % (di, ai, br, t + 1))
    a('v_mov_b32 v%d, v%d' % (dr, t))


def cfma(a, hr, hi, lr, li, ur, ui, t):
    a('v_fma_f32 v%d, -v%d, v%d, v%d' % (t, li, hi, ur))
    a('v_fma_f32 v%d, v%d, v%d, v%d' % (t + 1, li, hr, ui))
    a('v_fma_f32 v%d, v%d, v%d, v%d' % (hr, lr, hr, t))
    a('v_fma_f32 v%d, v%d, v%d, v%d' % (hi, lr, hi, t + 1))


def gen_B(a, VA):
    a.comment('==== B: input projection gemm')
    VB = [12, 21, 22, 23]
    LR, LI, CR, CI, L32R, L32I, L256R, L256I = 24, 25, 26, 27, 28, 29, 30, 31
    V_P2, V_OFF, V_BIT, V_SEL, V_H, V_Q = 32, 33, 34, 35, 36, 37
    TT = 38
    V_HW = 47
    ACC = 48
    FR = 112
    NB, ST = 3, 49152
    a('s_lshl_b32 s5, %s, 6' % S_NT)
    a('s_lshl_b32 s6, %s, 5' % S_WN)
    a('s_add_u32 s5, s5, s6')
    a('v_add_u32 v%d, s5, v%d' % (V_P2, V_L31))
    a('v_lshlrev_b32 v%d, 1, v%d' % (T0, V_P2))
    a('global_load_ushort v%d, v%d, s[26:27]' % (TT, T0))
    a('global_load_ushort v%d, v%d, s[28:29]' % (TT + 1, T0))
    a('global_load_ushort v%d, v%d, s[38:39]' % (TT + 2, T0))
    VW = [176, 177, 178, 179]
    srd(a, 48, 'Bx', 4 << 20)
    srd(a, 52, 'Bre', 2 << 20)
    srd(a, 56, 'Bim', 2 << 20)
    a('s_and_b32 s4, %s, 3' % S_WAVE)
    a('s_cmp_ge_u32 s4, 2')
    a('s_cselect_b32 s52, s56, s52')
    a('s_cselect_b32 s53, s57, s53')
    a('s_lshl_b32 s5, %s, 8' % S_MT)
    a('s_lshl_b32 s6, s4, 6')
    a('s_add_u32 s6, s5, s6')
    kc_dma_voffs(a, 's6', True)
    a('s_lshl_b32 %s, s7, 7' % S_OA)
    a('s_lshl_b32 s5, %s, 6' % S_NT)
    a('s_and_b32 s6, s4, 1')
    a('s_lshl_b32 s6, s6, 5')
    a('s_add_u32 s5, s5, s6')
    a('v_lshrrev_b32 v%d, 3, v%d' % (T0, V_LANE))
    a('v_add_u32 v%d, s5, v%d' % (T0, T0))
    a('v_lshlrev_b32 v%d, 11, v%d' % (T0, T0))
    for j in range(4):
        a('v_xor_b32 v%d, %d, v%d' % (T2, (j & 1) * 4, T1))
        a('v_lshl_add_u32 v%d, v%d, 4, v%d' % (VW[j], T2, T0))
        if j:
            a('v_add_u32 v%d, 0x%x, v%d' % (VW[j], 8 * j * 2048 - j * 1024, VW[j]))
    a('s_lshl_b32 %s, s4, 12' % S_MB)
    a('s_add_u32 %s, %s, %d' % (S_MB, S_MB, BBASE))
    set_stream(a, S_O2, S_ADV2, S_END2, 128, 16, 0)
    a('s_lshl_b32 %s, %s, 12' % (S_TMP, S_WN))
    if S16:
        kc_read_addrs16(a, VB, V_LANE, S_TMP, BBASE, T0, T1)
    else:
        kc_read_addrs(a, VB, V_L31, V_HH, S_TMP, BBASE, T0, T1)

    def mid(nvm):
        a('s_waitcnt vmcnt(%d)' % nvm)
        lre, lim, dt = TT, TT + 1, TT + 2
        a('v_lshlrev_b32 v%d, 16, v%d' % (lre, lre))
        a('v_lshlrev_b32 v%d, 16, v%d' % (lim, lim))
        a('v_lshlrev_b32 v%d, 16, v%d' % (dt, dt))
        a('v_mul_f32 v%d, %s, v%d' % (dt, S_L2E, dt))
        a('v_exp_f32 v%d, v%d' % (dt, dt))
        a('v_cvt_pk_bf16_f32 v%d, v%d, v%d' % (dt, dt, dt))
        a('v_lshlrev_b32 v%d, 16, v%d' % (dt, dt))
        a('v_mul_f32 v%d, v%d, v%d' % (TT + 3, dt, lre))
        a('v_mul_f32 v%d, v%d, v%d' % (TT + 4, dt, lim))
        a('v_mul_f32 v%d, %s, v%d' % (TT + 3, S_L2E, TT + 3))
        a('v_exp_f32 v%d, v%d' % (TT + 3, TT + 3))
        a('v_mul_f32 v%d, 0.15915494, v%d' % (TT + 4, TT + 4))
        a('v_rndne_f32 v%d, v%d' % (TT + 5, TT + 4))
        a('v_sub_f32 v%d, v%d, v%d' % (TT + 4, TT + 4, TT + 5))
        a('v_cos_f32 v%d, v%d' % (LR, TT + 4))
        a('v_sin_f32 v%d, v%d' % (LI, TT + 4))
        a('v_mul_f32 v%d, v%d, v%d' % (LR, LR, TT + 3))
        a('v_mul_f32 v%d, v%d, v%d' % (LI, LI, TT + 3))
        a('v_add_f32 v%d, -1.0, v%d' % (TT + 5, LR))
        a('v_mul_f32 v%d, v%d, v%d' % (TT + 6, lre, lre))
        a('v_fma_f32 v%d, v%d, v%d, v%d' % (TT + 6, lim, lim, TT + 6))
        a('v_rcp_f32 v%d, v%d' % (TT + 6, TT + 6))
        a('v_mul_f32 v%d, v%d, v%d' % (CR, TT + 5, lre))
        a('v_fma_f32 v%d, v%d, v%d, v%d' % (CR, LI, lim, CR))
        a('v_mul_f32 v%d, v%d, v%d' % (CI, TT + 5, lim))
        a('v_fma_f32 v%d, v%d, v%d, -v%d' % (CI, LI, lre, CI))
        a('v_add_f32 v%d, v%d, v%d' % (TT + 6, TT + 6, TT + 6))
        a('v_mul_f32 v%d, v%d, v%d' % (CR, CR, TT + 6))
        a('v_mul_f32 v%d, v%d, v%d' % (CI, CI, TT + 6))
        a('v_mov_b32 v%d, v%d' % (L32R, LR))
        a('v_mov_b32 v%d, v%d' % (L32I, LI))
        for _ in range(5):
            cmul(a, L32R, L32I, L32R, L32I, L32R, L32I, TT + 7)
        a('v_mov_b32 v%d, v%d' % (L256R, L32R))
        a('v_mov_b32 v%d, v%d' % (L256I, L32I))
        for _ in range(3):
            cmul(a, L256R, L256I, L256R, L256I, L256R, L256I, TT + 7)
        a('s_lshl_b32 s5, %s, 2' % S_NT)
        a('s_add_u32 s5, s5, 64')
        a('v_mov_b32 v%d, s5' % V_OFF)
        a('s_lshl_b32 s5, 1, %s' % S_MT)
        a('v_mov_b32 v%d, s5' % V_BIT)
        a('v_and_b32 v%d, 1, v%d' % (T0, V_LANE))
        a('v_mov_b32 v%d, 0x05040100' % V_SEL)
        a('v_mov_b32 v%d, 0x03020706' % T1)
        a('v_cmp_eq_u32 vcc, 1, v%d' % T0)
        a('v_cndmask_b32 v%d, v%d, v%d, vcc' % (V_SEL, V_SEL, T1))
        a('s_lshl_b32 s5, %s, 14' % S_WM)
        a('s_lshl_b32 s6, %s, 6' % S_WN)
        a('s_add_u32 s5, s5, s6')
        a('v_lshl_add_u32 v%d, v%d, 13, s5' % (V_HW, V_HH))
        a('v_lshl_add_u32 v%d, v%d, 7, v%d' % (V_HW, T0, V_HW))
        a('v_and_b32 v%d, 30, v%d' % (T1, V_L31))
        a('v_lshl_add_u32 v%d, v%d, 1, v%d' % (V_HW, T1, V_HW))
        a('s_lshl_b32 s5, %s, 8' % S_MT)
        a('s_lshl_b32 s6, %s, 5' % S_WAVE)
        a('s_add_u32 s5, s5, s6')
        a('v_lshrrev_b32 v%d, 4, v%d' % (T1, V_LANE))
        a('v_add_u32 v%d, s5, v%d' % (T1, T1))
        a('v_lshlrev_b32 v%d, 12, v%d' % (V_H, T1))
        a('v_bfe_u32 v%d, v%d, 3, 1' % (T1, V_LANE))
        a('v_lshl_add_u32 v%d, v%d, 11, v%d' % (V_H, T1, V_H))
        a('v_and_b32 v%d, 7, v%d' % (T1, V_LANE))
        a('v_lshl_add_u32 v%d, v%d, 4, v%d' % (V_H, T1, V_H))
        a('s_lshl_b32 s5, %s, 7' % S_NT)
        a('v_add_u32 v%d, s5, v%d' % (V_H, V_H))
        a('s_lshl_b32 s5, %s, 1' % S_WM)
        a('v_add_u32 v%d, s5, v%d' % (V_Q, V_HH))

    def acc(tm, tn):
        return vr(ACC + 32 * tm + 16 * tn, 16)

    stamp(a, 1)
    wgt(a, 1)
    ringA = Ring(32768, 3, ['s67', 's68', 's79'], S_TMP)
    ringB = Ring(16384, 4 if B4 else 3, ['s12', 's13', 's14', 's4'], S_TMP)
    sbg = [(S_MB, [(VW[j], 's[52:55]', S_O2, j * 1024) for j in range(4)])]
    PFS = int(os.environ.get('PFS', '0'))
    exn = None
    if PFS:
        from asmlib import Asm
        exn = {}
        for n, (ptr, nbytes) in enumerate([('Cre', 2 << 20), ('Cim', 2 << 20), ('wo', 2 << 20)]):
            t = Asm()
            t('s_lshl_b32 s5, %s, 4' % S_MT)
            t('s_add_u32 s5, s5, %s' % S_NT)
            t('s_lshl_b32 s5, s5, 2')
            t('s_add_u32 s5, s5, %s' % S_WAVE)
            t('s_sub_u32 s5, s5, 4')
            srd(t, 96, ptr, nbytes)
            t('s_mul_i32 s6, s5, 4096')
            t('v_min_u32 v%d, 31, v%d' % (T0, V_LANE))
            t('v_lshlrev_b32 v%d, 7, v%d' % (T0, T0))
            t('buffer_load_dword v255, v%d, s[96:99], s6 offen' % T0)
            exn[PFS + 2 * n] = {1: [list(t.lines)]}
    if S16:
        run_roles(a, 'k1b', ringA, ringB, sbg, extra_none=exn, TM=4, TN=4, PD=1, NS=2, FR=FR, vA=VA,
                  offA=[0, 2048, 4096, 6144], bmode='kc', vB=VB, offB=[0, 2048, 8192, 10240],
                  acc=lambda tm, tn: vr(ACC + 16 * tm + 4 * tn, 4), swap=lambda tm, tn: False,
                  s_cnt=S_CNT, mid=mid, s16=True)
    else:
        run_roles(a, 'k1b', ringA, ringB, sbg, extra_none=exn, TM=2, TN=2, PD=PDB, NS=2 * PDB, FR=FR, vA=VA, offA=[0, 4096],
                  bmode='kc', vB=VB, offB=[0, 8192], acc=acc, swap=lambda tm, tn: False,
                  s_cnt=S_CNT, mid=mid)
    stamp(a, 2)
    wgt(a, 2)
    if FUSE and not os.environ.get('NO_PF3') and not PFS:
        prefetch_tail(a, [('Cre', 2 << 20), ('Cim', 2 << 20), ('wo', 2 << 20)], 255, T0)

    def ure(i):
        if S16:
            return ACC + 16 * (i >> 3) + (i & 7)
        return ACC + 32 * (i >> 4) + (i & 15)

    def uim(i):
        return ure(i) + (8 if S16 else 16)

    if S16:
        for tm in range(4):
            for half in range(2):
                for j in range(4):
                    r = ACC + 16 * tm + 8 * half + j
                    a('v_permlane16_swap_b32 v%d, v%d' % (r, r + 4))

    ER, EI = 112, 113
    t = 114
    BU = 144
    CP1, CP2, LP1, LP2 = 208, 210, 212, 214

    def pk_step(h, i, tt):
        a('v_pk_fma_f32 %s, %s, %s, %s op_sel:[1,0,0] op_sel_hi:[0,1,1]' % (vr(tt, 2), vr(h, 2), vr(LP2, 2), vr(BU + 2 * i, 2)))
        a('v_pk_fma_f32 %s, %s, %s, %s' % (vr(h, 2), vr(h, 2), vr(LP1, 2), vr(tt, 2)))

    if PKB:
        a('v_mov_b32 v%d, v%d' % (CP1, CR))
        a('v_mov_b32 v%d, v%d' % (CP1 + 1, CI))
        a('v_xor_b32 v%d, 0x80000000, v%d' % (CP2, CI))
        a('v_mov_b32 v%d, v%d' % (CP2 + 1, CR))
        a('v_mov_b32 v%d, v%d' % (LP1, LR))
        a('v_mov_b32 v%d, v%d' % (LP1 + 1, LR))
        a('v_xor_b32 v%d, 0x80000000, v%d' % (LP2, LI))
        a('v_mov_b32 v%d, v%d' % (LP2 + 1, LI))
        for i in range(32):
            h = i & 1
            r, m = ure(i & ~1), uim(i & ~1)
            tt = t + 2 * (i & 1)
            a('v_pk_mul_f32 %s, %s, %s op_sel:[%d,0] op_sel_hi:[%d,1]' % (vr(tt, 2), vr(r, 2), vr(CP1, 2), h, h))
            a('v_pk_fma_f32 %s, %s, %s, %s op_sel:[%d,0,0] op_sel_hi:[%d,1,1]' %
              (vr(BU + 2 * i, 2), vr(m, 2), vr(CP2, 2), vr(tt, 2), h, h))
            if i == 1:
                a('v_mov_b32 v%d, v%d' % (ER, BU))
                a('v_mov_b32 v%d, v%d' % (EI, BU + 1))
            if i >= 1:
                pk_step(ER, i, t + 4)
    else:
      for i in range(32):
        r, m = ure(i), uim(i)
        a('v_mul_f32 v%d, v%d, v%d' % (t, CI, m))
        a('v_mul_f32 v%d, v%d, v%d' % (t + 1, CI, r))
        a('v_fma_f32 v%d, v%d, v%d, -v%d' % (r, CR, r, t))
        a('v_fma_f32 v%d, v%d, v%d, v%d' % (m, CR, m, t + 1))
        if i == 0:
            a('v_mov_b32 v%d, v%d' % (ER, r))
            a('v_mov_b32 v%d, v%d' % (EI, m))
        else:
            cfma(a, ER, EI, LR, LI, r, m, t + 2)
    a('s_barrier')
    a('s_lshl_b32 s5, %s, 8' % S_WN)
    a('v_lshl_add_u32 v%d, v%d, 3, s5' % (T0, V_L31))
    a('v_lshl_add_u32 v%d, v%d, 9, v%d' % (T1, V_Q, T0))
    a('ds_write_b64 v%d, %s' % (T1, vr(ER, 2)))
    a('s_waitcnt lgkmcnt(0)')
    a('s_barrier')
    E = 120
    for q in range(8):
        a('ds_read_b64 %s, v%d offset:%d' % (vr(E + 2 * q, 2), T0, q * 512))
    PR, PI, WR, WI, SPR, SPI, SWR, SWI = 136, 137, 138, 139, 140, 141, 142, 143
    a('v_mov_b32 v%d, 0' % PR)
    a('v_mov_b32 v%d, 0' % PI)
    a('v_mov_b32 v%d, 1.0' % WR)
    a('v_mov_b32 v%d, 0' % WI)
    a('v_mov_b32 v%d, 0' % SPR)
    a('v_mov_b32 v%d, 0' % SPI)
    a('v_mov_b32 v%d, 1.0' % SWR)
    a('v_mov_b32 v%d, 0' % SWI)
    a('s_waitcnt lgkmcnt(0)')
    for q in range(8):
        cfma(a, PR, PI, L32R, L32I, E + 2 * q, E + 2 * q + 1, t)
        if q < 7:
            cmul(a, WR, WI, WR, WI, L32R, L32I, t + 2)
            a('v_cmp_eq_u32 vcc, %d, v%d' % (q + 1, V_Q))
            a('v_cndmask_b32 v%d, v%d, v%d, vcc' % (SPR, SPR, PR))
            a('v_cndmask_b32 v%d, v%d, v%d, vcc' % (SPI, SPI, PI))
            a('v_cndmask_b32 v%d, v%d, v%d, vcc' % (SWR, SWR, WR))
            a('v_cndmask_b32 v%d, v%d, v%d, vcc' % (SWI, SWI, WI))
    srd(a, 60, 'ws', 65536, WS_AGG)
    a('v_lshlrev_b32 v%d, 3, v%d' % (T2, V_P2))
    a('s_lshl_b32 s5, %s, 13' % S_MT)
    a('s_cmp_lg_u32 %s, 0' % S_WM)
    a('s_cbranch_scc1 k1b_nopub')
    a('buffer_store_dwordx2 %s, v%d, s[60:63], s5 offen sc1' % (vr(PR, 2), T2))
    a('s_waitcnt vmcnt(0)')
    a.label('k1b_nopub')
    a('s_barrier')
    a('s_cmp_lg_u32 %s, 0' % S_WAVE)
    a('s_cbranch_scc1 k1b_nosig')
    a('s_mov_b64 exec, 1')
    a('global_atomic_or v%d, v%d, s[44:45] sc1' % (V_OFF, V_BIT))
    a('s_mov_b64 exec, -1')
    a.label('k1b_nosig')
    stamp(a, 3)
    if ((not FUSE) or WGTA) and not WGTB:
        wgt(a, 3)
    a('s_lshl_b32 s7, 1, %s' % S_MT)
    a('s_sub_u32 s7, s7, 1')
    stamp(a, 4)
    if ((not FUSE) or WGTA) and not WGTB:
        wgt(a, 4)
    poll(a, 'k1b_poll', V_OFF, T0, 's7', 'and')
    stamp(a, 5)
    if ((not FUSE) or WGTA) and not WGTB:
        wgt(a, 5)
    for m in range(7):
        a('buffer_load_dwordx2 %s, v%d, s[60:63], %s offen sc1' % (vr(E + 2 * m, 2), T2, '0' if m == 0 else 's6'))
        a('s_mov_b32 s6, 0x%x' % ((m + 1) * 8192))
    HR, HI = 112, 113
    a('v_mov_b32 v%d, 0' % HR)
    a('v_mov_b32 v%d, 0' % HI)
    a('s_waitcnt vmcnt(0)')
    for m in range(7):
        a('s_cmp_le_u32 %s, %d' % (S_MT, m))
        a('s_cbranch_scc1 k1b_hdone')
        cfma(a, HR, HI, L256R, L256I, E + 2 * m, E + 2 * m + 1, t)
    a.label('k1b_hdone')
    cfma(a, HR, HI, SWR, SWI, SPR, SPI, t)
    srd(a, 60, 'ws', 8 << 20, WS_H)
    for i in range(32):
        r, m = ure(i), uim(i)
        if PKB:
            pk_step(HR, i, t)
        else:
            cfma(a, HR, HI, LR, LI, r, m, t)
        w = 120 + (i & 3) * 3
        a('v_cvt_pk_bf16_f32 v%d, v%d, -v%d' % (w, HR, HI))
        a('v_mov_b32_dpp v%d, v%d quad_perm:[1,0,3,2] row_mask:0xf bank_mask:0xf' % (w + 1, w))
        a('v_perm_b32 v%d, v%d, v%d, v%d' % (w + 2, w + 1, w, V_SEL))
        a('ds_write_b32 v%d, v%d offset:%d' % (V_HW, w + 2, i * 256))
    a('s_waitcnt lgkmcnt(0)')
    a('s_barrier')
    a('s_lshl_b32 s5, %s, 13' % S_WAVE)
    a('v_lshl_add_u32 v%d, v%d, 4, s5' % (T0, V_LANE))
    for i in range(8):
        a('ds_read_b128 %s, v%d offset:%d' % (vr(144 + 4 * i, 4), T0, i * 1024))
    for i in range(8):
        a('s_mov_b32 s5, 0x%x' % (i * 4 * 4096))
        a('s_waitcnt lgkmcnt(%d)' % (7 - i))
        a('buffer_store_dwordx4 %s, v%d, s[60:63], s5 offen%s' % (vr(144 + 4 * i, 4), V_H,
                                                                  os.environ.get('STH', ' sc1' if FUSE else '')))
    if FUSE:
        handoff_phase2(a, 'b')
        return
    if not os.environ.get('NO_PF3'):
        prefetch_tail(a, [('Cre', 2 << 20), ('Cim', 2 << 20), ('wo', 2 << 20)], 255, T0)
    stamp(a, 6)
    wgt(a, 6)
    stamp_flush(a, 7, 128, 44)
    wgt_flush(a, 7, 0)
    a('s_endpgm')
```
